```python
import torch

def _softmax(x, axis=-1):
    return torch.softmax(x, dim=axis)
def _gelu(x):
    return torch.nn.functional.gelu(x, approximate="tanh")
def _silu(x):
    return torch.nn.functional.silu(x)
def _sigmoid(x):
    return torch.sigmoid(x)
def _layernorm(x, axis=-1, eps=1e-5):
    m = x.mean(dim=axis, keepdim=True)
    v = x.var(dim=axis, keepdim=True, unbiased=False)
    return (x - m) / torch.sqrt(v + eps)
def _scatter_add(tgt, idx, src, axis=0):
    return tgt.clone().index_add_(axis, idx, src)
def _segment_sum(src, seg, n):
    out = torch.zeros((n,) + src.shape[1:], dtype=src.dtype)
    return out.index_add_(0, seg, src)
def _pad(x, pw):
    flat = tuple(v for pair in reversed(pw) for v in pair)
    return torch.nn.functional.pad(x, flat)

kernel_name = 'gather_scatter__cheap_equivariant_egnn__graph'

def setup_inputs():

    _w = (lambda a: (lambda t: t.to(torch.bfloat16) if t.is_floating_point() else t)(torch.as_tensor(a)))
    N, deg, D, De = 12500, 32, 128, max(0, 1)
    E = N * deg
    return {
        "h": _w((lambda *s: torch.randn(*s, dtype=torch.bfloat16) * 0.1)(N, D)),
        "pos": _w((lambda *s: torch.randn(*s, dtype=torch.bfloat16) * 0.8)(N, 3)),
        "e_attr": _w((lambda *s: torch.randn(*s, dtype=torch.bfloat16) * 0.8)(E, De)),
        "src": _w((lambda lo, hi, *s: torch.randint(lo, hi, s))(0, N, E).to(torch.int64)),
        "dst": _w((lambda lo, hi, *s: torch.randint(lo, hi, s))(0, N, E).to(torch.int64)),
        "w_e": _w(0.1 * (lambda *s: torch.randn(*s, dtype=torch.bfloat16) * 0.8)(2 * D + 1 + De, D)),
        "w_x": _w(0.1 * (lambda *s: torch.randn(*s, dtype=torch.bfloat16) * 0.1)(D, 1)),
        "w_h": _w(0.1 * (lambda *s: torch.randn(*s, dtype=torch.bfloat16) * 0.1)(2 * D, D)),
    }

def reference(h, pos, e_attr, src, dst, w_e, w_x, w_h):
    N, D = h.shape[0], h.shape[1]
    diff = pos[dst] - pos[src]
    dist2 = torch.sum(diff * diff, axis=-1, keepdims=True)
    e_in = torch.concatenate([h[dst], h[src], dist2, e_attr], axis=-1)
    m_ij = _silu(e_in @ w_e)
    coord_scale = m_ij @ w_x
    pos_new = pos + _segment_sum(diff * coord_scale, dst, N)
    m_i = _segment_sum(m_ij, dst, N)
    h_new = h + _silu(torch.concatenate([h, m_i], axis=-1) @ w_h)
    return h_new, pos_new
```

```python
import sys, struct, math

NAME = "gather_scatter__cheap_equivariant_egnn__graph"
N, E, NB = 12500, 400000, 49
NCH, CH = 250, 1600
NGEMM = 196
WS_Q, WS_REC, WS_T, WS_POS, WS_WF = 0, 0x400000, 0x800000, 0x900000, 0xA00000
TSTRIDE = 1152
LOG2E = 1.4426950408889634
LN2 = 0.6931471805599453
KEXP = 30


def f32(x):
    return struct.unpack("<I", struct.pack("<f", x))[0]


def v(a, n=1):
    return "v%d" % a if n == 1 else "v[%d:%d]" % (a, a + n - 1)


def s(a, n=1):
    return "s%d" % a if n == 1 else "s[%d:%d]" % (a, a + n - 1)


class Asm:
    def __init__(self):
        self.l = []

    def __call__(self, *lines):
        for x in lines:
            for y in x.strip("\n").split("\n"):
                y = y.strip()
                if not y:
                    continue
                self.l.append(y if y.endswith(":") else "    " + y)

    def text(self):
        return "\n".join(self.l) + "\n"


MF = "v_mfma_f32_32x32x16_bf16"


def mfma(d, a, b, c):
    return "%s %s, %s, %s, %s" % (MF, v(d, 16), v(a, 4), v(b, 4), "0" if c is None else v(c, 16))


def scan64(a, r):
    for sh in (1, 2, 4, 8):
        a("s_nop 1", "v_add_u32_dpp %s, %s, %s row_shr:%d row_mask:0xf bank_mask:0xf" % (v(r), v(r), v(r), sh))
    a("s_nop 1", "v_add_u32_dpp %s, %s, %s row_bcast:15 row_mask:0xa bank_mask:0xf" % (v(r), v(r), v(r)))
    a("s_nop 1", "v_add_u32_dpp %s, %s, %s row_bcast:31 row_mask:0xc bank_mask:0xf" % (v(r), v(r), v(r)))


K1_LDS = 49152 + 8 * 2560


def gen_k1(a, opt):
    st = opt.get("k1_store", "")
    a("""
    prep_kernel:
    s_cmp_ge_u32 s2, %d
    s_cbranch_scc1 K1_END
    s_load_dwordx16 s[4:19], s[0:1], 0
    s_load_dwordx2 s[20:21], s[0:1], 80
    v_lshrrev_b32 v1, 6, v0
    v_and_b32 v2, 63, v0
    v_readfirstlane_b32 s3, v1
    s_cmp_ge_u32 s2, %d
    s_cbranch_scc1 K1_GEMM
    s_cmp_eq_u32 s3, 7
    s_cbranch_scc1 K1_EXTRA
    """ % (NCH + NGEMM, NCH))
    a("""
    v_lshlrev_b32 v3, 2, v0
    v_mov_b32 v4, 0
    ds_write_b32 v3, v4
    v_cmp_gt_u32 vcc, 400, v0
    s_mul_i32 s24, s2, %d
    v_lshl_add_u32 v4, v0, 4, s24
    v_lshrrev_b32 v5, 1, v4
    s_mov_b64 s[22:23], vcc
    s_waitcnt lgkmcnt(0)
    s_mov_b64 exec, s[22:23]
    global_load_dwordx4 v[8:11], v4, s[12:13]
    global_load_dwordx4 v[12:15], v4, s[10:11]
    global_load_dwordx2 v[16:17], v5, s[8:9]
    s_mov_b32 s25, -49
    s_mov_b32 s26, 0x01000100
    s_mov_b32 s27, 0x03020302
    v_mov_b32 v6, 1
    s_barrier
    s_waitcnt vmcnt(2)
    """ % (CH * 4))
    for k in range(4):
        a("v_mul_u32_u24 %s, 21400, %s" % (v(28 + k), v(8 + k)))
        a("v_lshrrev_b32 %s, 20, %s" % (v(28 + k), v(28 + k)))
        a("v_mad_i32_i24 %s, %s, s25, %s" % (v(8 + k), v(28 + k), v(8 + k)))
        a("v_lshlrev_b32 %s, 2, %s" % (v(28 + k), v(28 + k)))
        a("ds_add_rtn_u32 %s, %s, v6" % (v(32 + k), v(28 + k)))
    a("s_waitcnt vmcnt(0)")
    for k in range(4):
        a("v_lshl_or_b32 %s, %s, 19, %s" % (v(20 + 2 * k), v(8 + k), v(12 + k)))
        a("v_perm_b32 %s, %s, %s, %s" % (v(21 + 2 * k), v(16 + k // 2), v(16 + k // 2), s(26 + (k & 1))))
    a("""
    s_mov_b64 exec, -1
    v_lshlrev_b32 v3, 4, v2
    s_waitcnt lgkmcnt(0)
    s_barrier
    ds_read_b128 v[8:11], v3
    s_waitcnt lgkmcnt(0)
    v_add_u32 v12, v8, v9
    v_add3_u32 v12, v12, v10, v11
    v_mov_b32 v13, v12
    """)
    scan64(a, 13)
    a("""
    v_sub_u32 v12, v13, v12
    v_add_u32 v13, v12, v8
    v_add_u32 v14, v13, v9
    v_add_u32 v15, v14, v10
    ds_write_b128 v3, v[12:15] offset:1024
    s_mov_b64 exec, s[22:23]
    """)
    for k in range(4):
        a("ds_read_b32 %s, %s offset:1024" % (v(28 + k), v(28 + k)))
    a("""
    s_cmp_lg_u32 s3, 0
    s_cbranch_scc1 K1_NOT
    v_lshl_or_b32 v8, v8, 16, v12
    v_lshl_or_b32 v9, v9, 16, v13
    v_lshl_or_b32 v10, v10, 16, v14
    v_lshl_or_b32 v11, v11, 16, v15
    s_mul_i32 s24, s2, %d
    s_add_u32 s24, s24, %d
    v_add_u32 v3, s24, v3
    global_store_dwordx4 v3, v[8:11], s[20:21] %s
    K1_NOT:
    """ % (TSTRIDE, WS_T, st))
    for k in range(4):
        a("s_waitcnt lgkmcnt(%d)" % (3 - k if k == 0 else 3))
        a("v_add_lshl_u32 %s, %s, %s, 3" % (v(28 + k), v(28 + k), v(32 + k)))
        a("ds_write_b64 %s, %s offset:2048" % (v(28 + k), v(20 + 2 * k, 2)))
    a("""
    v_lshlrev_b32 v3, 4, v0
    s_mul_i32 s24, s2, %d
    s_add_u32 s24, s24, %d
    v_add_u32 v4, s24, v3
    v_add_u32 v5, 6400, v4
    s_waitcnt lgkmcnt(0)
    s_barrier
    ds_read_b128 v[12:15], v3 offset:2048
    ds_read_b128 v[16:19], v3 offset:%d
    s_waitcnt lgkmcnt(1)
    global_store_dwordx4 v4, v[12:15], s[20:21] %s
    s_waitcnt lgkmcnt(0)
    global_store_dwordx4 v5, v[16:19], s[20:21] %s
    s_endpgm
    """ % (CH * 8, WS_REC, 2048 + 6400, st, st))
    a("""
    K1_EXTRA:
    s_mul_i32 s24, s2, 50
    v_add_u32 v3, s24, v2
    v_mul_u32_u24 v4, 6, v3
    v_lshlrev_b32 v3, 4, v3
    v_add_u32 v3, %d, v3
    s_waitcnt lgkmcnt(0)
    s_bfm_b64 exec, 50, 0
    global_load_ushort v8, v4, s[6:7]
    global_load_ushort v9, v4, s[6:7] offset:2
    global_load_ushort v10, v4, s[6:7] offset:4
    s_mov_b64 exec, -1
    s_barrier
    s_cmp_ge_u32 s2, 96
    s_cbranch_scc1 K1_XPOS
    v_and_b32 v5, 3, v2
    v_bfe_u32 v6, v2, 3, 2
    v_lshl_add_u32 v5, v6, 2, v5
    v_bfe_u32 v6, v2, 2, 1
    v_lshl_add_u32 v5, v6, 4, v5
    s_bfe_u32 s24, s2, 0x20003
    s_lshl_b32 s24, s24, 5
    v_add_lshl_u32 v5, v5, s24, 1
    v_lshrrev_b32 v6, 5, v2
    s_and_b32 s25, s2, 7
    s_cmp_ge_u32 s2, 64
    s_cbranch_scc1 K1_XW2
    s_lshl_b32 s25, s25, 12
    v_lshl_add_u32 v5, v6, 11, v5
    v_add_u32 v5, s25, v5
    s_cmp_ge_u32 s2, 32
    s_cselect_b32 s26, s18, s14
    s_cselect_b32 s27, s19, s15
    """ % WS_POS)
    for j in range(8):
        a("global_load_ushort %s, v5, s[26:27] offset:%d" % (v(12 + j), j * 256))
    a("""
    s_branch K1_XWST
    K1_XW2:
    s_lshr_b32 s26, s25, 2
    s_lshl_b32 s26, s26, 6
    s_and_b32 s25, s25, 3
    s_lshl_b32 s25, s25, 3
    s_add_u32 s25, s25, s26
    s_add_u32 s25, s25, 128
    s_lshl_b32 s25, s25, 8
    v_lshl_add_u32 v5, v6, 10, v5
    v_add_u32 v5, s25, v5
    v_add_u32 v6, 8192, v5
    """)
    for j in range(8):
        a("global_load_ushort %s, %s, s[18:19] offset:%d" % (v(12 + j), v(5 + (j & 1)), (j >> 1) * 256))
    a("""
    K1_XWST:
    s_lshl_b32 s24, s2, 10
    s_add_u32 s24, s24, %d
    v_lshl_add_u32 v5, v2, 4, s24
    s_barrier
    s_barrier
    s_waitcnt vmcnt(0)
    v_lshl_or_b32 v12, v13, 16, v12
    v_lshl_or_b32 v13, v15, 16, v14
    v_lshl_or_b32 v14, v17, 16, v16
    v_lshl_or_b32 v15, v19, 16, v18
    global_store_dwordx4 v5, v[12:15], s[20:21] %s
    s_branch K1_XP2
    K1_XPOS:
    s_barrier
    s_barrier
    s_waitcnt vmcnt(0)
    K1_XP2:
    s_bfm_b64 exec, 50, 0
    v_lshlrev_b32 v8, 16, v8
    v_lshlrev_b32 v9, 16, v9
    v_lshlrev_b32 v10, 16, v10
    v_mov_b32 v11, 0
    global_store_dwordx4 v3, v[8:11], s[20:21] %s
    s_endpgm
    """ % (WS_WF, st, st))
    a("""
    K1_GEMM:
    s_sub_u32 s2, s2, %d
    v_lshrrev_b32 v3, 4, v2
    v_lshlrev_b32 v4, 2, v3
    v_and_b32 v5, 15, v2
    v_xor_b32 v4, v4, v5
    v_lshlrev_b32 v4, 4, v4
    v_lshl_add_u32 v4, v3, 8, v4
    s_lshl_b32 s22, s3, 12
    s_add_u32 s23, s22, 32768
    v_and_b32 v5, 3, v2
    v_xor_b32 v5, v5, v3
    v_lshlrev_b32 v5, 4, v5
    v_lshrrev_b32 v6, 2, v2
    v_lshl_add_u32 v5, v6, 8, v5
    s_lshr_b32 s24, s3, 1
    s_lshl_b32 s25, s2, 2
    s_add_u32 s25, s25, s24
    s_lshl_b32 s25, s25, 12
    s_and_b32 s26, s3, 1
    s_lshl_b32 s27, s26, 7
    s_add_u32 s25, s25, s27
    s_lshr_b32 s27, s3, 2
    s_lshl_b32 s27, s27, 13
    s_lshl_b32 s26, s26, 12
    s_add_u32 s27, s27, s26
    s_and_b32 s24, s24, 1
    s_lshl_b32 s24, s24, 10
    s_add_u32 s27, s27, s24
    s_add_u32 s27, s27, 32768
    s_waitcnt lgkmcnt(0)
    s_mov_b32 s28, s4
    s_mov_b32 s29, s5
    s_mov_b32 s30, %d
    s_mov_b32 s31, 0x20000
    s_mov_b32 s32, s14
    s_mov_b32 s33, s15
    s_mov_b32 s34, %d
    s_mov_b32 s35, 0x20000
    s_mov_b32 m0, s27
    v_add_u32 v5, s25, v5
    buffer_load_dwordx4 v5, s[28:31], 0 offen lds
    s_add_u32 m0, s27, %d
    s_nop 0
    buffer_load_dwordx4 v5, s[28:31], 0 offen offset:64 lds
    s_mov_b32 m0, s22
    s_nop 0
    """ % (NCH, N * 256, 258 * 256, 2048 - 64))
    for i in range(4):
        a("buffer_load_dwordx4 v4, s[32:35], s23 offen offset:%d lds" % (i * 1024))
    a("""
    s_and_b32 s24, s3, 3
    s_lshr_b32 s26, s3, 2
    v_bfe_u32 v6, v2, 2, 2
    v_xor_b32 v7, s24, v6
    v_lshlrev_b32 v7, 6, v7
    v_lshl_add_u32 v7, v6, 8, v7
    v_lshrrev_b32 v8, 5, v2
    v_lshl_add_u32 v7, v8, 11, v7
    v_and_b32 v9, 1, v2
    v_lshl_add_u32 v7, v9, 5, v7
    v_bfe_u32 v9, v2, 4, 1
    v_lshl_add_u32 v7, v9, 4, v7
    v_bfe_u32 v10, v2, 1, 1
    v_lshl_add_u32 v7, v10, 3, v7
    v_xor_b32 v6, v6, v8
    v_lshlrev_b32 v6, 4, v6
    v_and_b32 v10, 15, v2
    v_lshl_add_u32 v6, v10, 6, v6
    v_lshl_add_u32 v6, v9, 10, v6
    s_lshl_b32 s27, s26, 13
    s_add_u32 s27, s27, 32768
    v_add_u32 v6, s27, v6
    v_xor_b32 v11, 32, v6
    s_mul_i32 s27, s3, 2560
    s_add_u32 s27, s27, 49152
    v_and_b32 v10, 31, v2
    v_mul_u32_u24 v12, 80, v10
    v_lshl_add_u32 v12, v8, 5, v12
    v_add_u32 v12, s27, v12
    v_lshrrev_b32 v10, 2, v2
    v_mul_u32_u24 v13, 80, v10
    v_and_b32 v9, 3, v2
    v_lshl_add_u32 v13, v9, 4, v13
    v_add_u32 v13, s27, v13
    v_lshlrev_b32 v14, 8, v10
    v_lshl_add_u32 v14, v9, 4, v14
    s_lshl_b32 s25, s2, 1
    s_add_u32 s25, s25, s26
    s_lshl_b32 s25, s25, 13
    s_lshl_b32 s24, s24, 6
    s_add_u32 s25, s25, s24
    v_add_u32 v14, s25, v14
    v_add_u32 v15, 4096, v14
    s_mov_b32 s36, 0x%x
    s_mov_b32 s37, s36
    s_waitcnt vmcnt(0)
    s_barrier
    """ % f32(-LOG2E))
    A0, B0, D0 = 32, 64, 16

    def rd(ks):
        a("ds_read_b64_tr_b16 %s, v7 offset:%d" % (v(A0 + 4 * ks, 2), ks * 4096))
        a("ds_read_b64_tr_b16 %s, v7 offset:%d" % (v(A0 + 4 * ks + 2, 2), ks * 4096 + 1024))
        a("ds_read_b128 %s, %s offset:%d" % (v(B0 + 4 * ks, 4), "v11" if ks & 1 else "v6", (ks >> 1) * 2048))
    for ks in range(4):
        rd(ks)
    for ks in range(8):
        if ks + 4 < 8:
            rd(ks + 4)
        a("s_waitcnt lgkmcnt(%d)" % (3 * min(4, 7 - ks)))
        a(mfma(D0, A0 + 4 * ks, B0 + 4 * ks, None if ks == 0 else D0))
    a("s_nop 11")
    for i in range(8):
        a("v_pk_mul_f32 %s, %s, s[36:37]" % (v(D0 + 2 * i, 2), v(D0 + 2 * i, 2)))
    for i in range(8):
        a("v_cvt_pk_bf16_f32 %s, %s, %s" % (v(A0 + i), v(D0 + 2 * i), v(D0 + 2 * i + 1)))
    a("""
    ds_write_b128 v12, v[32:35]
    ds_write_b128 v12, v[36:39] offset:16
    ds_read_b128 v[40:43], v13
    ds_read_b128 v[44:47], v13 offset:1280
    s_waitcnt lgkmcnt(1)
    global_store_dwordx4 v14, v[40:43], s[20:21] %s
    s_waitcnt lgkmcnt(0)
    global_store_dwordx4 v15, v[44:47], s[20:21] %s
    K1_END:
    s_endpgm
    """ % (st, st))


L_CNT, L_FLAG, L_WZ, L_LUT = 0, 256, 960, 3136
L_LUTC = L_LUT + 64 * 16
L_POSD, L_U, L_M = 5184, 6208, 7232
RS = 272
L_P = L_M + 64 * RS
CAP = 1920
L_REC = L_P + 64 * RS
L_S = L_REC + (CAP + 64) * 8
SW = 32 * 72
L_G = (L_S + 8 * SW + 1023) // 1024 * 1024
K2_LDS = L_G + 65536

ACC, D0, D1, EE, TT, PP, AQ, ID, B3, A3, A2 = 0, 64, 80, 96, 112, 120, 128, 136, 144, 160, 164
WH2, H1, HR, WX = 172, 204, 220, 228
GP = 232
vAq0, vAq1, vCoff, vDA0, vDA1, vIdx, vRec, vX, vS, vXb, vSb, vA2, vB3, vIncl, vTid = range(236, 251)
vT0, vT1, vT2, vT3, vT4 = 251, 252, 253, 254, 255
sQ, sPOS, sT, sH, sOUT = 24, 28, 32, 36, 40
sK, sL2E, sSEL = 44, 46, 48
sO, sQUOTA, sSAFE, sFIRST, sTOTAL, sEND, sP1, sP2, sWB8, sWBO8, sWEND = range(49, 60)
sMASK = 60
sFLUSH, sREB, sGW, sREP, sD8, sE, sA, sB = range(62, 70)
sRET = 70
sM = 72


def silu_ops(Y, ng):
    ex = ["v_exp_f32 %s, %s" % (v(EE + i), v(Y + i)) for i in range(4 * ng)]
    r1, r2, r3 = [], [], []
    for g in range(ng):
        r1.append("v_pk_fma_f32 %s, %s, %s, %s" % (v(TT + 2 * g, 2), v(EE + 4 * g, 2), s(sK, 2), s(sK, 2)))
    for g in range(ng):
        r1.append("v_pk_fma_f32 %s, %s, %s, %s" % (v(TT + 2 * g, 2), v(TT + 2 * g, 2), v(EE + 4 * g + 2, 2), v(TT + 2 * g, 2)))
    for i in range(2 * ng):
        r2.append("v_rcp_f32 %s, %s" % (v(TT + i), v(TT + i)))
    for g in range(ng):
        for p in range(2):
            y = v(Y + 4 * g + 2 * p, 2)
            r3.append("v_pk_mul_f32 %s, %s, %s" % (y, y, v(TT + 2 * g, 2)))
    for g in range(ng):
        for p in range(2):
            y = v(Y + 4 * g + 2 * p, 2)
            r3.append("v_pk_fma_f32 %s, %s, %s, %s" % (y, y, v(EE + 4 * g + 2 * (1 - p), 2), y))
    return ex, r1, r2, r3


def cvts(Dp, n):
    return ["v_cvt_pk_bf16_f32 %s, %s, %s" % (v(PP + i), v(Dp + 2 * i), v(Dp + 2 * i + 1)) for i in range(n)]


def dma(a, slot):
    for r in range(2):
        a("s_add_u32 m0, %s, %d" % (s(sGW), slot * 2048 + r * 1024 - slot * 64))
        a("s_nop 0")
        a("buffer_load_dwordx4 %s, %s, 0 offen offset:%d lds" % (v(vDA0 + r), s(sQ, 4), slot * 64))


def aq_read(a, slot):
    a("ds_read_b128 %s, %s offset:%d" % (v(AQ, 4), v(vAq0), slot * 2048))
    a("ds_read_b128 %s, %s offset:%d" % (v(AQ + 4, 4), v(vAq1), slot * 2048))


def logic(a, tag):
    a("""
    s_add_u32 {P2}, {P1}, 32
    s_min_u32 {E}, {P2}, {END}
    s_sub_u32 {A}, {E}, {P1}
    s_bfm_b64 {MASK}, {A}, 0
    s_cmp_gt_u32 {E}, {WEND}
    s_cbranch_scc0 K2_NOREB_{tag}
    s_call_b64 {RET}, K2_REBASE
    K2_NOREB_{tag}:
    s_sub_u32 {D8}, {P2}, {P1}
    s_lshl_b32 {D8}, {D8}, 3
    """.format(P2=s(sP2), P1=s(sP1), E=s(sE), END=s(sEND), A=s(sA), MASK=s(sMASK, 2), WEND=s(sWEND),
               RET=s(sRET, 2), D8=s(sD8), tag=tag))


def geom_a():
    return ["v_sub_f32 %s, %s, %s" % (v(TT + i), v(TT + i), v(GP + i)) for i in range(3)]


def geom_b():
    return ["v_cvt_pk_bf16_f32 %s, %s, %s" % (v(A3), v(TT), v(TT + 1)),
            "v_cvt_pk_bf16_f32 %s, %s, %s" % (v(A3 + 1), v(TT + 2), s(sK))]


def geom_c():
    return ["v_dot2_f32_bf16 %s, %s, %s, 0" % (v(A3 + 2), v(A3), v(A3)),
            "v_dot2_f32_bf16 %s, %s, %s, %s" % (v(A3 + 2), v(A3 + 1), v(A3 + 1), v(A3 + 2))]


def geom_d():
    return ["v_cvt_pk_bf16_f32 %s, %s, %s" % (v(A3 + 2), v(A3 + 2), v(A3 + 2))]


def perms():
    return ["v_perm_b32 %s, %s, %s, %s" % (v(vDA0 + r), v(TT + 4 + r), v(vCoff), s(sSEL)) for r in range(2)]


def a3_reads(a):
    a("""
    s_mov_b32 exec_lo, 0
    ds_read_b128 %s, %s
    s_not_b64 exec, exec
    ds_read_b32 %s, %s offset:4
    s_mov_b64 exec, -1
    """ % (v(A3, 4), v(vX), v(A3 + 3), v(vRec)))


def srd_switch(a):
    a("s_cmp_lt_u32 %s, %s" % (s(sP2), s(sEND)))
    a("s_cselect_b32 %s, %d, 0" % (s(sQ + 2), N * 256))


def gather_pos(a):
    a("s_mov_b32 exec_hi, 0")
    a("buffer_load_dwordx3 %s, %s, %s, 0 idxen" % (v(GP, 3), v(GP), s(sPOS, 4)))
    a("s_mov_b32 exec_hi, -1")


def step(a, half, opt):
    tag = "H" if half else "F"
    prio_at = opt.get("prio_at", 4)
    useprio = opt.get("prio", 1)
    for t in range(4):
        D, Dn = (D0, D1) if t % 2 == 0 else (D1, D0)
        slot = (t + 1) & 3
        last = half and t == 3
        if t > 0 and useprio:
            a("s_setprio 0")
        w = ([6, 4, 2, None] if half else [6, 7, 4, None])[t]
        if w is not None:
            a("s_waitcnt vmcnt(%d)" % w)
        if not last:
            aq_read(a, slot)
        if t == 0 and not half:
            a("ds_read_u16 %s, %s" % (v(GP), v(vRec)))
        if t == 1:
            a("""
            s_cmp_eq_u32 %s, 0
            s_cbranch_scc1 K2_NOFL_%s
            s_call_b64 %s, K2_FLUSH
            K2_NOFL_%s:
            s_mov_b64 exec, %s
            ds_write_b64 %s, %s
            s_mov_b64 exec, -1
            """ % (s(sFLUSH), tag, s(sRET, 2), tag, s(sMASK, 2), v(vS), v(A3, 2)))
            for i in range(2 if half else 4):
                a("ds_read_b64_tr_b16 %s, %s offset:%d" % (v(A2 + 2 * i, 2), v(vA2), i * 576))
            if not half:
                a("""
                s_mov_b64 exec, %s
                ds_write_b64 %s, %s
                s_mov_b64 exec, -1
                ds_read_u16 %s, %s offset:2
                """ % (s(sMASK, 2), v(vS), v(B3, 2), v(vS), v(vRec)))
                logic(a, tag)
        if t == 2 and not half:
            a("ds_read_b96 %s, %s" % (v(TT, 3), v(vX)))
            a("ds_read2_b32 %s, %s offset0:0 offset1:32" % (v(TT + 4, 2), v(vIdx)))
        if t == 3 and not half:
            a("""
            s_cmp_eq_u32 %s, 0
            s_cbranch_scc1 K2_NOB3
            s_call_b64 %s, K2_B3LOAD
            K2_NOB3:
            """ % (s(sREB), s(sRET, 2)))
            a3_reads(a)
            srd_switch(a)
        a("""
        s_cmp_eq_u32 %s, 0
        s_cbranch_scc1 K2_NOSAFE_%s%d
        s_call_b64 %s, K2_CLAMP%d
        K2_NOSAFE_%s%d:
        s_waitcnt lgkmcnt(0)
        """ % (s(sSAFE), tag, t, s(sRET, 2), t & 1, tag, t))
        if not half:
            if t == 0:
                gather_pos(a)
            dma(a, slot)
        accp = ACC + 16 * ((t + 3) & 3)
        S2a = mfma(accp, A2, PP, accp)
        S2b = mfma(accp, A2 + 4, PP + 4, accp)
        S1a = mfma(Dn, A3, B3 + 4 * slot, None)
        S1b = mfma(Dn, AQ, ID, Dn)
        S1c = mfma(Dn, AQ + 4, ID + 4, Dn)
        ex, r1, r2, r3 = silu_ops(D, 2 if half else 4)
        pre, mid, late, fin = [], [], [], []
        if not half:
            if t == 1:
                pre = ["v_lshl_add_u32 %s, %s, 1, %s" % (v(vX), v(vS), v(vXb)),
                       "v_add_u32 %s, %s, %s" % (v(vS), v(vS), v(vSb)),
                       "v_add_u32 %s, %s, %s" % (v(vIdx), s(sD8), v(vIdx))]
            if t == 2:
                pre = geom_a() + perms()
                mid = geom_b()
                late = geom_c()
                fin = geom_d()
            if t == 3:
                pre = ["v_add_u32 %s, %s, %s" % (v(vRec), s(sD8), v(vRec))]
            cv = cvts(Dn, 8)
            run = pre + cv[:6] + [S2a] + cv[6:] + ex[:2] + [S1a] + ex[2:5] + [S2b] + ex[5:8] + [S1b] + ex[8:11] + [S1c] + mid + ex[11:]
            run += late + r1 + fin + r2 + r3
        else:
            if t == 0:
                cv = cvts(Dn, 8)
                run = cv[:6] + [S2a] + cv[6:] + ex[:2] + [S1a] + ex[2:5] + [S2b] + ex[5:8] + [S1b] + r1 + [S1c] + r2 + r3
                run += ["s_nop 3"]
            elif not last:
                cv = cvts(Dn, 4)
                run = cv + [S1a] + ex[:3] + [S1b] + ex[3:6] + [S1c] + ex[6:] + r1 + [S2a] + r2 + r3
            else:
                cv = cvts(Dn, 4)
                run = cv + ex[:2] + [S2a] + ex[2:] + r1 + r2 + r3
        if useprio:
            run.insert(prio_at, "s_setprio 1")
        a(*run)


def gen_k2(a, opt):
    a("""
    main_kernel:
    s_cmp_ge_u32 s2, 256
    s_cbranch_scc1 K2_END
    s_load_dwordx16 s[4:19], s[0:1], 0
    s_load_dwordx2 s[20:21], s[0:1], 64
    s_load_dwordx2 s[22:23], s[0:1], 80
    v_mov_b32 {tid}, v0
    v_lshrrev_b32 v1, 6, v0
    s_mov_b32 {O}, 0
    v_readfirstlane_b32 s3, v1
    s_mov_b32 {QUOTA}, 24
    s_mov_b32 {SAFE}, 0
    s_mov_b32 {FIRST}, 1
    s_mov_b32 {K}, 0x{k:x}
    s_mov_b32 {K1}, 0x{k:x}
    s_mov_b32 {L}, 0x{l:x}
    s_mov_b32 {L1}, 0x{l:x}
    s_mov_b32 {SEL}, 0x0c050400
    s_lshl_b32 {GW}, s3, 13
    s_add_u32 {GW}, {GW}, {LG}
    s_waitcnt lgkmcnt(0)
    """.format(tid=v(vTid), O=s(sO), QUOTA=s(sQUOTA), SAFE=s(sSAFE), FIRST=s(sFIRST), K=s(sK), K1=s(sK + 1),
               k=f32(2.0 ** -KEXP), L=s(sL2E), L1=s(sL2E + 1), l=f32(-LOG2E), SEL=s(sSEL), GW=s(sGW), LG=L_G))
    a("""
    s_add_u32 {T}, s22, {wst}
    s_addc_u32 {T1}, s23, 0
    s_mov_b32 {T2}, {tsz}
    s_mov_b32 {T3}, 0x20000
    s_mov_b32 {Q}, s22
    s_mov_b32 {Q1}, s23
    s_mov_b32 {Q3}, 0x20000
    s_add_u32 {P}, s22, {wsp}
    s_addc_u32 {P1}, s23, 0
    s_or_b32 {P1}, {P1}, 0x100000
    s_mov_b32 {P2}, {n}
    s_mov_b32 {P3}, 0x20000
    s_mov_b32 {H}, s4
    s_mov_b32 {H1}, s5
    s_mov_b32 {H2}, {hsz}
    s_mov_b32 {H3}, 0x20000
    s_mov_b32 {U}, s20
    s_mov_b32 {U1}, s21
    s_mul_i32 {U2}, s2, {nb}
    s_add_u32 {U2}, {U2}, {nb}
    s_min_u32 {U2}, {U2}, {n}
    s_lshl_b32 {U2}, {U2}, 8
    s_mov_b32 {U3}, 0x20000
    K2_ROUND:
    s_mov_b32 {Q2}, {hsz}
    """.format(T=s(sT), T1=s(sT + 1), T2=s(sT + 2), T3=s(sT + 3), wst=WS_T, tsz=NCH * TSTRIDE,
               Q=s(sQ), Q1=s(sQ + 1), Q2=s(sQ + 2), Q3=s(sQ + 3), P=s(sPOS), P1=s(sPOS + 1), P2=s(sPOS + 2), P3=s(sPOS + 3),
               wsp=WS_POS, n=N, H=s(sH), H1=s(sH + 1), H2=s(sH + 2), H3=s(sH + 3), hsz=N * 256,
               U=s(sOUT), U1=s(sOUT + 1), U2=s(sOUT + 2), U3=s(sOUT + 3), nb=NB))
    vL, vCh, vTa, vTb, vWd, vZ = 160, 161, 162, 163, 164, 168
    REC0, RADDR, RANK = 112, 136, 148
    W1, WH1, HB = ACC, ACC + 32, D0
    a("""
    v_and_b32 {L}, 63, {tid}
    v_lshrrev_b32 {Ch}, 2, {L}
    s_lshl_b32 {A}, s3, 5
    v_add_u32 {Ch}, {A}, {Ch}
    v_mul_u32_u24 {t0}, {ts}, {Ch}
    v_add_u32 {t1}, {ts16}, {t0}
    s_lshl_b32 {A}, s2, 2
    buffer_load_dword {Ta}, {t0}, {T}, {A} offen
    buffer_load_dword {Tb}, {t1}, {T}, {A} offen
    """.format(L=v(vL), tid=v(vTid), Ch=v(vCh), A=s(sA), t0=v(vT0), t1=v(vT1), ts=TSTRIDE, ts16=16 * TSTRIDE,
               Ta=v(vTa), Tb=v(vTb), T=s(sT, 4)))
    a("""
    v_lshrrev_b32 {t0}, 4, {L}
    v_and_b32 {t1}, 3, {L}
    v_xor_b32 {co}, {t0}, {t1}
    v_lshlrev_b32 {co}, 4, {co}
    v_lshrrev_b32 {t0}, 2, {L}
    v_lshl_add_u32 {t0}, {t0}, 8, {co}
    s_lshr_b32 {A}, s3, 1
    s_lshl_b32 {B}, {A}, 4
    s_mul_i32 {E}, s2, {nb}
    s_add_u32 {B}, {B}, {E}
    s_lshl_b32 {B}, {B}, 8
    s_and_b32 {D}, s3, 1
    s_lshl_b32 {R}, {D}, 7
    s_add_u32 {B}, {B}, {R}
    s_lshl_b32 {D}, {D}, 12
    s_and_b32 {A}, {A}, 1
    s_lshl_b32 {A}, {A}, 10
    s_add_u32 {D}, {D}, {A}
    s_lshr_b32 {A}, s3, 2
    s_lshl_b32 {A}, {A}, 13
    s_add_u32 {D}, {D}, {A}
    s_add_u32 m0, {D}, {LG}
    v_add_u32 {t0}, {B}, {t0}
    buffer_load_dwordx4 {t0}, {H}, 0 offen lds
    s_add_u32 m0, {D}, {LG2}
    v_add_u32 {t1}, {E}, {L}
    buffer_load_dwordx4 {t0}, {H}, 0 offen offset:64 lds
    s_mov_b32 m0, {posd}
    v_and_b32 {t0}, 255, {tid}
    buffer_load_dwordx4 {t1}, {P}, 0 idxen lds
    v_lshlrev_b32 {t0}, 1, {t0}
    v_add_u32 {t0}, 65536, {t0}
    global_load_ushort {Wd}, {t0}, s[14:15]
    v_and_b32 {t0}, 31, {L}
    v_lshlrev_b32 {t0}, 1, {t0}
    """.format(t0=v(vT0), t1=v(vT1), co=v(vCoff), L=v(vL), A=s(sA), B=s(sB), E=s(sE), D=s(sD8), R=s(sREP), nb=NB,
               LG=L_G, LG2=L_G + 2048 - 64, H=s(sH, 4), P=s(sPOS, 4), posd=L_POSD, tid=v(vTid), Wd=v(vWd)))
    for t in range(4):
        a("global_load_ushort %s, %s, s[16:17] offset:%d" % (v(WX + t), v(vT0), t * 64))
    a("""
    s_and_b32 {A}, s3, 3
    s_lshl_b32 {A}, {A}, 13
    s_add_u32 {A}, {A}, {wf}
    v_lshl_add_u32 {t2}, {L}, 4, {A}
    v_add_u32 {t3}, 4096, {t2}
    """.format(A=s(sA), wf=WS_WF, t2=v(vT2), t3=v(vT3), L=v(vL)))

    def wload(dst, lo, hi):
        for ks in range(lo, hi):
            a("global_load_dwordx4 %s, %s, s[22:23] offset:%d" % (v(dst + 4 * ks, 4), v(vT2 + (ks >> 2)), (ks & 3) * 1024))
    W1PRE = opt.get("w1pre", 4)
    wload(W1, 0, W1PRE)
    a("""
    v_mov_b32 {z0}, 0
    v_mov_b32 {z1}, 0
    v_mov_b32 {z2}, 0
    v_mov_b32 {z3}, 0
    s_mul_i32 {A}, s3, {sw}
    s_add_u32 {A}, {A}, {ls}
    v_lshl_add_u32 {t0}, {L}, 4, {A}
    v_lshl_add_u32 {t1}, {L}, 2, {A}
    ds_write_b128 {t0}, {z}
    ds_write_b128 {t0}, {z} offset:1024
    ds_write_b32 {t1}, {z0} offset:2048
    v_lshlrev_b32 {t0}, 4, {tid}
    s_cmp_eq_u32 {FIRST}, 0
    s_cbranch_scc1 K2_NOZM
    ds_write_b128 {t0}, {z} offset:{u0}
    ds_write_b128 {t0}, {z} offset:{u1}
    s_cmp_ge_u32 s3, 2
    s_cbranch_scc1 K2_NOZM
    ds_write_b128 {t0}, {z} offset:{u2}
    K2_NOZM:
    v_lshlrev_b32 {t0}, 4, {L}
    s_cmp_lg_u32 s3, 6
    s_cbranch_scc1 K2_NOZ6
    ds_write_b128 {t0}, {z}
    ds_write_b128 {t0}, {z} offset:1024
    K2_NOZ6:
    s_cmp_lg_u32 s3, 7
    s_cbranch_scc1 K2_NOZ7
    ds_write_b128 {t0}, {z} offset:{lut}
    ds_write_b128 {t0}, {z} offset:{lut1}
    v_mul_u32_u24 {t0}, 18, {L}
    v_mov_b32 {t1}, 0x3f80
    s_mov_b64 exec, 0xff
    ds_write_b16 {t0}, {t1} offset:{lutc}
    s_mov_b64 exec, -1
    K2_NOZ7:
    """.format(z0=v(vZ), z1=v(vZ + 1), z2=v(vZ + 2), z3=v(vZ + 3), z=v(vZ, 4), A=s(sA), sw=SW, ls=L_S, t0=v(vT0), t1=v(vT1),
               L=v(vL), tid=v(vTid), FIRST=s(sFIRST), u0=L_U, u1=L_U + 8192, u2=L_U + 16384, lut=L_LUT, lut1=L_LUT + 1024, lutc=L_LUTC))
    a("""
    v_bfe_u32 {t0}, {L}, 2, 2
    v_lshrrev_b32 {t1}, 5, {L}
    v_xor_b32 {aq0}, {t0}, {t1}
    v_lshlrev_b32 {aq0}, 4, {aq0}
    v_and_b32 {t4}, 31, {L}
    v_lshl_add_u32 {aq0}, {t4}, 6, {aq0}
    v_mul_u32_u24 {sb}, 72, {t4}
    v_add_u32 {sb}, {A}, {sb}
    v_lshl_add_u32 {a2}, {t1}, 2, {t0}
    v_mul_u32_u24 {a2}, 72, {a2}
    v_mul_u32_u24 {b3}, {rs}, {t0}
    v_and_b32 {t0}, 3, {L}
    v_lshlrev_b32 {t0}, 3, {t0}
    v_bfe_u32 {t4}, {L}, 4, 1
    v_lshl_add_u32 {t0}, {t4}, 5, {t0}
    v_add3_u32 {a2}, {a2}, {t0}, {A}
    v_mul_u32_u24 {t4}, {pwz}, {t1}
    v_add3_u32 {b3}, {b3}, {t0}, {t4}
    v_add_u32 {b3}, {wz}, {b3}
    v_mul_u32_u24 {xb}, {dl}, {t1}
    v_sub_u32 {xb}, {posd}, {xb}
    s_mov_b32 {WB8}, 0
    s_mov_b32 {REP}, 0
    s_mov_b32 {WEND}, 0
    """.format(t0=v(vT0), t1=v(vT1), t4=v(vT4), L=v(vL), aq0=v(vAq0), sb=v(vSb), A=s(sA), a2=v(vA2), b3=v(vB3), rs=RS,
               pwz=L_P - L_WZ, wz=L_WZ, xb=v(vXb), dl=L_POSD - L_LUTC, posd=L_POSD, WB8=s(sWB8), REP=s(sREP), WEND=s(sWEND)))
    npre = 2 + 1 + 1 + 4 + W1PRE
    a("""
    v_mul_u32_u24 {Ch}, {ch}, {Ch}
    v_and_b32 {t4}, 3, {L}
    v_lshlrev_b32 {t4}, 1, {t4}
    v_add_u32 {t4}, {O}, {t4}
    v_add_u32 {Ch}, {Ch}, {t4}
    s_add_u32 {B}, {O}, {QUOTA}
    s_waitcnt vmcnt({n})
    v_and_b32 {t0}, 0xffff, {Ta}
    v_and_b32 {t1}, 0xffff, {Tb}
    v_add_lshl_u32 {t0}, {t0}, {Ch}, 3
    v_add_lshl_u32 {t1}, {t1}, {Ch}, 3
    v_add_u32 {t0}, {r0}, {t0}
    v_add_u32 {t1}, {r1}, {t1}
    v_lshrrev_b32 {Ta}, 16, {Ta}
    v_lshrrev_b32 {Tb}, 16, {Tb}
    v_max_u32 {Ch}, {Ta}, {Tb}
    v_min_u32 {Ta}, {B}, {Ta}
    v_min_u32 {Tb}, {B}, {Tb}
    v_sub_u32 {Ta}, {Ta}, {t4}
    v_sub_u32 {Tb}, {Tb}, {t4}
    """.format(Ch=v(vCh), ch=CH, t4=v(vT4), L=v(vL), O=s(sO), B=s(sB), QUOTA=s(sQUOTA), n=npre, t0=v(vT0), t1=v(vT1),
               Ta=v(vTa), Tb=v(vTb), r0=WS_REC, r1=WS_REC + 16 * CH * 8))
    slots = [(L, i) for L in range(3) for i in range(2)]
    for q, (L, i) in enumerate(slots):
        a("v_cmp_lt_i32 %s, %d, %s" % (s(sM + 4 * q, 2), 8 * L, v(vTa + i)))
    for q, (L, i) in enumerate(slots):
        a("s_mov_b64 exec, %s" % s(sM + 4 * q, 2))
        a("global_load_dwordx4 %s, %s, s[22:23] offset:%d" % (v(REC0 + 4 * q, 4), v(vT0 + i), 64 * L))
    a("s_mov_b64 exec, -1")
    wload(W1, W1PRE, 8)
    a("v_add_u32 %s, 32768, %s" % (v(vT2), v(vT2)), "v_add_u32 %s, 32768, %s" % (v(vT3), v(vT3)))
    wload(WH1, 0, 8)
    a("v_add_u32 %s, 32768, %s" % (v(vT2), v(vT2)), "v_add_u32 %s, 32768, %s" % (v(vT3), v(vT3)))
    wload(WH2, 0, 8)
    for q, (L, i) in enumerate(slots):
        a("v_cmp_lt_i32 %s, %d, %s" % (s(sM + 4 * q + 2, 2), 8 * L + 1, v(vTa + i)))
    a("v_cmp_lt_u32 vcc, %s, %s" % (s(sB), v(vCh)))
    a("""
    s_waitcnt vmcnt({n})
    v_lshlrev_b32 {Wd}, 16, {Wd}
    v_mul_f32 {Wd}, {L2E}, {Wd}
    v_cvt_pk_bf16_f32 {t0}, {Wd}, {Wd}
    v_and_b32 {t1}, 0xffff0000, {t0}
    v_sub_f32 {Wd}, {Wd}, {t1}
    v_cvt_pk_bf16_f32 {t1}, {Wd}, {Wd}
    v_bfe_u32 {t2}, {tid}, 7, 1
    v_mul_u32_u24 {t2}, {rs2}, {t2}
    v_and_b32 {t3}, 127, {tid}
    v_lshl_add_u32 {t2}, {t3}, 1, {t2}
    ds_write_b16 {t2}, {t0} offset:{w0}
    ds_write_b16 {t2}, {t1} offset:{w1}
    s_mov_b32 {A}, 0x{c:x}
    """.format(n=8 + 6 + 16, Wd=v(vWd), L2E=s(sL2E), t0=v(vT0), t1=v(vT1), t2=v(vT2), t3=v(vT3), tid=v(vTid),
               rs2=2 * RS, w0=L_WZ + 4 * RS, w1=L_WZ + 5 * RS, A=s(sA), c=f32(-LN2 * 2.0 ** -KEXP)))
    for t in range(4):
        a("v_lshlrev_b32 %s, 16, %s" % (v(WX + t), v(WX + t)))
        a("v_mul_f32 %s, %s, %s" % (v(WX + t), s(sA), v(WX + t)))
    a("""
    s_lshr_b32 {A}, s3, 2
    s_lshl_b32 {B}, {A}, 13
    s_add_u32 {B}, {B}, {LG}
    v_add_u32 {t0}, {B}, {aq0}
    v_xor_b32 {t1}, 32, {t0}
    s_and_b32 {E}, s3, 3
    s_lshl_b32 {D}, {E}, 11
    v_lshrrev_b32 {t4}, 5, {L}
    v_mul_u32_u24 {t2}, 48, {t4}
    v_xor_b32 {t2}, {t2}, {t0}
    v_add_u32 {t2}, {D}, {t2}
    v_xor_b32 {t3}, 16, {t2}
    v_add_u32 {aq0}, {GW}, {aq0}
    v_xor_b32 {aq1}, 32, {aq0}
    s_waitcnt lgkmcnt(0)
    s_barrier
    """.format(A=s(sA), B=s(sB), LG=L_G, t0=v(vT0), t1=v(vT1), t2=v(vT2), t3=v(vT3), t4=v(vT4), aq0=v(vAq0), aq1=v(vAq1),
               E=s(sE), D=s(sD8), L=v(vL), GW=s(sGW)))
    for ks in range(8):
        a("ds_read_b128 %s, %s offset:%d" % (v(HB + 4 * ks, 4), v(vT0 + (ks & 1)), (ks >> 1) * 2048))
    a("ds_read_b128 %s, %s" % (v(HR, 4), v(vT2)))
    a("ds_read_b128 %s, %s" % (v(HR + 4, 4), v(vT3)))
    a("""
    s_cbranch_vccz K2_NOMORE
    v_mov_b32 {t0}, 0
    v_mov_b32 {t1}, 1
    ds_write_b32 {t0}, {t1} offset:{fl}
    K2_NOMORE:
    v_and_b32 {t2}, 31, {L}
    s_lshl_b32 {A}, {A}, 5
    v_add_u32 {t2}, {A}, {t2}
    v_mul_u32_u24 {t2}, {rs}, {t2}
    v_lshl_add_u32 {t2}, {t4}, 5, {t2}
    s_lshl_b32 {E}, {E}, 6
    v_add_u32 {t2}, {E}, {t2}
    v_mov_b32 {t3}, 1
    """.format(t0=v(vT0), t1=v(vT1), t2=v(vT2), t3=v(vT3), t4=v(vT4), fl=L_FLAG, L=v(vL), A=s(sA), rs=RS, E=s(sE)))
    a("s_waitcnt vmcnt(%d) lgkmcnt(0)" % (6 + 8 - W1PRE + 16))
    for ks in range(W1PRE):
        a(mfma(EE, W1 + 4 * ks, HB + 4 * ks, None if ks == 0 else EE))
    a("s_waitcnt vmcnt(%d)" % (8 - W1PRE + 16))
    for q in range(12):
        if q == 8:
            a("s_or_b64 exec, %s, %s" % (s(sM + 16, 2), s(sM + 20, 2)), "s_cbranch_execz K2_H8")
        a("s_mov_b64 exec, %s" % s(sM + 2 * q, 2))
        a("v_lshrrev_b32 %s, 17, %s" % (v(RADDR + q), v(REC0 + 2 * q)))
        a("ds_add_rtn_u32 %s, %s, %s" % (v(RANK + q), v(RADDR + q), v(vT3)))
    a("K2_H8:", "s_mov_b64 exec, -1", "s_waitcnt vmcnt(16)")
    for ks in range(W1PRE, 8):
        a(mfma(EE, W1 + 4 * ks, HB + 4 * ks, None if ks == 0 else EE))
    a("""
    v_lshlrev_b32 {t0}, 2, {L}
    s_waitcnt lgkmcnt(0)
    s_barrier
    ds_read_b32 {t1}, {t0}
    s_waitcnt lgkmcnt(0)
    v_mov_b32 {incl}, {t1}
    """.format(t0=v(vT0), t1=v(vT1), L=v(vL), incl=v(vIncl)))
    scan64(a, vIncl)
    a("""
    v_sub_u32 {t1}, {incl}, {t1}
    v_readlane_b32 {TOT}, {incl}, 63
    """.format(t1=v(vT1), incl=v(vIncl), TOT=s(sTOTAL)))
    for q in range(8):
        a("ds_bpermute_b32 %s, %s, %s" % (v(RADDR + q), v(RADDR + q), v(vT1)))
    a("""
    s_cmp_gt_u32 {TOT}, {cap}
    s_cbranch_scc1 K2_OVERFLOW
    """.format(TOT=s(sTOTAL), cap=CAP))
    for i in range(8):
        a("v_pk_mul_f32 %s, %s, %s" % (v(EE + 2 * i, 2), v(EE + 2 * i, 2), s(sL2E, 2)))
    for i in range(8):
        a("v_cvt_pk_bf16_f32 %s, %s, %s" % (v(EE + i), v(EE + 2 * i), v(EE + 2 * i + 1)))
    a("s_waitcnt lgkmcnt(0)")
    for q in range(8):
        a("s_mov_b64 exec, %s" % s(sM + 2 * q, 2))
        a("v_add_lshl_u32 %s, %s, %s, 3" % (v(RADDR + q), v(RADDR + q), v(RANK + q)))
        a("ds_write_b64 %s, %s offset:%d" % (v(RADDR + q), v(REC0 + 2 * q, 2), L_REC))
    a("s_or_b64 exec, %s, %s" % (s(sM + 16, 2), s(sM + 20, 2)), "s_cbranch_execz K2_W8", "s_mov_b64 exec, -1")
    for q in range(8, 12):
        a("ds_bpermute_b32 %s, %s, %s" % (v(RADDR + q), v(RADDR + q), v(vT1)))
    a("s_waitcnt lgkmcnt(0)")
    for q in range(8, 12):
        a("s_mov_b64 exec, %s" % s(sM + 2 * q, 2))
        a("v_add_lshl_u32 %s, %s, %s, 3" % (v(RADDR + q), v(RADDR + q), v(RANK + q)))
        a("ds_write_b64 %s, %s offset:%d" % (v(RADDR + q), v(REC0 + 2 * q, 2), L_REC))
    a("""
    K2_W8:
    s_mov_b64 exec, -1
    ds_write_b128 {t2}, {e0} offset:{lp}
    ds_write_b128 {t2}, {e1} offset:{lp1}
    s_cmp_lg_u32 s3, 0
    s_cbranch_scc1 K2_NOSENT
    v_add_lshl_u32 {t0}, {L}, {TOT}, 3
    ds_write_b64 {t0}, {z} offset:{rec}
    K2_NOSENT:
    s_add_u32 {A}, {TOT}, 15
    s_lshr_b32 {A}, {A}, 4
    s_and_b32 {B}, {A}, 7
    s_lshr_b32 {A}, {A}, 3
    s_mul_i32 {P1}, s3, {A}
    s_min_u32 {E}, s3, {B}
    s_add_u32 {P1}, {P1}, {E}
    s_cmp_lt_u32 s3, {B}
    s_addc_u32 {END}, {P1}, {A}
    s_lshl_b32 {P1}, {P1}, 4
    s_lshl_b32 {END}, {END}, 4
    s_min_u32 {END}, {END}, {TOT}
    s_lshl_b32 {A}, {P1}, 3
    s_add_u32 {A}, {A}, {rec}
    v_lshrrev_b32 {idx}, 2, {L}
    v_lshl_add_u32 {idx}, {idx}, 3, {A}
    v_and_b32 {t0}, 31, {L}
    v_lshl_add_u32 {recv}, {t0}, 3, {A}
    v_lshlrev_b32 {t4}, 3, {t4}
    v_sub_u32 {t0}, {t0}, {t4}
    v_lshlrev_b32 {t0}, 4, {t0}
    v_add_u32 {t0}, {lutc}, {t0}
    s_cmp_ge_u32 {P1}, {END}
    s_cbranch_scc1 K2_EMPTY
    """.format(t0=v(vT0), t2=v(vT2), t4=v(vT4), e0=v(EE, 4), e1=v(EE + 4, 4), lp=L_P, lp1=L_P + 16, L=v(vL), TOT=s(sTOTAL),
               z=v(vZ, 2), rec=L_REC, A=s(sA), B=s(sB), P1=s(sP1), E=s(sE), END=s(sEND), idx=v(vIdx), recv=v(vRec),
               lutc=L_LUTC - 256))
    logic(a, "P")
    a("""
    s_mov_b32 {FLUSH}, 0
    s_waitcnt lgkmcnt(0)
    s_barrier
    ds_read2_b32 {tt4}, {idx} offset0:0 offset1:32
    ds_read_u16 {gp}, {recv}
    ds_read_u16 {vs}, {recv} offset:2
    v_add_u32 {idx}, {D8}, {idx}
    s_waitcnt lgkmcnt(1)
    """.format(FLUSH=s(sFLUSH), tt4=v(TT + 4, 2), idx=v(vIdx), gp=v(GP), recv=v(vRec), vs=v(vS), D8=s(sD8)))
    a(*perms())
    gather_pos(a)
    for slot in range(4):
        dma(a, slot)
    a("""
    ds_read2_b32 {tt4}, {idx} offset0:0 offset1:32
    ds_read_b128 {id0}, {t0} offset:256
    ds_read_b128 {id1}, {t0}
    s_waitcnt lgkmcnt(3)
    v_lshl_add_u32 {x}, {vs}, 1, {xb}
    v_add_u32 {vs}, {vs}, {sb}
    ds_read_b96 {tt}, {x}
    s_call_b64 {RET}, K2_B3LOAD
    s_waitcnt vmcnt(17)
    """.format(tt4=v(TT + 4, 2), idx=v(vIdx), id0=v(ID, 4), id1=v(ID + 4, 4), t0=v(vT0), x=v(vX), vs=v(vS), xb=v(vXb),
               sb=v(vSb), tt=v(TT, 3), RET=s(sRET, 2)))
    for ks in range(8):
        a(mfma(H1, WH1 + 4 * ks, HB + 4 * ks, None if ks == 0 else H1))
    for i in range(64):
        a("v_mov_b32 %s, 0" % v(ACC + i))
    for i in range(16):
        a("v_mov_b32 %s, 0" % v(D1 + i))
    for i in range(8):
        a("v_mov_b32 %s, 0" % v(A2 + i))
    for i in range(8):
        a("v_pk_mul_f32 %s, %s, %s" % (v(H1 + 2 * i, 2), v(H1 + 2 * i, 2), s(sL2E, 2)))
    a("s_waitcnt vmcnt(8) lgkmcnt(0)")
    a(*perms())
    a(*geom_a())
    a(*geom_b())
    a(*geom_c())
    a("s_nop 2")
    a(*geom_d())
    a3_reads(a)
    a("s_waitcnt vmcnt(6)")
    aq_read(a, 0)
    a("v_add_u32 %s, %s, %s" % (v(vRec), s(sD8), v(vRec)))
    srd_switch(a)
    a("s_waitcnt lgkmcnt(0)")
    dma(a, 0)
    a(mfma(D0, A3, B3, None), mfma(D0, AQ, ID, D0), mfma(D0, AQ + 4, ID + 4, D0))
    a("s_branch K2_DISPATCH")
    a(".p2align 6", "K2_LOOP:")
    step(a, False, opt)
    if opt.get("prio", 1):
        a("s_setprio 0")
    a("""
    K2_DISPATCH:
    s_mov_b32 {A}, {P1}
    s_mov_b32 {P1}, {P2}
    s_cmp_lt_u32 {P1}, {END}
    s_cbranch_scc1 K2_LOOP
    s_cmp_ge_u32 {A}, {END}
    s_cbranch_scc1 K2_TAILF
    s_sub_u32 {A}, {END}, {A}
    s_cmp_gt_u32 {A}, 16
    s_cbranch_scc1 K2_LOOP
    """.format(A=s(sA), P1=s(sP1), P2=s(sP2), END=s(sEND)))
    step(a, True, opt)
    a(*cvts(D1, 4))
    a("s_nop 1", mfma(ACC + 48, A2, PP, ACC + 48), "s_branch K2_FIN")
    a("K2_TAILF:")
    a(*cvts(D1, 8))
    a(mfma(ACC + 48, A2, PP, ACC + 48), "s_nop 0", mfma(ACC + 48, A2 + 4, PP + 4, ACC + 48))
    a("""
    K2_FIN:
    s_setprio 0
    s_mov_b32 {WBO}, {WB}
    s_mov_b32 {FLUSH}, 0
    s_nop 7
    s_call_b64 {RET}, K2_FLUSH
    s_branch K2_JOIN
    K2_EMPTY:
    s_waitcnt lgkmcnt(0)
    s_barrier
    s_waitcnt vmcnt(0)
    """.format(WBO=s(sWBO8), WB=s(sWB8), FLUSH=s(sFLUSH), RET=s(sRET, 2)))
    for ks in range(8):
        a(mfma(H1, WH1 + 4 * ks, HB + 4 * ks, None if ks == 0 else H1))
    a("s_nop 11")
    for i in range(8):
        a("v_pk_mul_f32 %s, %s, %s" % (v(H1 + 2 * i, 2), v(H1 + 2 * i, 2), s(sL2E, 2)))
    MB, HU = ACC, D0
    a("K2_JOIN:")
    for i in range(8):
        a("v_lshlrev_b32 %s, 16, %s" % (v(HU + 2 * i), v(HR + i)))
        a("v_and_b32 %s, 0xffff0000, %s" % (v(HU + 2 * i + 1), v(HR + i)))
    a("""
    v_and_b32 {L}, 63, {tid}
    v_and_b32 {t0}, 31, {L}
    v_lshrrev_b32 {t4}, 5, {L}
    v_mul_u32_u24 {t2}, 80, {t0}
    v_lshl_add_u32 {t2}, {t4}, 5, {t2}
    v_add_u32 {t2}, {GW}, {t2}
    s_lshr_b32 {A}, s3, 2
    s_lshl_b32 {A}, {A}, 5
    v_add_u32 {t0}, {A}, {t0}
    v_mul_u32_u24 {t0}, {rs}, {t0}
    v_lshl_add_u32 {t0}, {t4}, 4, {t0}
    v_lshrrev_b32 {t4}, 2, {L}
    v_and_b32 {t1}, 3, {L}
    v_mul_u32_u24 {t3}, 80, {t4}
    v_lshl_add_u32 {t3}, {t1}, 4, {t3}
    v_add_u32 {t3}, {GW}, {t3}
    v_lshlrev_b32 {t4}, 8, {t4}
    v_lshl_add_u32 {t4}, {t1}, 4, {t4}
    s_mul_i32 {B}, s2, {nb}
    s_add_u32 {A}, {A}, {B}
    s_lshl_b32 {A}, {A}, 8
    s_and_b32 {E}, s3, 3
    s_lshl_b32 {E}, {E}, 6
    s_add_u32 {A}, {A}, {E}
    v_add_u32 {t4}, {A}, {t4}
    v_add_u32 {x}, 4096, {t4}
    v_mov_b32 {t1}, 0
    v_and_b32 {vs}, 255, {tid}
    v_lshlrev_b32 {vs}, 2, {vs}
    s_waitcnt vmcnt(0) lgkmcnt(0)
    s_barrier
    ds_read_b64 {fl}, {t1} offset:{lf}
    """.format(L=v(vL), tid=v(vTid), t0=v(vT0), t1=v(vT1), t2=v(vT2), t3=v(vT3), t4=v(vT4), GW=s(sGW), A=s(sA), B=s(sB),
               E=s(sE), rs=RS, nb=NB, x=v(vX), vs=v(vS), fl=v(GP, 2), lf=L_FLAG))
    for ks in range(8):
        a("ds_read_b128 %s, %s offset:%d" % (v(MB + 4 * ks, 4), v(vT0), L_M + ks * 32))
    a("""
    ds_read_b32 {u}, {vs} offset:{lu}
    ds_read_b32 {p}, {vs} offset:{lp}
    s_waitcnt lgkmcnt(10)
    v_readfirstlane_b32 {A}, {f0}
    v_readfirstlane_b32 {E}, {f1}
    s_nop 0
    s_andn2_b32 {E}, {E}, {SAFE}
    s_or_b32 {A}, {A}, {E}
    s_cbranch_scc1 K2_AGAIN
    """.format(u=v(TT), p=v(TT + 1), vs=v(vS), lu=L_U, lp=L_POSD, A=s(sA), E=s(sE), f0=v(GP), f1=v(GP + 1), SAFE=s(sSAFE)))
    for ks in range(8):
        a("s_waitcnt lgkmcnt(%d)" % (9 - ks))
        a(mfma(H1, WH2 + 4 * ks, MB + 4 * ks, H1))
    a("""
    s_waitcnt lgkmcnt(0)
    s_cmp_lt_u32 s3, 4
    s_cbranch_scc1 K2_NOPOS
    v_add_f32 {u}, {u}, {p}
    v_cvt_pk_bf16_f32 {u}, {u}, {u}
    v_lshrrev_b32 {p}, 4, {vs}
    v_add_u32 {p}, {B}, {p}
    s_lshr_b32 {A}, {U2}, 8
    v_cmp_gt_u32 vcc, {A}, {p}
    v_mul_u32_u24 {p}, 6, {p}
    v_bfe_u32 {vs}, {vs}, 2, 2
    v_lshl_add_u32 {p}, {vs}, 1, {p}
    v_add_u32 {p}, {off}, {p}
    s_mov_b32 {A}, 0x77777777
    s_and_b32 exec_lo, vcc_lo, {A}
    s_and_b32 exec_hi, vcc_hi, {A}
    s_cbranch_execz K2_NOPOS
    global_store_short {p}, {u}, s[20:21]
    K2_NOPOS:
    s_mov_b64 exec, -1
    s_mov_b32 {A}, 0x{c:x}
    s_mov_b32 {B}, 0x{c:x}
    s_nop 8
    """.format(u=v(TT), p=v(TT + 1), vs=v(vS), B=s(sB), A=s(sA), U2=s(sOUT + 2), off=N * 256, c=f32(-LN2)))
    assert sA % 2 == 0 and sB == sA + 1
    for i in range(16):
        a("v_exp_f32 %s, %s" % (v(EE + i), v(H1 + i)))
    for i in range(8):
        a("v_pk_add_f32 %s, %s, 1.0 op_sel_hi:[1,0]" % (v(EE + 2 * i, 2), v(EE + 2 * i, 2)))
    for i in range(16):
        a("v_rcp_f32 %s, %s" % (v(EE + i), v(EE + i)))
    for i in range(8):
        a("v_pk_mul_f32 %s, %s, %s" % (v(EE + 2 * i, 2), v(EE + 2 * i, 2), v(H1 + 2 * i, 2)))
    for i in range(8):
        a("v_pk_fma_f32 %s, %s, %s, %s" % (v(EE + 2 * i, 2), v(EE + 2 * i, 2), s(sA, 2), v(HU + 2 * i, 2)))
    a(*cvts(EE, 8))
    a("""
    ds_write_b128 {t2}, {p0}
    ds_write_b128 {t2}, {p1} offset:16
    ds_read_b128 {e0}, {t3}
    ds_read_b128 {e1}, {t3} offset:1280
    s_waitcnt lgkmcnt(1)
    buffer_store_dwordx4 {e0}, {t4}, {OUT}, 0 offen
    s_waitcnt lgkmcnt(0)
    buffer_store_dwordx4 {e1}, {x}, {OUT}, 0 offen
    K2_END:
    s_endpgm
    """.format(t2=v(vT2), t3=v(vT3), t4=v(vT4), x=v(vX), p0=v(PP, 4), p1=v(PP + 4, 4), e0=v(EE, 4), e1=v(EE + 4, 4),
               OUT=s(sOUT, 4)))
    a("""
    K2_AGAIN:
    s_add_u32 {O}, {O}, {QUOTA}
    s_mov_b32 {FIRST}, 0
    s_cmp_eq_u32 {E}, 0
    s_cbranch_scc1 K2_AGAIN2
    s_mov_b32 {SAFE}, 1
    s_mov_b32 {O}, 0
    s_mov_b32 {FIRST}, 1
    K2_AGAIN2:
    s_waitcnt vmcnt(0) lgkmcnt(0)
    s_barrier
    s_branch K2_ROUND
    K2_OVERFLOW:
    s_mov_b32 {QUOTA}, 7
    s_branch K2_AGAIN2
    """.format(O=s(sO), QUOTA=s(sQUOTA), FIRST=s(sFIRST), E=s(sE), SAFE=s(sSAFE)))
    a("""
    K2_REBASE:
    s_cmp_eq_u32 {REP}, 0
    s_cselect_b32 {A}, {P1}, {WEND}
    v_cmp_ge_u32 vcc, {A}, {incl}
    s_mov_b32 {WBO}, {WB}
    s_mov_b32 {FLUSH}, 1
    s_mov_b32 {REB}, 1
    s_nop 1
    s_bcnt1_i32_b64 {B}, vcc
    s_lshl_b32 {WB}, {B}, 3
    s_add_u32 {B}, {B}, 7
    s_nop 3
    v_readlane_b32 {WEND}, {incl}, {B}
    s_sub_u32 {B}, {WBO}, {WB}
    v_add_u32 {sb}, {B}, {sb}
    s_mov_b32 exec_lo, 0
    s_lshl_b32 {D8}, {B}, 1
    v_add_u32 {xb}, {D8}, {xb}
    s_mul_i32 {D8}, {B}, -34
    v_add_u32 {b3}, {D8}, {b3}
    s_mov_b32 exec_lo, -1
    s_min_u32 {B}, {E}, {WEND}
    s_sub_u32 {B}, {B}, {A}
    s_sub_u32 {A}, {A}, {P1}
    s_bfm_b64 {MASK}, {B}, {A}
    s_cmp_gt_u32 {E}, {WEND}
    s_cselect_b32 {REP}, 1, 0
    s_cselect_b32 {P2}, {P1}, {P2}
    s_setpc_b64 {RET}
    K2_B3LOAD:
    """.format(REP=s(sREP), A=s(sA), P1=s(sP1), WEND=s(sWEND), incl=v(vIncl), WBO=s(sWBO8), WB=s(sWB8), FLUSH=s(sFLUSH),
               REB=s(sREB), B=s(sB), sb=v(vSb), D8=s(sD8), xb=v(vXb), b3=v(vB3), E=s(sE), MASK=s(sMASK, 2), P2=s(sP2),
               RET=s(sRET, 2)))
    for t in range(4):
        for jj in range(2):
            a("ds_read_b64_tr_b16 %s, %s offset:%d" % (v(B3 + 4 * t + 2 * jj, 2), v(vB3), jj * 4 * RS + t * 64))
    a("s_mov_b32 %s, 0" % s(sREB), "s_setpc_b64 %s" % s(sRET, 2))
    for par, D in ((0, D0), (1, D1)):
        a("K2_CLAMP%d:" % par, "s_nop 11")
        for i in range(16):
            a("v_min_f32 %s, 0x%x, %s" % (v(D + i), f32(126.0), v(D + i)))
        a("s_setpc_b64 %s" % s(sRET, 2))
    a("""
    K2_FLUSH:
    v_and_b32 {t0}, 31, {tid}
    v_bfe_u32 {t1}, {tid}, 5, 1
    s_lshr_b32 {A}, {WBO}, 3
    v_add_u32 {t1}, {A}, {t1}
    v_mul_u32_u24 {t2}, {rs}, {t1}
    v_lshl_add_u32 {t2}, {t0}, 2, {t2}
    v_bfe_u32 {t0}, {tid}, 2, 2
    v_lshl_add_u32 {t1}, {t0}, 1, {t1}
    v_lshlrev_b32 {t1}, 4, {t1}
    """.format(t0=v(vT0), t1=v(vT1), t2=v(vT2), tid=v(vTid), A=s(sA), WBO=s(sWBO8), rs=RS))
    for p in range(2):
        for g in range(4):
            a("v_cvt_pk_bf16_f32 %s, %s, %s" % (v(PP + 4 * p + g), v(ACC + 32 * p + 4 * g + 3), v(ACC + 32 * p + 16 + 4 * g + 3)))
            a("ds_pk_add_bf16 %s, %s offset:%d" % (v(vT2), v(PP + 4 * p + g), L_M + 2 * g * RS + 128 * p))
    for t in range(4):
        wp = v(WX + (t & 2), 2)
        b = t & 1
        for g in range(4):
            e, ac = EE + 4 * g, ACC + 16 * t + 4 * g
            if t == 0:
                a("v_pk_mul_f32 %s, %s, %s op_sel:[0,%d] op_sel_hi:[1,%d]" % (v(e, 2), v(ac, 2), wp, b, b))
                a("v_mul_f32 %s, %s, %s" % (v(e + 2), v(ac + 2), v(WX + t)))
            else:
                a("v_pk_fma_f32 %s, %s, %s, %s op_sel:[0,%d,0] op_sel_hi:[1,%d,1]" % (v(e, 2), v(ac, 2), wp, v(e, 2), b, b))
                a("v_fmac_f32 %s, %s, %s" % (v(e + 2), v(ac + 2), v(WX + t)))
    a("s_nop 0")
    for g in range(4):
        for c in range(3):
            dst = TT + (g & 1) * 3 + c
            a("v_add_f32_dpp %s, %s, %s row_ror:8 row_mask:0xf bank_mask:%s" % (v(dst), v(EE + 4 * g + c), v(EE + 4 * g + c), "0x3" if g < 2 else "0xc"))
    for c in range(3):
        a("v_add_f32_dpp %s, %s, %s row_shl:4 row_mask:0xf bank_mask:0x5" % (v(EE + c), v(TT + c), v(TT + c)))
    for c in range(3):
        a("v_add_f32_dpp %s, %s, %s row_shr:4 row_mask:0xf bank_mask:0xa" % (v(EE + c), v(TT + 3 + c), v(TT + 3 + c)))
    a("v_cmp_u_f32 vcc, %s, %s" % (v(EE), v(EE)))
    for c in range(3):
        a("ds_add_f32 %s, %s offset:%d" % (v(vT1), v(EE + c), L_U + 4 * c))
    a("""
    s_nop 1
    s_cbranch_vccz K2_FL1
    v_mov_b32 {t0}, 0
    v_mov_b32 {t1}, 1
    ds_write_b32 {t0}, {t1} offset:{fl}
    K2_FL1:
    s_cmp_eq_u32 {FLUSH}, 0
    s_cbranch_scc1 K2_FL2
    """.format(t0=v(vT0), t1=v(vT1), fl=L_FLAG + 4, FLUSH=s(sFLUSH)))
    for i in range(64):
        a("v_mov_b32 %s, 0" % v(ACC + i))
    a("""
    s_mov_b32 {FLUSH}, 0
    s_waitcnt lgkmcnt(0)
    K2_FL2:
    s_setpc_b64 {RET}
    """.format(FLUSH=s(sFLUSH), RET=s(sRET, 2)))


def kd(name, vgpr, sgpr):
    return """
.amdhsa_kernel %s
  .amdhsa_next_free_vgpr %d
  .amdhsa_next_free_sgpr %d
  .amdhsa_accum_offset %d
  .amdhsa_group_segment_fixed_size 0
  .amdhsa_kernarg_size 88
  .amdhsa_user_sgpr_count 2
  .amdhsa_user_sgpr_kernarg_segment_ptr 1
  .amdhsa_system_sgpr_workgroup_id_x 1
  .amdhsa_float_denorm_mode_32 3
.end_amdhsa_kernel
""" % (name, vgpr, sgpr, (vgpr + 3) // 4 * 4)


def generate(opt):
    ref = open("cdna_kernels/%s.s.ref" % NAME).read().split("\n")
    head = []
    for ln in ref:
        if ln.startswith("; Override launch") or "@launch" in ln or ln.startswith("; grid=ceil"):
            continue
        if not ln.startswith(";"):
            break
        head.append(ln)
    out = "\n".join(head) + "\n"
    out += "; @launch kernel=prep_kernel grid=(%d,1,1) block=(512,1,1) lds=%d\n" % (NCH + NGEMM, K1_LDS)
    out += "; @launch kernel=main_kernel grid=(256,1,1) block=(512,1,1) lds=%d\n" % K2_LDS
    out += '.amdgcn_target "amdgcn-amd-amdhsa--gfx950"\n.text\n'
    for name, g in (("prep_kernel", gen_k1), ("main_kernel", gen_k2)):
        a = Asm()
        g(a, opt)
        out += ".globl %s\n.p2align 8\n.type %s,@function\n" % (name, name) + a.text()
    out += '.section .rodata,"a"\n.p2align 6\n'
    out += kd("prep_kernel", 96, 40).lstrip("\n")
    out += ".p2align 6\n"
    out += kd("main_kernel", 256, 96).lstrip("\n")
    return out


if __name__ == "__main__":
    opt = {}
    path = "cdna_kernels/%s.s" % NAME
    for arg in sys.argv[1:]:
        if "=" in arg:
            k, val = arg.split("=", 1)
            try:
                val = int(val)
            except ValueError:
                pass
            opt[k] = val
        else:
            path = arg
    open(path, "w").write(generate(opt))
    print("wrote", path, "K2_LDS", K2_LDS, "L_G", L_G, "L_REC", L_REC, "L_S", L_S)
```

```python
import sys, struct, re

NAME = "gather_scatter__cheap_equivariant_egnn__graph"
N, E, NB = 12500, 400000, 49
NCH, CH = 250, 1600
NQ = 12544
WS_Q, WS_REC, WS_T, WS_POS, WS_WF, WS_DBG = 0, 0x400000, 0x800000, 0x900000, 0xA00000, 0xC00000
TSTRIDE = 1152
LOG2E = 1.4426950408889634
LN2 = 0.6931471805599453
KEXP = 30


def f32(x):
    return struct.unpack("<I", struct.pack("<f", x))[0]


def v(a, n=1):
    return "v%d" % a if n == 1 else "v[%d:%d]" % (a, a + n - 1)


def s(a, n=1):
    return "s%d" % a if n == 1 else "s[%d:%d]" % (a, a + n - 1)


L_CNT, L_FLAG, L_WZ, L_LUT = 0, 256, 960, 3136
L_LUTC = L_LUT + 64 * 16
L_POSD, L_U = 5184, 6208
RS = 272
L_M = L_U + 8192
L_P = L_M + 56 * RS
CAP = 1792
L_REC = L_P + 64 * RS
L_S = L_REC + (CAP + 64) * 8
SW = 32 * 72
L_H = (L_S + 8 * SW + 1023) // 1024 * 1024
L_G = L_H + 16384
K2_LDS = L_G + 65536
K1_LDS = 49152 + 8 * 2560

VR = dict(ACC=0, D0=64, D1=80, EE=96, TT=112, PP=120, AQ=128, ID=136, B3=144, A3=160, A2=164,
          W1=172, WA=204, L=206, Ch=207, Ta=208, Tb=209, Wd=210, Hh=211, Pw=212, Ida=213, Z=216,
          CONT=224, WX=228, GP=232, ST=235,
          Aq0=236, Aq1=237, DA=238, Idx=240, Rec=241, X=242, S=243, Xb=244, Sb=245, A2a=246, B3a=247,
          Incl=248, Tid=249, Aqb=250, T0=251, T1=252, T2=253, T3=254, T4=255,
          REC0=112, RADDR=136, RANK=148, HB=64,
          MB=0, WH2=32, WH1=172, H1=204, G2=96, HR=128, HU=144)
SR = dict(Q=24, POS=28, T=32, H=36, OUT=40, K=44, L2E=46, SEL=48,
          O=49, QUOTA=50, SAFE=51, FIRST=52, TOTAL=53, END=54, P1=55, P2=56, WB8=57, WBO8=58, WEND=59,
          MASK=60, FLUSH=62, REB=63, GW=64, REP=65, D8=66, E=67, A=68, B=69, RET=70, M=72,
          ATOM=96, FM=72, CONTC=80, CONTO=81, RE=82, RUN1=83, CN=84, BK=97)
globals().update({k: x for k, x in VR.items() if k in ("ACC", "D0", "D1", "EE", "TT", "PP", "AQ", "ID", "B3", "A3", "A2")})

TOK = re.compile(r"([@$])([A-Za-z][A-Za-z0-9]*)(?:\+(\d+))?(?::(\d+))?")
EXP = re.compile(r"#\(([^()]*(?:\([^()]*\)[^()]*)*)\)")


def sub(line):
    def r(m):
        base = (VR if m.group(1) == "@" else SR)[m.group(2)] + int(m.group(3) or 0)
        return (v if m.group(1) == "@" else s)(base, int(m.group(4) or 1))

    def e(m):
        x = eval(m.group(1), globals())
        return str(x) if x < 65536 else hex(x)
    return TOK.sub(r, EXP.sub(e, line))


class Asm:
    def __init__(self):
        self.l = []

    def __call__(self, *lines):
        for x in lines:
            for y in x.strip("\n").split("\n"):
                y = y.strip()
                if not y:
                    continue
                y = sub(y)
                self.l.append(y if y.endswith(":") else "    " + y)

    def text(self):
        return "\n".join(self.l) + "\n"


MF = "v_mfma_f32_32x32x16_bf16"


def mfma(d, a, b, c):
    return "%s %s, %s, %s, %s" % (MF, v(d, 16), v(a, 4), v(b, 4), "0" if c is None else v(c, 16))


def stamp(a, opt, idx, reg, real=False):
    if not opt.get("stamps"):
        return
    a("s_waitcnt lgkmcnt(0)", "%s s[98:99]" % ("s_memrealtime" if real else "s_memtime"), "s_waitcnt lgkmcnt(0)",
      "v_writelane_b32 %s, s98, %d" % (v(reg), idx))


def stamp_store(a, opt, reg, tmp, tid, base, wg, extra):
    if not opt.get("stamps"):
        return
    a("s_waitcnt vmcnt(0)",
      "s_getreg_b32 s98, hwreg(HW_REG_HW_ID)", "v_writelane_b32 %s, s98, 44" % v(reg),
      "s_getreg_b32 s98, hwreg(HW_REG_XCC_ID)", "v_writelane_b32 %s, s98, 45" % v(reg))
    stamp(a, opt, 14, reg)
    stamp(a, opt, 15, reg, True)
    a("""
    s_mov_b64 exec, -1
    s_lshl_b32 s98, %s, 11
    s_add_u32 s98, s98, %d
    v_lshl_add_u32 %s, %s, 2, s98
    global_store_dword %s, %s, %s
    """ % (wg, WS_DBG + extra, v(tmp), v(tid), v(tmp), v(reg), base))


def scan64(a, r):
    for sh in (1, 2, 4, 8):
        a("s_nop 1", "v_add_u32_dpp %s, %s, %s row_shr:%d row_mask:0xf bank_mask:0xf" % (v(r), v(r), v(r), sh))
    a("s_nop 1", "v_add_u32_dpp %s, %s, %s row_bcast:15 row_mask:0xa bank_mask:0xf" % (v(r), v(r), v(r)))
    a("s_nop 1", "v_add_u32_dpp %s, %s, %s row_bcast:31 row_mask:0xc bank_mask:0xf" % (v(r), v(r), v(r)))


K1_GRID = 456


def gen_k1(a, opt):
    st = opt.get("k1_store", "").replace("+", " ")
    STV = 100

    def fin():
        stamp(a, opt, 13, STV)
        stamp_store(a, opt, STV, 101, 0, "s[20:21]", "s38", 0x100000)
        a("s_endpgm")
    a("""
    prep_kernel:
    s_cmp_ge_u32 s2, #(K1_GRID)
    s_cbranch_scc1 K1_END
    s_load_dwordx16 s[4:19], s[0:1], 0
    s_load_dwordx2 s[20:21], s[0:1], 80
    v_lshrrev_b32 v1, 6, v0
    v_and_b32 v2, 63, v0
    v_readfirstlane_b32 s3, v1
    """)
    if opt.get("stamps"):
        a("s_mov_b32 s38, s2")
        stamp(a, opt, 0, STV, True)
        stamp(a, opt, 1, STV)
    if opt.get("gemm_first"):
        a("""
        s_cmp_lt_u32 s2, 200
        s_cbranch_scc1 K1_GEMM
        s_sub_u32 s2, s2, 200
        """)
    else:
        a("""
        s_cmp_ge_u32 s2, 256
        s_cbranch_scc1 K1_GEMM
        """)
    a("""
    s_cmp_ge_u32 s2, #(NCH)
    s_cbranch_scc1 K1_END
    s_cmp_eq_u32 s3, 7
    s_cbranch_scc1 K1_EXTRA
    """)
    a("""
    v_lshlrev_b32 v3, 2, v0
    v_mov_b32 v4, 0
    ds_write_b32 v3, v4
    v_cmp_gt_u32 vcc, 400, v0
    s_mul_i32 s24, s2, #(CH*4)
    v_lshl_add_u32 v4, v0, 4, s24
    v_lshrrev_b32 v5, 1, v4
    s_mov_b64 s[22:23], vcc
    s_waitcnt lgkmcnt(0)
    s_mov_b64 exec, s[22:23]
    global_load_dwordx4 v[8:11], v4, s[12:13]
    global_load_dwordx4 v[12:15], v4, s[10:11]
    global_load_dwordx2 v[16:17], v5, s[8:9]
    s_mov_b32 s25, -49
    s_mov_b32 s26, 0x01000100
    s_mov_b32 s27, 0x03020302
    v_mov_b32 v6, 1
    s_barrier
    s_waitcnt vmcnt(2)
    """)
    stamp(a, opt, 2, STV)
    for k in range(4):
        a("v_mul_u32_u24 %s, 21400, %s" % (v(28 + k), v(8 + k)))
        a("v_lshrrev_b32 %s, 20, %s" % (v(28 + k), v(28 + k)))
        a("v_mad_i32_i24 %s, %s, s25, %s" % (v(8 + k), v(28 + k), v(8 + k)))
        a("v_lshlrev_b32 %s, 2, %s" % (v(28 + k), v(28 + k)))
        a("ds_add_rtn_u32 %s, %s, v6" % (v(32 + k), v(28 + k)))
    a("""
    s_mov_b64 exec, -1
    v_lshlrev_b32 v3, 4, v2
    s_waitcnt lgkmcnt(0)
    s_barrier
    ds_read_b128 v[36:39], v3
    s_waitcnt lgkmcnt(0)
    """)
    stamp(a, opt, 3, STV)
    a("""
    v_add_u32 v40, v36, v37
    v_add3_u32 v40, v40, v38, v39
    v_mov_b32 v41, v40
    """)
    scan64(a, 41)
    a("""
    v_sub_u32 v40, v41, v40
    v_add_u32 v41, v40, v36
    v_add_u32 v42, v41, v37
    v_add_u32 v43, v42, v38
    ds_write_b128 v3, v[40:43] offset:1024
    s_mov_b64 exec, s[22:23]
    """)
    for k in range(4):
        a("ds_read_b32 %s, %s offset:1024" % (v(28 + k), v(28 + k)))
    a("s_waitcnt vmcnt(0)")
    for k in range(4):
        a("v_lshl_or_b32 %s, %s, 19, %s" % (v(20 + 2 * k), v(8 + k), v(12 + k)))
        a("v_perm_b32 %s, %s, %s, %s" % (v(21 + 2 * k), v(16 + k // 2), v(16 + k // 2), s(26 + (k & 1))))
    for k in range(4):
        a("s_waitcnt lgkmcnt(3)")
        a("v_add_lshl_u32 %s, %s, %s, 3" % (v(28 + k), v(28 + k), v(32 + k)))
        a("ds_write_b64 %s, %s offset:2048" % (v(28 + k), v(20 + 2 * k, 2)))
    a("""
    s_cmp_lg_u32 s3, 6
    s_cbranch_scc1 K1_NOT
    s_mov_b64 exec, -1
    v_lshl_or_b32 v36, v36, 16, v40
    v_lshl_or_b32 v37, v37, 16, v41
    v_lshl_or_b32 v38, v38, 16, v42
    v_lshl_or_b32 v39, v39, 16, v43
    s_mul_i32 s24, s2, #(TSTRIDE)
    s_add_u32 s24, s24, #(WS_T)
    v_add_u32 v3, s24, v3
    global_store_dwordx4 v3, v[36:39], s[20:21] %s
    s_mov_b64 exec, s[22:23]
    K1_NOT:
    v_lshlrev_b32 v3, 4, v0
    s_mul_i32 s24, s2, #(CH*8)
    s_add_u32 s24, s24, #(WS_REC)
    v_add_u32 v4, s24, v3
    v_add_u32 v5, 6400, v4
    s_waitcnt lgkmcnt(0)
    s_barrier
    ds_read_b128 v[12:15], v3 offset:2048
    ds_read_b128 v[16:19], v3 offset:#(2048+6400)
    s_waitcnt lgkmcnt(1)
    global_store_dwordx4 v4, v[12:15], s[20:21] %s
    s_waitcnt lgkmcnt(0)
    global_store_dwordx4 v5, v[16:19], s[20:21] %s
    """ % (st, st, st))
    fin()
    a("""
    K1_EXTRA:
    s_mul_i32 s24, s2, 50
    v_add_u32 v3, s24, v2
    v_mul_u32_u24 v4, 6, v3
    v_lshlrev_b32 v3, 4, v3
    v_add_u32 v3, #(WS_POS), v3
    s_waitcnt lgkmcnt(0)
    s_bfm_b64 exec, 50, 0
    global_load_ushort v8, v4, s[6:7]
    global_load_ushort v9, v4, s[6:7] offset:2
    global_load_ushort v10, v4, s[6:7] offset:4
    s_mov_b64 exec, -1
    s_barrier
    s_cmp_ge_u32 s2, 96
    s_cbranch_scc1 K1_XPOS
    s_cmp_ge_u32 s2, 32
    s_cbranch_scc1 K1_XWH
    v_and_b32 v5, 3, v2
    v_bfe_u32 v6, v2, 3, 2
    v_lshl_add_u32 v5, v6, 2, v5
    v_bfe_u32 v6, v2, 2, 1
    v_lshl_add_u32 v5, v6, 4, v5
    s_lshr_b32 s24, s2, 3
    s_lshl_b32 s24, s24, 5
    v_add_lshl_u32 v5, v5, s24, 1
    v_lshrrev_b32 v6, 5, v2
    s_and_b32 s25, s2, 7
    s_lshl_b32 s25, s25, 12
    v_lshl_add_u32 v5, v6, 11, v5
    v_add_u32 v5, s25, v5
    """)
    for j in range(8):
        a("global_load_ushort %s, v5, s[14:15] offset:%d" % (v(12 + j), j * 256))
    a("""
    s_lshl_b32 s24, s2, 10
    s_add_u32 s24, s24, #(WS_WF)
    v_lshl_add_u32 v7, v2, 4, s24
    s_branch K1_XWST
    K1_XWH:
    s_sub_u32 s24, s2, 32
    s_bfe_u32 s25, s24, 0x20003
    s_lshl_b32 s25, s25, 5
    s_and_b32 s26, s24, 1
    s_lshl_b32 s26, s26, 4
    s_add_u32 s25, s25, s26
    s_bfe_u32 s26, s24, 0x20001
    s_lshl_b32 s26, s26, 2
    s_add_u32 s25, s25, s26
    v_and_b32 v6, 3, v2
    v_add_lshl_u32 v5, v6, s25, 1
    v_lshrrev_b32 v4, 2, v2
    v_lshlrev_b32 v7, 4, v4
    v_lshl_add_u32 v7, v6, 8, v7
    s_lshl_b32 s24, s24, 10
    s_add_u32 s24, s24, #(WS_Q+NQ*256)
    v_add_u32 v7, s24, v7
    s_cmp_ge_u32 s2, 64
    s_cbranch_scc1 K1_XW2
    v_lshl_add_u32 v5, v4, 11, v5
    """)
    for j in range(8):
        a("global_load_ushort %s, v5, s[18:19] offset:%d" % (v(12 + j), j * 256))
    a("""
    s_branch K1_XWST
    K1_XW2:
    v_and_b32 v6, 7, v4
    v_lshl_add_u32 v5, v6, 10, v5
    v_lshrrev_b32 v6, 3, v4
    v_lshl_add_u32 v5, v6, 14, v5
    v_add_u32 v5, 32768, v5
    v_add_u32 v6, 8192, v5
    """)
    for j in range(8):
        a("global_load_ushort %s, %s, s[18:19] offset:%d" % (v(12 + j), v(5 + (j & 1)), (j >> 1) * 256))
    a("""
    K1_XWST:
    s_barrier
    s_waitcnt vmcnt(0)
    v_lshl_or_b32 v12, v13, 16, v12
    v_lshl_or_b32 v13, v15, 16, v14
    v_lshl_or_b32 v14, v17, 16, v16
    v_lshl_or_b32 v15, v19, 16, v18
    global_store_dwordx4 v7, v[12:15], s[20:21] %s
    s_branch K1_XP2
    K1_XPOS:
    s_barrier
    s_waitcnt vmcnt(0)
    K1_XP2:
    s_bfm_b64 exec, 50, 0
    v_lshlrev_b32 v8, 16, v8
    v_lshlrev_b32 v9, 16, v9
    v_lshlrev_b32 v10, 16, v10
    v_mov_b32 v11, 0
    global_store_dwordx4 v3, v[8:11], s[20:21] %s
    s_barrier
    """ % (st, st))
    fin()
    a("K1_GEMM:")
    if not opt.get("gemm_first"):
        a("s_sub_u32 s2, s2, 256")
    a("""
    s_and_b32 s22, s2, 7
    s_lshr_b32 s39, s2, 3
    s_mul_i32 s2, s22, 49
    s_lshl_b32 s22, s39, 1
    s_add_u32 s2, s2, s22
    v_lshrrev_b32 v3, 4, v2
    v_lshlrev_b32 v4, 2, v3
    v_and_b32 v5, 15, v2
    v_xor_b32 v4, v4, v5
    v_lshlrev_b32 v4, 4, v4
    v_lshl_add_u32 v4, v3, 8, v4
    s_lshl_b32 s22, s3, 12
    s_add_u32 s23, s22, 32768
    v_and_b32 v5, 3, v2
    v_xor_b32 v5, v5, v3
    v_lshlrev_b32 v5, 4, v5
    v_lshrrev_b32 v6, 2, v2
    v_lshl_add_u32 v5, v6, 8, v5
    s_lshr_b32 s24, s3, 1
    s_lshl_b32 s25, s2, 1
    s_add_u32 s25, s25, s24
    s_lshl_b32 s25, s25, 12
    s_and_b32 s26, s3, 1
    s_lshl_b32 s27, s26, 7
    s_add_u32 s25, s25, s27
    s_lshr_b32 s27, s3, 2
    s_lshl_b32 s27, s27, 13
    s_lshl_b32 s26, s26, 12
    s_add_u32 s27, s27, s26
    s_and_b32 s24, s24, 1
    s_lshl_b32 s24, s24, 10
    s_add_u32 s27, s27, s24
    s_add_u32 s27, s27, 32768
    s_waitcnt lgkmcnt(0)
    s_mov_b32 s28, s4
    s_mov_b32 s29, s5
    s_mov_b32 s30, #(N*256)
    s_mov_b32 s31, 0x20000
    s_mov_b32 s32, s14
    s_mov_b32 s33, s15
    s_mov_b32 s34, #(258*256)
    s_mov_b32 s35, 0x20000
    s_mov_b32 m0, s27
    v_add_u32 v5, s25, v5
    buffer_load_dwordx4 v5, s[28:31], 0 offen lds
    s_add_u32 m0, s27, #(2048-64)
    s_nop 0
    buffer_load_dwordx4 v5, s[28:31], 0 offen offset:64 lds
    s_mov_b32 m0, s22
    s_nop 0
    """)
    for i in range(4):
        a("buffer_load_dwordx4 v4, s[32:35], s23 offen offset:%d lds" % (i * 1024))
    a("""
    s_and_b32 s24, s3, 3
    s_lshr_b32 s26, s3, 2
    v_bfe_u32 v6, v2, 2, 2
    v_xor_b32 v7, s24, v6
    v_lshlrev_b32 v7, 6, v7
    v_lshl_add_u32 v7, v6, 8, v7
    v_lshrrev_b32 v8, 5, v2
    v_lshl_add_u32 v7, v8, 11, v7
    v_and_b32 v9, 1, v2
    v_lshl_add_u32 v7, v9, 5, v7
    v_bfe_u32 v9, v2, 4, 1
    v_lshl_add_u32 v7, v9, 4, v7
    v_bfe_u32 v10, v2, 1, 1
    v_lshl_add_u32 v7, v10, 3, v7
    v_xor_b32 v6, v6, v8
    v_lshlrev_b32 v6, 4, v6
    v_and_b32 v10, 15, v2
    v_lshl_add_u32 v6, v10, 6, v6
    v_lshl_add_u32 v6, v9, 10, v6
    s_lshl_b32 s27, s26, 13
    s_add_u32 s27, s27, 32768
    v_add_u32 v6, s27, v6
    v_xor_b32 v11, 32, v6
    s_mul_i32 s27, s3, 2560
    s_add_u32 s27, s27, 49152
    v_and_b32 v10, 31, v2
    v_mul_u32_u24 v12, 80, v10
    v_lshl_add_u32 v12, v8, 5, v12
    v_add_u32 v12, s27, v12
    v_lshrrev_b32 v10, 2, v2
    v_mul_u32_u24 v13, 80, v10
    v_and_b32 v9, 3, v2
    v_lshl_add_u32 v13, v9, 4, v13
    v_add_u32 v13, s27, v13
    v_lshlrev_b32 v14, 8, v10
    v_lshl_add_u32 v14, v9, 4, v14
    s_add_u32 s25, s2, s26
    s_lshl_b32 s25, s25, 13
    s_lshl_b32 s24, s24, 6
    s_add_u32 s25, s25, s24
    v_add_u32 v14, s25, v14
    v_add_u32 v15, 4096, v14
    s_mov_b32 s36, #(f32(-LOG2E))
    s_mov_b32 s37, s36
    s_lshl_b32 s39, s39, 1
    s_add_u32 s39, s39, s26
    s_waitcnt vmcnt(0)
    s_barrier
    s_cmp_ge_u32 s39, 49
    s_cbranch_scc1 K1_GEND
    """)
    stamp(a, opt, 2, STV)
    A0, B0, DD = 32, 64, 16

    def rd(ks):
        a("ds_read_b64_tr_b16 %s, v7 offset:%d" % (v(A0 + 4 * ks, 2), ks * 4096))
        a("ds_read_b64_tr_b16 %s, v7 offset:%d" % (v(A0 + 4 * ks + 2, 2), ks * 4096 + 1024))
        a("ds_read_b128 %s, %s offset:%d" % (v(B0 + 4 * ks, 4), "v11" if ks & 1 else "v6", (ks >> 1) * 2048))
    for ks in range(4):
        rd(ks)
    for ks in range(8):
        if ks + 4 < 8:
            rd(ks + 4)
        a("s_waitcnt lgkmcnt(%d)" % (3 * min(4, 7 - ks)))
        a(mfma(DD, A0 + 4 * ks, B0 + 4 * ks, None if ks == 0 else DD))
    a("s_nop 11")
    for i in range(8):
        a("v_pk_mul_f32 %s, %s, s[36:37]" % (v(DD + 2 * i, 2), v(DD + 2 * i, 2)))
    for i in range(8):
        a("v_cvt_pk_bf16_f32 %s, %s, %s" % (v(A0 + i), v(DD + 2 * i), v(DD + 2 * i + 1)))
    a("""
    ds_write_b128 v12, v[32:35]
    ds_write_b128 v12, v[36:39] offset:16
    ds_read_b128 v[40:43], v13
    ds_read_b128 v[44:47], v13 offset:1280
    s_waitcnt lgkmcnt(1)
    global_store_dwordx4 v14, v[40:43], s[20:21] %s
    s_waitcnt lgkmcnt(0)
    global_store_dwordx4 v15, v[44:47], s[20:21] %s
    K1_GEND:
    """ % (st, st))
    fin()
    a("K1_END:", "s_endpgm")


def silu_ops(Y, ng):
    ex = ["v_exp_f32 %s, %s" % (v(EE + i), v(Y + i)) for i in range(4 * ng)]
    r1, r2, r3 = [], [], []
    for g in range(ng):
        r1.append("v_pk_fma_f32 %s, %s, $K:2, $K:2" % (v(TT + 2 * g, 2), v(EE + 4 * g, 2)))
    for g in range(ng):
        r1.append("v_pk_fma_f32 %s, %s, %s, %s" % (v(TT + 2 * g, 2), v(TT + 2 * g, 2), v(EE + 4 * g + 2, 2), v(TT + 2 * g, 2)))
    for i in range(2 * ng):
        r2.append("v_rcp_f32 %s, %s" % (v(TT + i), v(TT + i)))
    for g in range(ng):
        for p in range(2):
            y = v(Y + 4 * g + 2 * p, 2)
            r3.append("v_pk_mul_f32 %s, %s, %s" % (y, y, v(TT + 2 * g, 2)))
    for g in range(ng):
        for p in range(2):
            y = v(Y + 4 * g + 2 * p, 2)
            r3.append("v_pk_fma_f32 %s, %s, %s, %s" % (y, y, v(EE + 4 * g + 2 * (1 - p), 2), y))
    return ex, r1, r2, r3


SHORT = ("v_exp_f32", "v_rcp_f32", "v_sub_f32", "v_add_u32", "v_mov_b32", "v_mul_f32", "v_fmac_f32", "v_add_f32")


def align8(run):
    out, grp = [], []

    def flush():
        if len(grp) % 2:
            for i in range(len(grp) - 1, -1, -1):
                op = grp[i].split()[0]
                if op in SHORT:
                    grp[i] = grp[i].replace(op, op + "_e64", 1)
                    break
            else:
                grp.append("s_nop 0")
        out.extend(grp)
        del grp[:]
    for ins in run:
        op = ins.split()[0]
        if op in SHORT or op in ("s_setprio", "s_nop"):
            grp.append(ins)
        else:
            flush()
            out.append(ins)
    flush()
    return out


def cvts(Dp, n):
    return ["v_cvt_pk_bf16_f32 %s, %s, %s" % (v(PP + i), v(Dp + 2 * i), v(Dp + 2 * i + 1)) for i in range(n)]


def dma(a, slot):
    for r in range(2):
        a("s_add_u32 m0, $GW, %d" % (slot * 2048 + r * 1024 - slot * 64))
        a("s_nop 0")
        a("buffer_load_dwordx4 @DA+%d, $Q:4, 0 offen offset:%d lds" % (r, slot * 64))


def aq_read(a, slot):
    a("ds_read_b128 @AQ:4, @Aq0 offset:%d" % (slot * 2048))
    a("ds_read_b128 @AQ+4:4, @Aq1 offset:%d" % (slot * 2048))


def logic(a, tag):
    a("""
    s_add_u32 $P2, $P1, 32
    s_min_u32 $E, $P2, $END
    s_sub_u32 $A, $E, $P1
    s_bfm_b64 $MASK:2, $A, 0
    s_cmp_gt_u32 $E, $WEND
    s_cbranch_scc0 K2_NOREB_%s
    s_call_b64 $RET:2, K2_REBASE
    K2_NOREB_%s:
    s_sub_u32 $D8, $P2, $P1
    s_lshl_b32 $D8, $D8, 3
    s_cmp_lt_u32 $P2, $END
    s_cselect_b32 $SEL, $SEL, 0x03020100
    """ % (tag, tag))


GEOM_A = ["v_sub_f32 @TT+%d, @TT+%d, @GP+%d" % (i, i, i) for i in range(3)]
GEOM_B = ["v_cvt_pk_bf16_f32 @A3, @TT, @TT+1", "v_cvt_pk_bf16_f32 @A3+1, @TT+2, $K"]
GEOM_C = ["v_dot2_f32_bf16 @A3+2, @A3, @A3, 0", "v_dot2_f32_bf16 @A3+2, @A3+1, @A3+1, @A3+2"]
GEOM_D = ["v_cvt_pk_bf16_f32 @A3+2, @A3+2, @A3+2"]
PERMS = ["v_perm_b32 @DA+%d, @TT+%d, @WA+%d, $SEL" % (r, 4 + r, r) for r in range(2)]


def a3_reads(a):
    a("""
    s_mov_b32 exec_lo, 0
    ds_read_b128 @A3:4, @X
    s_not_b64 exec, exec
    ds_read_b32 @A3+3, @Rec offset:4
    s_mov_b64 exec, -1
    """)


def gather_pos(a):
    a("""
    s_mov_b32 exec_hi, 0
    buffer_load_dwordx3 @GP:3, @GP, $POS:4, 0 idxen
    s_mov_b32 exec_hi, -1
    """)


def step(a, half, opt):
    tag = "H" if half else "F"
    useprio = opt.get("prio", 1)
    for t in range(4):
        D, Dn = (D0, D1) if t % 2 == 0 else (D1, D0)
        slot = (t + 1) & 3
        last = half and t == 3
        if t > 0 and useprio:
            a("s_setprio 0")
        w = ([6, 6, 6, None] if half else [6, 7, 4, None])[t]
        if w is not None:
            a("s_waitcnt vmcnt(%d)" % w)
        if not last:
            aq_read(a, slot)
        if t == 0 and not half:
            a("ds_read_u16 @GP, @Rec")
        if t == 1:
            a("""
            s_cmp_eq_u32 $FLUSH, 0
            s_cbranch_scc1 K2_NOFL_%s
            s_call_b64 $RET:2, K2_FLUSH
            K2_NOFL_%s:
            s_mov_b64 exec, $MASK:2
            ds_write_b64 @S, @A3:2
            s_mov_b64 exec, -1
            """ % (tag, tag))
            for i in range(2 if half else 4):
                a("ds_read_b64_tr_b16 @A2+%d:2, @A2a offset:%d" % (2 * i, i * 576))
            if not half:
                a("""
                s_mov_b64 exec, $MASK:2
                ds_write_b64 @S, @B3:2
                s_mov_b64 exec, -1
                ds_read_u16 @S, @Rec offset:2
                """)
                logic(a, tag)
        if t == 2 and not half:
            a("ds_read_b96 @TT:3, @X")
            a("ds_read2_b32 @TT+4:2, @Idx offset0:0 offset1:32")
        if t == 3 and not half:
            a("""
            s_cmp_eq_u32 $REB, 0
            s_cbranch_scc1 K2_NOB3
            s_call_b64 $RET:2, K2_B3LOAD
            K2_NOB3:
            """)
            a3_reads(a)
        a("""
        s_cmp_eq_u32 $SAFE, 0
        s_cbranch_scc1 K2_NOSAFE_%s%d
        s_call_b64 $RET:2, K2_CLAMP%d
        K2_NOSAFE_%s%d:
        s_waitcnt lgkmcnt(0)
        """ % (tag, t, t & 1, tag, t))
        if t == 0 and not half:
            gather_pos(a)
        if not last:
            dma(a, slot)
        accp = ACC + 16 * ((t + 3) & 3)
        S2a = mfma(accp, A2, PP, accp)
        S2b = mfma(accp, A2 + 4, PP + 4, accp)
        S1a = mfma(Dn, A3, B3 + 4 * slot, None)
        S1b = mfma(Dn, AQ, ID, Dn)
        S1c = mfma(Dn, AQ + 4, ID + 4, Dn)
        ex, r1, r2, r3 = silu_ops(D, 2 if half else 4)
        pre, mid, late, fin = [], [], [], []
        pr = ["s_setprio 1"] if useprio else []
        if not half:
            if t == 1:
                pre = ["v_lshl_add_u32 @X, @S, 1, @Xb", "v_add_u32 @S, @S, @Sb", "v_add_u32 @Idx, $D8, @Idx"]
            if t == 2:
                pre, mid, late, fin = GEOM_A + PERMS, GEOM_B, GEOM_C, GEOM_D
            if t == 3:
                pre = ["v_add_u32 @Rec, $D8, @Rec"]
            cv = cvts(Dn, 8)
            pa = opt.get("prio_pos", 1)
            run = pre + cv[:6] + [S2a] + cv[6:] + (pr if pa == 0 else []) + ex[:2] + [S1a] + (pr if pa == 1 else []) + ex[2:5] + [S2b] + ex[5:8] + [S1b] + ex[8:11] + [S1c] + mid + ex[11:]
            run += late + r1 + fin + r2 + r3
        else:
            if t == 0:
                cv = cvts(Dn, 8)
                run = cv[:6] + [S2a] + cv[6:] + ex[:2] + [S1a] + pr + ex[2:5] + [S2b] + ex[5:8] + [S1b] + r1 + [S1c] + r2 + r3
            elif not last:
                cv = cvts(Dn, 4)
                run = cv + [S1a] + pr + ex[:3] + [S1b] + ex[3:6] + [S1c] + ex[6:] + r1 + [S2a] + r2 + r3
            else:
                cv = cvts(Dn, 4)
                run = cv + ex[:2] + [S2a] + pr + ex[2:] + r1 + r2 + r3
        if opt.get("align", 1):
            a(".p2align 3")
            run = align8(run)
        a(*run)


def gen_k2(a, opt):
    ST = VR["ST"]
    a("""
    main_kernel:
    s_cmp_ge_u32 s2, 256
    s_cbranch_scc1 K2_END
    s_load_dwordx2 s[22:23], s[0:1], 80
    s_load_dwordx16 s[4:19], s[0:1], 0
    s_load_dwordx2 s[20:21], s[0:1], 64
    v_mov_b32 @Tid, v0
    v_lshrrev_b32 v1, 6, v0
    s_mov_b32 $BK, s2
    v_readfirstlane_b32 s3, v1
    """)
    if opt.get("xcdmap", 1):
        a("""
        s_and_b32 $A, s2, 7
        s_lshl_b32 $A, $A, 5
        s_lshr_b32 s2, s2, 3
        s_add_u32 s2, s2, $A
        """)
    a("""
    s_mov_b32 $O, 0
    s_mov_b32 $QUOTA, 24
    s_mov_b32 $SAFE, 0
    s_mov_b32 $FIRST, 1
    s_mov_b32 $T+2, #(NCH*TSTRIDE)
    s_mov_b32 $T+3, 0x20000
    K2_ROUND:
    s_setprio 3
    v_and_b32 @L, 63, @Tid
    v_lshrrev_b32 @Ch, 2, @L
    s_lshl_b32 $A, s3, 5
    v_add_u32 @Ch, $A, @Ch
    v_mul_u32_u24 @T0, #(TSTRIDE), @Ch
    v_add_u32 @T1, #(16*TSTRIDE), @T0
    s_lshl_b32 $A, s2, 2
    s_waitcnt lgkmcnt(0)
    s_add_u32 $T, s22, #(WS_T)
    s_addc_u32 $T+1, s23, 0
    """)
    stamp(a, opt, 0, ST, True)
    stamp(a, opt, 1, ST)
    a("""
    buffer_load_dword @Ta, @T0, $T:4, $A offen
    buffer_load_dword @Tb, @T1, $T:4, $A offen
    s_mov_b32 $H, s4
    s_mov_b32 $H+1, s5
    s_mov_b32 $H+2, #(N*256)
    s_mov_b32 $H+3, 0x20000
    v_lshrrev_b32 @T0, 4, @L
    v_and_b32 @T1, 3, @L
    v_xor_b32 @WA, @T0, @T1
    v_lshlrev_b32 @WA, 4, @WA
    v_lshrrev_b32 @T0, 2, @L
    v_lshl_add_u32 @WA, @T0, 8, @WA
    s_lshr_b32 $A, s3, 1
    s_lshl_b32 $B, $A, 4
    s_mul_i32 $E, s2, #(NB)
    s_add_u32 $B, $B, $E
    s_lshl_b32 $B, $B, 8
    s_and_b32 $D8, s3, 1
    s_lshl_b32 $REP, $D8, 7
    s_add_u32 $B, $B, $REP
    s_lshl_b32 $D8, $D8, 12
    s_and_b32 $A, $A, 1
    s_lshl_b32 $A, $A, 10
    s_add_u32 $D8, $D8, $A
    s_lshr_b32 $A, s3, 2
    s_lshl_b32 $A, $A, 13
    s_add_u32 $D8, $D8, $A
    s_add_u32 m0, $D8, #(L_H)
    v_add_u32 @T0, $B, @WA
    buffer_load_dwordx4 @T0, $H:4, 0 offen lds
    s_add_u32 m0, $D8, #(L_H+2048-64)
    v_add_u32 @T1, $E, @L
    buffer_load_dwordx4 @T0, $H:4, 0 offen offset:64 lds
    s_add_u32 $POS, s22, #(WS_POS)
    s_addc_u32 $POS+1, s23, 0
    s_or_b32 $POS+1, $POS+1, 0x100000
    s_mov_b32 $POS+2, #(N)
    s_mov_b32 $POS+3, 0x20000
    s_mov_b32 $Q, s22
    s_mov_b32 $Q+1, s23
    s_mov_b32 $Q+2, #((NQ+256)*256)
    s_mov_b32 $Q+3, 0x20000
    s_and_b32 $A, s3, 3
    s_lshl_b32 $A, $A, 13
    s_add_u32 $A, $A, #(WS_WF)
    v_lshl_add_u32 @T2, @L, 4, $A
    v_add_u32 @T3, 4096, @T2
    """)

    def wload(lo, hi):
        for ks in range(lo, hi):
            a("global_load_dwordx4 @W1+%d:4, @T%d, s[22:23] offset:%d" % (4 * ks, 2 + (ks >> 2), (ks & 3) * 1024))
    W1PRE = opt.get("w1pre", 2)
    wload(0, W1PRE)
    a("""
    v_mov_b32 @Z, 0
    v_mov_b32 @Z+1, 0
    v_mov_b32 @Z+2, 0
    v_mov_b32 @Z+3, 0
    s_mul_i32 $A, s3, #(SW)
    s_add_u32 $A, $A, #(L_S)
    v_lshlrev_b32 @T4, 4, @L
    s_cmp_lg_u32 s3, 6
    s_cbranch_scc1 K2_NOZ6
    ds_write_b128 @T4, @Z:4
    ds_write_b128 @T4, @Z:4 offset:1024
    K2_NOZ6:
    """)
    for t in range(4):
        a(mfma(ACC + 16 * t, VR["Z"], VR["Z"], None))
    a("""
    s_cmp_lg_u32 s3, 7
    s_cbranch_scc1 K2_NOZ7
    ds_write_b128 @T4, @Z:4 offset:#(L_LUT)
    ds_write_b128 @T4, @Z:4 offset:#(L_LUT+1024)
    v_mul_u32_u24 @T0, 18, @L
    v_mov_b32 @Pw, 0x3f80
    s_mov_b64 exec, 0xff
    ds_write_b16 @T0, @Pw offset:#(L_LUTC)
    s_mov_b64 exec, -1
    K2_NOZ7:
    v_add_u32 @T0, $A, @T4
    v_lshl_add_u32 @T4, @L, 2, $A
    ds_write_b128 @T0, @Z:4
    ds_write_b128 @T0, @Z:4 offset:1024
    ds_write_b32 @T4, @Z offset:2048
    v_lshlrev_b32 @T0, 4, @Tid
    s_cmp_eq_u32 $FIRST, 0
    s_cbranch_scc1 K2_NOZM
    ds_write_b128 @T0, @Z:4 offset:#(L_U)
    ds_write_b128 @T0, @Z:4 offset:#(L_U+8192)
    ds_write_b128 @T0, @Z:4 offset:#(L_U+16384)
    K2_NOZM:
    v_mul_u32_u24 @Ch, #(CH), @Ch
    v_and_b32 @T4, 3, @L
    v_lshlrev_b32 @T4, 1, @T4
    v_add_u32 @T4, $O, @T4
    v_add_u32 @Ch, @Ch, @T4
    s_add_u32 $B, $O, $QUOTA
    s_mov_b32 m0, #(L_POSD)
    s_waitcnt vmcnt(%d)
    v_and_b32 @T0, 0xffff, @Ta
    v_and_b32 @Pw, 0xffff, @Tb
    v_add_lshl_u32 @T0, @T0, @Ch, 3
    v_add_lshl_u32 @Pw, @Pw, @Ch, 3
    v_add_u32 @T0, #(WS_REC), @T0
    v_add_u32 @Pw, #(WS_REC+16*CH*8), @Pw
    v_lshrrev_b32 @Ta, 16, @Ta
    v_lshrrev_b32 @Tb, 16, @Tb
    v_max_u32 @Ch, @Ta, @Tb
    v_min_u32 @Ta, $B, @Ta
    v_min_u32 @Tb, $B, @Tb
    v_sub_u32 @Ta, @Ta, @T4
    v_sub_u32 @Tb, @Tb, @T4
    """ % (2 + W1PRE))
    stamp(a, opt, 2, ST)
    slots = [(L, i) for L in range(3) for i in range(2)]
    for q, (L, i) in enumerate(slots):
        a("v_cmp_lt_i32 $M+%d:2, %d, @Ta+%d" % (4 * q, 8 * L, i))
    for q, (L, i) in enumerate(slots):
        a("s_mov_b64 exec, $M+%d:2" % (4 * q))
        a("global_load_dwordx4 @REC0+%d:4, %s, s[22:23] offset:%d" % (4 * q, "@Pw" if i else "@T0", 64 * L))
    a("""
    s_mov_b64 exec, -1
    buffer_load_dwordx4 @T1, $POS:4, 0 idxen lds
    v_and_b32 @T0, 255, @Tid
    v_lshlrev_b32 @T0, 1, @T0
    v_add_u32 @T0, 65536, @T0
    global_load_ushort @Wd, @T0, s[14:15]
    v_and_b32 @T4, 31, @L
    v_lshlrev_b32 @T0, 1, @T4
    """)
    for t in range(4):
        a("global_load_ushort @WX+%d, @T0, s[16:17] offset:%d" % (t, t * 64))
    wload(W1PRE, 8)
    NLATE = 6 + 8 - W1PRE
    for q, (L, i) in enumerate(slots):
        a("v_cmp_lt_i32 $M+%d:2, %d, @Ta+%d" % (4 * q + 2, 8 * L + 1, i))
    a("""
    v_cmp_lt_u32 vcc, $B, @Ch
    v_bfe_u32 @T0, @L, 2, 2
    v_lshrrev_b32 @Hh, 5, @L
    v_xor_b32 @Aqb, @T0, @Hh
    v_lshlrev_b32 @Aqb, 4, @Aqb
    v_lshl_add_u32 @Aqb, @T4, 6, @Aqb
    v_mul_u32_u24 @Sb, 72, @T4
    v_add_u32 @Sb, $A, @Sb
    v_lshl_add_u32 @A2a, @Hh, 2, @T0
    v_mul_u32_u24 @A2a, 72, @A2a
    v_mul_u32_u24 @B3a, #(RS), @T0
    v_and_b32 @T0, 3, @L
    v_lshlrev_b32 @T0, 3, @T0
    v_bfe_u32 @T1, @L, 4, 1
    v_lshl_add_u32 @T0, @T1, 5, @T0
    v_add3_u32 @A2a, @A2a, @T0, $A
    v_mul_u32_u24 @T1, #(L_P-L_WZ), @Hh
    v_add3_u32 @B3a, @B3a, @T0, @T1
    v_add_u32 @B3a, #(L_WZ), @B3a
    v_mul_u32_u24 @Xb, #(L_POSD-L_LUTC), @Hh
    v_sub_u32 @Xb, #(L_POSD), @Xb
    s_lshl_b32 $GW, s3, 13
    s_add_u32 $A, $GW, #(NQ*256)
    s_add_u32 $GW, $GW, #(L_G)
    v_add_u32 @WA, $A, @WA
    v_add_u32 @WA+1, 4096, @WA
    v_add_u32 @Aq0, $GW, @Aqb
    v_xor_b32 @Aq1, 32, @Aq0
    v_lshlrev_b32 @T0, 3, @Hh
    v_sub_u32 @Ida, @T4, @T0
    v_lshlrev_b32 @Ida, 4, @Ida
    v_add_u32 @Ida, #(L_LUTC-256), @Ida
    s_lshr_b32 $A, s3, 2
    s_lshl_b32 $A, $A, 5
    v_add_u32 @Pw, $A, @T4
    v_mul_u32_u24 @Pw, #(RS), @Pw
    v_lshl_add_u32 @Pw, @Hh, 5, @Pw
    s_and_b32 $E, s3, 3
    s_lshl_b32 $E, $E, 6
    v_add_u32 @Pw, $E, @Pw
    v_lshrrev_b32 @Idx, 2, @L
    v_lshlrev_b32 @Idx, 3, @Idx
    v_lshlrev_b32 @Rec, 3, @T4
    v_mov_b32 @T3, 1
    v_lshlrev_b32 @T2, 2, @L
    """)
    for i in range(8):
        a("v_mov_b32 @A2+%d, 0" % i)
    a("""
    s_mov_b32 $WB8, 0
    s_mov_b32 $REP, 0
    s_mov_b32 $WEND, 0
    s_mov_b32 $K, #(f32(2.0**-KEXP))
    s_mov_b32 $K+1, #(f32(2.0**-KEXP))
    s_mov_b32 $L2E, #(f32(-LOG2E))
    s_mov_b32 $L2E+1, #(f32(-LOG2E))
    s_mov_b32 $OUT, s20
    s_mov_b32 $OUT+1, s21
    s_mul_i32 $OUT+2, s2, #(NB)
    s_add_u32 $OUT+2, $OUT+2, #(NB)
    s_min_u32 $OUT+2, $OUT+2, #(N)
    s_lshl_b32 $OUT+2, $OUT+2, 8
    s_mov_b32 $OUT+3, 0x20000
    s_waitcnt lgkmcnt(0)
    s_barrier
    s_cbranch_vccz K2_NOMORE
    ds_write_b32 @Z, @T3 offset:#(L_FLAG)
    K2_NOMORE:
    """)
    stamp(a, opt, 3, ST)
    for q in range(12):
        if q % 2 == 0:
            a("s_waitcnt vmcnt(%d)" % (NLATE + 5 - q // 2))
        if q == 0:
            stamp(a, opt, 4, ST)
        if q == 8:
            a("s_or_b64 exec, $M+16:2, $M+20:2", "s_cbranch_execz K2_H8")
        a("s_mov_b64 exec, $M+%d:2" % (2 * q))
        a("v_lshrrev_b32 @RADDR+%d, 17, @REC0+%d" % (q, 2 * q))
        a("ds_add_rtn_u32 @RANK+%d, @RADDR+%d, @T3" % (q, q))
    a("""
    K2_H8:
    s_mov_b64 exec, -1
    s_waitcnt lgkmcnt(0)
    s_barrier
    ds_read_b32 @T1, @T2
    s_waitcnt lgkmcnt(0)
    v_mov_b32 @Incl, @T1
    """)
    stamp(a, opt, 5, ST)
    scan64(a, VR["Incl"])
    a("""
    v_sub_u32 @T0, @Incl, @T1
    v_readlane_b32 $TOTAL, @Incl, 63
    """)
    for q in range(8):
        a("ds_bpermute_b32 @RADDR+%d, @RADDR+%d, @T0" % (q, q))
    a("""
    s_cmp_gt_u32 $TOTAL, #(CAP)
    s_cbranch_scc1 K2_OVERFLOW
    s_add_u32 $A, $TOTAL, 15
    s_lshr_b32 $A, $A, 4
    s_and_b32 $B, $A, 7
    s_lshr_b32 $A, $A, 3
    s_mul_i32 $P1, s3, $A
    s_min_u32 $E, s3, $B
    s_add_u32 $P1, $P1, $E
    s_cmp_lt_u32 s3, $B
    s_addc_u32 $END, $P1, $A
    s_lshl_b32 $P1, $P1, 4
    s_lshl_b32 $END, $END, 4
    s_min_u32 $END, $END, $TOTAL
    s_lshl_b32 $A, $A, 4
    s_lshl_b32 $B, $P1, 3
    s_add_u32 $B, $B, #(L_REC)
    """)
    for q in range(8):
        a("s_waitcnt lgkmcnt(7)")
        a("s_mov_b64 exec, $M+%d:2" % (2 * q))
        a("v_add_lshl_u32 @RADDR+%d, @RADDR+%d, @RANK+%d, 3" % (q, q, q))
        a("ds_write_b64 @RADDR+%d, @REC0+%d:2 offset:#(L_REC)" % (q, 2 * q))
    a("s_or_b64 exec, $M+16:2, $M+20:2", "s_cbranch_execnz K2_W8X", "K2_W8:")
    a("""
    s_mov_b64 exec, -1
    s_cmp_lg_u32 s3, 7
    s_cbranch_scc1 K2_NOSENT
    v_add_lshl_u32 @T0, @L, $TOTAL, 3
    ds_write_b64 @T0, @Z:2 offset:#(L_REC)
    K2_NOSENT:
    v_add_u32 @Idx, $B, @Idx
    v_add_u32 @Rec, $B, @Rec
    v_cmp_lt_u32 vcc, $A, @T1
    s_mov_b32 $SEL, 0x0c050400
    s_cmp_lt_u32 $P1, $END
    s_cselect_b32 $SEL, $SEL, 0x03020100
    s_waitcnt vmcnt(%d) lgkmcnt(0)
    s_barrier
    ds_read2_b32 @TT+4:2, @Idx offset0:0 offset1:32
    ds_read_u16 @GP, @Rec
    ds_read_u16 @S, @Rec offset:2
    s_lshr_b32 $A, s3, 2
    s_lshl_b32 $A, $A, 13
    s_add_u32 $A, $A, #(L_H)
    v_add_u32 @T0, $A, @Aqb
    v_xor_b32 @T1, 32, @T0
    s_waitcnt lgkmcnt(1)
    """ % (NLATE - 1))
    stamp(a, opt, 6, ST)
    a(*PERMS)
    gather_pos(a)
    for slot in range(4):
        dma(a, slot)
    for ks in range(8):
        a("ds_read_b128 @HB+%d:4, @T%d offset:%d" % (4 * ks, ks & 1, (ks >> 1) * 2048))
    a("""
    ds_read_b128 @ID:4, @Ida offset:256
    ds_read_b128 @ID+4:4, @Ida
    s_cmp_lg_u64 vcc, 0
    s_cselect_b32 $ATOM, 1, 0
    s_cmp_eq_u32 $FIRST, 0
    s_cselect_b32 $ATOM, 1, $ATOM
    s_mov_b32 $CN, -1
    s_mov_b32 $RUN1, 1
    s_mov_b32 $CONTC, 0
    s_cmp_ge_u32 $P1, $END
    s_cbranch_scc1 K2_NOLOG
    """)
    logic(a, "P")
    a("""
    K2_NOLOG:
    s_mov_b32 $FLUSH, 0
    s_waitcnt vmcnt(9)
    """)
    for ks in range(8):
        a("s_waitcnt lgkmcnt(%d)" % (9 - ks))
        a(mfma(EE, VR["W1"] + 4 * ks, VR["HB"] + 4 * ks, None if ks == 0 else EE))
    a("""
    v_add_u32 @Idx, $D8, @Idx
    v_lshl_add_u32 @X, @S, 1, @Xb
    v_add_u32 @S, @S, @Sb
    ds_read2_b32 @TT+4:2, @Idx offset0:0 offset1:32
    ds_read_b96 @TT:3, @X
    v_lshlrev_b32 @Wd, 16, @Wd
    v_mul_f32 @Wd, $L2E, @Wd
    v_cvt_pk_bf16_f32 @T0, @Wd, @Wd
    v_and_b32 @T1, 0xffff0000, @T0
    v_sub_f32 @Wd, @Wd, @T1
    v_cvt_pk_bf16_f32 @T1, @Wd, @Wd
    v_bfe_u32 @T2, @Tid, 7, 1
    v_mul_u32_u24 @T2, #(2*RS), @T2
    v_and_b32 @T3, 127, @Tid
    v_lshl_add_u32 @T2, @T3, 1, @T2
    ds_write_b16 @T2, @T0 offset:#(L_WZ+4*RS)
    ds_write_b16 @T2, @T1 offset:#(L_WZ+5*RS)
    """)
    for i in range(8):
        a("v_pk_mul_f32 @EE+%d:2, @EE+%d:2, $L2E:2" % (2 * i, 2 * i))
    for i in range(8):
        a("v_cvt_pk_bf16_f32 @EE+%d, @EE+%d, @EE+%d" % (i, 2 * i, 2 * i + 1))
    a("""
    ds_write_b128 @Pw, @EE:4 offset:#(L_P)
    ds_write_b128 @Pw, @EE+4:4 offset:#(L_P+16)
    s_mov_b32 $A, #(f32(-LN2*2.0**-KEXP))
    """)
    for t in range(4):
        a("v_lshlrev_b32 @WX+%d, 16, @WX+%d" % (t, t))
        a("v_mul_f32 @WX+%d, $A, @WX+%d" % (t, t))
    a("""
    s_waitcnt lgkmcnt(0)
    s_barrier
    s_cmp_ge_u32 $P1, $END
    s_cbranch_scc1 K2_JOIN
    s_call_b64 $RET:2, K2_B3LOAD
    """)
    stamp(a, opt, 7, ST)
    a("s_waitcnt vmcnt(8)")
    stamp(a, opt, 8, ST)
    a(*(GEOM_A + GEOM_B + GEOM_C + PERMS + ["s_nop 0"] + GEOM_D))
    a3_reads(a)
    a("s_waitcnt vmcnt(6)")
    aq_read(a, 0)
    a("v_add_u32 @Rec, $D8, @Rec")
    a("s_waitcnt lgkmcnt(0)")
    a(mfma(D0, A3, B3, None), mfma(D0, AQ, ID, D0))
    dma(a, 0)
    a(mfma(D0, AQ + 4, ID + 4, D0))
    stamp(a, opt, 9, ST)
    if opt.get("stamps"):
        a("s_mov_b32 s100, 16")
    a("s_branch K2_DISPATCH")
    a(".p2align 6", "K2_LOOP:")
    step(a, False, opt)
    a("K2_DISPATCH:", "s_setprio 0")
    if opt.get("stamps"):
        a("s_memtime s[98:99]", "s_waitcnt lgkmcnt(0)", "s_mov_b32 m0, s100", "v_writelane_b32 @ST, s98, m0", "s_add_u32 s100, s100, 1")
    a("""
    s_mov_b32 $A, $P1
    s_mov_b32 $P1, $P2
    s_cmp_lt_u32 $P1, $END
    s_cbranch_scc1 K2_LOOP
    s_cmp_ge_u32 $A, $END
    s_cbranch_scc1 K2_TAILF
    s_sub_u32 $A, $END, $A
    s_cmp_gt_u32 $A, 16
    s_cbranch_scc1 K2_LOOP
    """)
    step(a, True, opt)
    a(*cvts(D1, 4))
    a("s_nop 1", mfma(ACC + 48, A2, PP, ACC + 48), "s_branch K2_FIN")
    a("K2_TAILF:")
    a(*cvts(D1, 8))
    a(mfma(ACC + 48, A2, PP, ACC + 48), "s_nop 0", mfma(ACC + 48, A2 + 4, PP + 4, ACC + 48))
    a("K2_FIN:")
    stamp(a, opt, 10, ST)
    a("""
    s_setprio 0
    s_mov_b32 $WBO8, $WB8
    s_mov_b32 $CONTO, $CONTC
    s_mov_b32 $RE, $END
    s_mov_b32 $FLUSH, 0
    s_call_b64 $RET:2, K2_FLUSH
    """)
    a("K2_JOIN:")
    stamp(a, opt, 11, ST)
    a("""
    s_lshr_b32 $D8, s3, 2
    s_lshl_b32 $A, $D8, 13
    s_add_u32 $A, $A, #(L_H)
    v_add_u32 @T0, $A, @Aqb
    v_xor_b32 @T1, 32, @T0
    s_and_b32 $E, s3, 3
    s_lshl_b32 $A, $E, 11
    v_mul_u32_u24 @T2, 48, @Hh
    v_xor_b32 @T2, @T2, @T0
    v_add_u32 @T2, $A, @T2
    v_xor_b32 @T3, 16, @T2
    ds_read_b128 @HR:4, @T2
    ds_read_b128 @HR+4:4, @T3
    """)
    for ks in range(8):
        a("ds_read_b128 @HB+%d:4, @T%d offset:%d" % (4 * ks, ks & 1, (ks >> 1) * 2048))
    a("""
    s_lshl_b32 $A, $E, 13
    s_add_u32 $A, $A, #(L_G)
    v_add_u32 @Aq0, $A, @Aqb
    v_xor_b32 @Aq1, 32, @Aq0
    v_and_b32 @T4, 31, @L
    s_mul_i32 $A, $CN, #(RS)
    s_add_u32 $A, $A, #(L_M)
    v_lshl_add_u32 @Idx, @T4, 2, $A
    v_mul_u32_u24 @T2, 80, @T4
    v_lshl_add_u32 @T2, @Hh, 5, @T2
    v_add_u32 @T2, $GW, @T2
    s_lshl_b32 $A, $D8, 5
    v_add_u32 @T0, $A, @T4
    v_mul_u32_u24 @T0, #(RS), @T0
    v_lshl_add_u32 @T0, @Hh, 4, @T0
    v_lshrrev_b32 @T4, 2, @L
    v_and_b32 @T1, 3, @L
    v_mul_u32_u24 @T3, 80, @T4
    v_lshl_add_u32 @T3, @T1, 4, @T3
    v_add_u32 @T3, $GW, @T3
    v_lshlrev_b32 @T4, 8, @T4
    v_lshl_add_u32 @T4, @T1, 4, @T4
    s_mul_i32 $B, s2, #(NB)
    s_add_u32 $A, $A, $B
    s_lshl_b32 $A, $A, 8
    s_lshl_b32 $E, $E, 6
    s_add_u32 $A, $A, $E
    v_add_u32 @T4, $A, @T4
    v_add_u32 @X, 4096, @T4
    v_mov_b32 @T1, 0
    v_and_b32 @S, 255, @Tid
    v_lshlrev_b32 @S, 2, @S
    v_add_u32 @Rec, #(L_U), @S
    s_waitcnt lgkmcnt(8)
    """)
    for i in range(8):
        a("v_lshlrev_b32 @HU+%d, 16, @HR+%d" % (2 * i, i))
        a("v_and_b32 @HU+%d, 0xffff0000, @HR+%d" % (2 * i + 1, i))
    a("""
    s_waitcnt vmcnt(0) lgkmcnt(0)
    s_barrier
    """)
    stamp(a, opt, 12, ST)
    a("ds_read2_b32 @TT:2, @Idx offset0:0 offset1:32")
    for ks in range(8):
        a("ds_read_b128 @WH1+%d:4, @Aq%d offset:%d" % (4 * ks, ks & 1, (ks >> 1) * 2048))
    a("""
    ds_read_b64 @GP:2, @T1 offset:#(L_FLAG)
    s_cmp_lt_i32 $CN, 0
    s_cbranch_scc1 K2_NOFIX
    s_waitcnt lgkmcnt(9)
    v_lshlrev_b32 @TT+2, 16, @TT
    v_and_b32 @TT+3, 0xffff0000, @TT
    v_lshlrev_b32 @TT+4, 16, @TT+1
    v_and_b32 @TT+5, 0xffff0000, @TT+1
    v_pk_add_f32 @TT+2:2, @TT+2:2, @CONT:2
    v_pk_add_f32 @TT+4:2, @TT+4:2, @CONT+2:2
    v_cvt_pk_bf16_f32 @TT, @TT+2, @TT+3
    v_cvt_pk_bf16_f32 @TT+1, @TT+4, @TT+5
    s_mov_b32 exec_hi, 0
    ds_write2_b32 @Idx, @TT, @TT+1 offset0:0 offset1:32
    s_mov_b32 exec_hi, -1
    K2_NOFIX:
    s_waitcnt lgkmcnt(5)
    """)
    for ks in range(8):
        a("ds_read_b128 @WH2+%d:4, @Aq%d offset:%d" % (4 * ks, ks & 1, 32768 + (ks >> 1) * 2048))
        if ks < 3:
            a(mfma(VR["H1"], VR["WH1"] + 4 * ks, VR["HB"] + 4 * ks, None if ks == 0 else VR["H1"]))
    a("""
    s_waitcnt lgkmcnt(0)
    s_barrier
    """)
    for ks in range(8):
        a("ds_read_b128 @MB+%d:4, @T0 offset:%d" % (4 * ks, L_M + ks * 32))
    for i in range(4):
        a("ds_read2st64_b32 @TT+%d:2, @Rec offset0:%d offset1:%d" % (2 * i, 8 * i, 8 * i + 4))
    a("""
    ds_read_b32 @AQ, @S offset:#(L_POSD)
    v_readfirstlane_b32 $A, @GP
    v_readfirstlane_b32 $E, @GP+1
    """)
    for ks in range(3, 8):
        a(mfma(VR["H1"], VR["WH1"] + 4 * ks, VR["HB"] + 4 * ks, VR["H1"]))
    a("""
    s_andn2_b32 $E, $E, $SAFE
    s_or_b32 $A, $A, $E
    s_cbranch_scc1 K2_AGAIN
    s_waitcnt lgkmcnt(0)
    """)
    for ks in range(8):
        a(mfma(VR["G2"], VR["WH2"] + 4 * ks, VR["MB"] + 4 * ks, None if ks == 0 else VR["G2"]))
        if ks == 0:
            a("""
            s_cmp_lt_u32 s3, 4
            s_cbranch_scc1 K2_NOPOS
            v_add_f32 @TT, @TT, @TT+1
            v_add_f32 @TT+2, @TT+2, @TT+3
            v_add_f32 @TT+4, @TT+4, @TT+5
            v_add_f32 @TT+6, @TT+6, @TT+7
            v_add_f32 @TT, @TT, @TT+2
            v_add_f32 @TT+4, @TT+4, @TT+6
            v_add_f32 @TT, @TT, @TT+4
            v_add_f32 @TT, @TT, @AQ
            v_cvt_pk_bf16_f32 @TT, @TT, @TT
            v_lshrrev_b32 @TT+1, 4, @S
            v_add_u32 @TT+1, $B, @TT+1
            s_lshr_b32 $A, $OUT+2, 8
            v_cmp_gt_u32 vcc, $A, @TT+1
            v_mul_u32_u24 @TT+1, 6, @TT+1
            v_bfe_u32 @S, @S, 2, 2
            v_lshl_add_u32 @TT+1, @S, 1, @TT+1
            v_add_u32 @TT+1, #(N*256), @TT+1
            s_mov_b32 $A, 0x77777777
            s_and_b32 exec_lo, vcc_lo, $A
            s_and_b32 exec_hi, vcc_hi, $A
            s_cbranch_execz K2_NOPOS
            global_store_short @TT+1, @TT, s[20:21]
            K2_NOPOS:
            s_mov_b64 exec, -1
            """)
    a("""
    s_mov_b32 $A, #(f32(-LN2))
    s_mov_b32 $B, #(f32(-LN2))
    s_nop 9
    """)
    assert SR["A"] % 2 == 0 and SR["B"] == SR["A"] + 1
    for i in range(8):
        a("v_pk_fma_f32 @H1+%d:2, @H1+%d:2, $L2E:2, @G2+%d:2" % (2 * i, 2 * i, 2 * i))
    for i in range(16):
        a("v_exp_f32 @EE+%d, @H1+%d" % (i, i))
    for i in range(8):
        a("v_pk_add_f32 @EE+%d:2, @EE+%d:2, 1.0 op_sel_hi:[1,0]" % (2 * i, 2 * i))
    for i in range(16):
        a("v_rcp_f32 @EE+%d, @EE+%d" % (i, i))
    for i in range(8):
        a("v_pk_mul_f32 @EE+%d:2, @EE+%d:2, @H1+%d:2" % (2 * i, 2 * i, 2 * i))
    for i in range(8):
        a("v_pk_fma_f32 @EE+%d:2, @EE+%d:2, $A:2, @HU+%d:2" % (2 * i, 2 * i, 2 * i))
    a(*cvts(EE, 8))
    ost = opt.get("out_store", "").replace("+", " ")
    a("""
    ds_write_b128 @T2, @PP:4
    ds_write_b128 @T2, @PP+4:4 offset:16
    ds_read_b128 @EE:4, @T3
    ds_read_b128 @EE+4:4, @T3 offset:1280
    s_waitcnt lgkmcnt(1)
    buffer_store_dwordx4 @EE:4, @T4, $OUT:4, 0 offen %s
    s_waitcnt lgkmcnt(0)
    buffer_store_dwordx4 @EE+4:4, @X, $OUT:4, 0 offen %s
    """ % (ost, ost))
    stamp(a, opt, 13, ST)
    if opt.get("stamps"):
        a("v_writelane_b32 @ST, $SAFE, 40", "v_writelane_b32 @ST, $O, 41", "v_writelane_b32 @ST, $TOTAL, 42",
          "v_writelane_b32 @ST, s100, 43", "v_writelane_b32 @ST, $ATOM, 46")
    stamp_store(a, opt, ST, VR["T0"], VR["Tid"], "s[22:23]", s(SR["BK"]), 0)
    a("K2_END:", "s_endpgm")
    a("K2_W8X:", "s_mov_b64 exec, -1")
    for q in range(8, 12):
        a("ds_bpermute_b32 @RADDR+%d, @RADDR+%d, @T0" % (q, q))
    a("s_waitcnt lgkmcnt(0)")
    for q in range(8, 12):
        a("s_mov_b64 exec, $M+%d:2" % (2 * q))
        a("v_add_lshl_u32 @RADDR+%d, @RADDR+%d, @RANK+%d, 3" % (q, q, q))
        a("ds_write_b64 @RADDR+%d, @REC0+%d:2 offset:#(L_REC)" % (q, 2 * q))
    a("""
    s_branch K2_W8
    K2_AGAIN:
    s_add_u32 $O, $O, $QUOTA
    s_mov_b32 $FIRST, 0
    s_cmp_eq_u32 $E, 0
    s_cbranch_scc1 K2_AGAIN2
    s_mov_b32 $SAFE, 1
    s_mov_b32 $O, 0
    s_mov_b32 $FIRST, 1
    K2_AGAIN2:
    s_nop 15
    s_waitcnt vmcnt(0) lgkmcnt(0)
    s_barrier
    s_branch K2_ROUND
    K2_OVERFLOW:
    s_mov_b32 $QUOTA, 7
    s_branch K2_AGAIN2
    K2_REBASE:
    s_cmp_eq_u32 $REP, 0
    s_cselect_b32 $A, $P1, $WEND
    v_cmp_ge_u32 vcc, $A, @Incl
    s_nop 1
    s_bcnt1_i32_b64 $B, vcc
    s_add_u32 $D8, $B, 7
    v_readlane_b32 $WEND, @Incl, $D8
    s_lshl_b32 $D8, $B, 3
    s_cmp_eq_u32 $RUN1, 1
    s_cbranch_scc1 K2_RB1
    s_cmp_eq_u32 $D8, $WB8
    s_cbranch_scc1 K2_RB2
    K2_RB1:
    s_mov_b32 $WBO8, $WB8
    s_mov_b32 $WB8, $D8
    s_mov_b32 $FLUSH, 1
    s_mov_b32 $REB, 1
    s_mov_b32 $RE, $A
    s_mov_b32 $CONTO, $CONTC
    s_sub_u32 $D8, $B, 1
    s_max_i32 $D8, $D8, 0
    v_readlane_b32 $CONTC, @Incl, $D8
    s_cmp_eq_u32 $B, 0
    s_cselect_b32 $CONTC, 0, $CONTC
    s_cmp_lt_u32 $CONTC, $A
    s_cselect_b32 $CONTC, $RUN1, 0
    s_mov_b32 $RUN1, 2
    s_sub_u32 $B, $WBO8, $WB8
    v_add_u32 @Sb, $B, @Sb
    s_mov_b32 exec_lo, 0
    s_lshl_b32 $D8, $B, 1
    v_add_u32 @Xb, $D8, @Xb
    s_mul_i32 $D8, $B, -34
    v_add_u32 @B3a, $D8, @B3a
    s_mov_b32 exec_lo, -1
    K2_RB2:
    s_min_u32 $B, $E, $WEND
    s_sub_u32 $B, $B, $A
    s_sub_u32 $A, $A, $P1
    s_bfm_b64 $MASK:2, $B, $A
    s_cmp_gt_u32 $E, $WEND
    s_cselect_b32 $REP, 1, 0
    s_cselect_b32 $P2, $P1, $P2
    s_setpc_b64 $RET:2
    K2_B3LOAD:
    """)
    for t in range(4):
        for jj in range(2):
            a("ds_read_b64_tr_b16 @B3+%d:2, @B3a offset:%d" % (4 * t + 2 * jj, jj * 4 * RS + t * 64))
    a("s_mov_b32 $REB, 0", "s_setpc_b64 $RET:2")
    for par, D in ((0, D0), (1, D1)):
        a("K2_CLAMP%d:" % par, "s_nop 11")
        for i in range(16):
            a("v_min_f32 %s, #(f32(126.0)), %s" % (v(D + i), v(D + i)))
        a("s_setpc_b64 $RET:2")
    a("""
    K2_FLUSH:
    v_cmp_gt_u32 vcc, $RE, @Incl
    v_and_b32 @T0, 31, @L
    s_lshr_b32 $A, $WBO8, 3
    v_add_u32 @T1, $A, @Hh
    v_mul_u32_u24 @T2, #(RS), @T1
    v_lshl_add_u32 @T2, @T0, 2, @T2
    s_bcnt1_i32_b64 $B, vcc
    v_sub_u32 @T3, $B, @T1
    v_bfe_u32 @T0, @L, 2, 2
    v_lshl_add_u32 @T1, @T0, 1, @T1
    v_and_b32 @T0, 3, @L
    v_lshl_add_u32 @T1, @T1, 2, @T0
    s_lshl_b32 $B, s3, 10
    v_lshl_add_u32 @T1, @T1, 2, $B
    ds_read_b32 @T4, @T1 offset:#(L_U)
    """)
    for g in range(4):
        a("v_cmp_le_i32 $FM+%d:2, %d, @T3" % (2 * g, 2 * g))
    for g in range(4):
        for p in range(2):
            a("v_cvt_pk_bf16_f32 @PP+%d, %s, %s" % (2 * g + p, v(ACC + 32 * p + 4 * g + 3), v(ACC + 32 * p + 16 + 4 * g + 3)))
    a("""
    s_cmp_lg_u32 $ATOM, 0
    s_cbranch_scc1 K2_FLA
    s_cmp_eq_u32 $CONTO, 0
    s_cbranch_scc1 K2_FLW
    s_mov_b32 $FM, 0
    s_cmp_eq_u32 $CONTO, 1
    s_cbranch_scc0 K2_FLC2
    s_mov_b32 $CN, $A
    v_mov_b32 @CONT, v3
    v_mov_b32 @CONT+1, v19
    v_mov_b32 @CONT+2, v35
    v_mov_b32 @CONT+3, v51
    K2_FLW:
    """)
    for g in range(4):
        a("s_mov_b64 exec, $FM+%d:2" % (2 * g))
        for p in range(2):
            a("ds_write_b32 @T2, @PP+%d offset:%d" % (2 * g + p, L_M + 2 * g * RS + 128 * p))
    a("s_mov_b64 exec, -1", "K2_FLU:")
    fv = opt.get("flushv", 3)
    if fv == 2:
        a("s_setprio 3")
    for t in range(4):
        b = t & 1
        if fv == 3:
            a("v_mov_b32 @TT, @WX+%d" % t, "v_mov_b32 @TT+1, @WX+%d" % t)
        for g in range(4):
            e, ac = EE + 4 * g, ACC + 16 * t + 4 * g
            if fv == 1:
                for c in range(3):
                    a("%s %s, %s, @WX+%d" % ("v_fmac_f32" if t else "v_mul_f32", v(e + c), v(ac + c), t))
            elif fv == 3:
                if t == 0:
                    a("v_pk_mul_f32 %s, %s, @TT:2" % (v(e, 2), v(ac, 2)))
                else:
                    a("v_pk_fma_f32 %s, %s, @TT:2, %s" % (v(e, 2), v(ac, 2), v(e, 2)))
                a("%s %s, %s, @WX+%d" % ("v_fmac_f32" if t else "v_mul_f32", v(e + 2), v(ac + 2), t))
            elif fv == 4:
                for c in (0, 2):
                    if t == 0:
                        a("v_pk_mul_f32 %s, %s, @WX+%d:2 op_sel:[0,%d] op_sel_hi:[1,%d]" % (v(e + c, 2), v(ac + c, 2), t & 2, b, b))
                    else:
                        a("v_pk_fma_f32 %s, %s, @WX+%d:2, %s op_sel:[0,%d,0] op_sel_hi:[1,%d,1]" % (v(e + c, 2), v(ac + c, 2), t & 2, v(e + c, 2), b, b))
            elif t == 0:
                a("v_pk_mul_f32 %s, %s, @WX+%d:2 op_sel:[0,%d] op_sel_hi:[1,%d]" % (v(e, 2), v(ac, 2), t & 2, b, b))
                a("v_mul_f32 %s, %s, @WX+%d" % (v(e + 2), v(ac + 2), t))
            else:
                a("v_pk_fma_f32 %s, %s, @WX+%d:2, %s op_sel:[0,%d,0] op_sel_hi:[1,%d,1]" % (v(e, 2), v(ac, 2), t & 2, v(e, 2), b, b))
                a("v_fmac_f32 %s, %s, @WX+%d" % (v(e + 2), v(ac + 2), t))
    if fv == 2:
        a("s_setprio 0")
    for g in range(4):
        for c in range(3):
            dst = TT + (g & 1) * 3 + c
            a("v_add_f32_dpp %s, %s, %s row_ror:8 row_mask:0xf bank_mask:%s" % (v(dst), v(EE + 4 * g + c), v(EE + 4 * g + c), "0x3" if g < 2 else "0xc"))
    for c in range(3):
        a("v_add_f32_dpp @EE+%d, @TT+%d, @TT+%d row_shl:4 row_mask:0xf bank_mask:0x5" % (c, c, c))
    for c in range(3):
        a("v_add_f32_dpp @EE+%d, @TT+%d, @TT+%d row_shr:4 row_mask:0xf bank_mask:0xa" % (c, 3 + c, 3 + c))
    for qp in ("[1,0,3,2]", "[2,3,0,1]"):
        for c in range(3):
            a("v_add_f32_dpp @EE+%d, @EE+%d, @EE+%d quad_perm:%s row_mask:0xf bank_mask:0xf" % (c, c, c, qp))
    a("""
    s_mov_b32 $FM, 0x22222222
    s_mov_b32 $FM+1, 0x22222222
    s_mov_b32 $FM+2, 0x44444444
    s_mov_b32 $FM+3, 0x44444444
    v_cndmask_b32 @EE, @EE, @EE+1, $FM:2
    v_cndmask_b32 @EE, @EE, @EE+2, $FM+2:2
    v_mov_b32 @EE+1, @EE
    s_nop 1
    v_permlane16_swap_b32 @EE, @EE+1
    s_waitcnt lgkmcnt(0)
    v_add_f32 @EE, @EE, @EE+1
    v_add_f32 @T4, @T4, @EE
    v_cmp_u_f32 vcc, @EE, @EE
    ds_write_b32 @T1, @T4 offset:#(L_U)
    s_nop 2
    s_cbranch_vccnz K2_FLN
    K2_FL1:
    s_cmp_eq_u32 $FLUSH, 0
    s_cbranch_scc1 K2_FL2
    """)
    for i in range(64):
        a("v_mov_b32 %s, 0" % v(ACC + i))
    a("""
    s_mov_b32 $FLUSH, 0
    s_waitcnt lgkmcnt(0)
    K2_FL2:
    s_setpc_b64 $RET:2
    K2_FLN:
    v_mov_b32 @T0, 0
    v_mov_b32 @T1, 1
    ds_write_b32 @T0, @T1 offset:#(L_FLAG+4)
    s_branch K2_FL1
    K2_FLC2:
    s_mov_b32 exec_hi, 0
    ds_pk_add_bf16 @T2, @PP offset:#(L_M)
    ds_pk_add_bf16 @T2, @PP+1 offset:#(L_M+128)
    s_branch K2_FLW
    K2_FLA:
    """)
    for g in range(4):
        a("s_mov_b64 exec, $FM+%d:2" % (2 * g))
        for p in range(2):
            a("ds_pk_add_bf16 @T2, @PP+%d offset:%d" % (2 * g + p, L_M + 2 * g * RS + 128 * p))
    a("s_mov_b64 exec, -1", "s_branch K2_FLU")


def kd(name, vgpr, sgpr):
    return """.p2align 6
.amdhsa_kernel %s
  .amdhsa_next_free_vgpr %d
  .amdhsa_next_free_sgpr %d
  .amdhsa_accum_offset %d
  .amdhsa_group_segment_fixed_size 0
  .amdhsa_kernarg_size 88
  .amdhsa_user_sgpr_count 2
  .amdhsa_user_sgpr_kernarg_segment_ptr 1
  .amdhsa_system_sgpr_workgroup_id_x 1
  .amdhsa_float_denorm_mode_32 3
.end_amdhsa_kernel
""" % (name, vgpr, sgpr, (vgpr + 3) // 4 * 4)


def generate(opt):
    ref = open("cdna_kernels/%s.s.ref" % NAME).read().split("\n")
    head = []
    for ln in ref:
        if ln.startswith("; Override launch") or "@launch" in ln or ln.startswith("; grid=ceil"):
            continue
        if not ln.startswith(";"):
            break
        head.append(ln)
    out = "\n".join(head) + "\n"
    l1 = "; @launch kernel=prep_kernel grid=(%d,1,1) block=(512,1,1) lds=%d\n" % (K1_GRID, K1_LDS)
    l2 = "; @launch kernel=main_kernel grid=(256,1,1) block=(512,1,1) lds=%d\n" % K2_LDS
    l0 = "; @launch kernel=null_kernel grid=(256,1,1) block=(64,1,1) lds=0\n"
    for c in str(opt.get("seq", "12")):
        out += {"0": l0, "1": l1, "2": l2}[c]
    out += '.amdgcn_target "amdgcn-amd-amdhsa--gfx950"\n.text\n'
    kernels = [("prep_kernel", gen_k1), ("main_kernel", gen_k2)]
    if "0" in str(opt.get("seq", "12")):
        kernels.append(("null_kernel", lambda a, o: a("null_kernel:", "s_endpgm")))
    for name, g in kernels:
        a = Asm()
        g(a, opt)
        out += ".globl %s\n.p2align 8\n.type %s,@function\n" % (name, name) + a.text()
    out += '.section .rodata,"a"\n'
    out += kd("prep_kernel", 104 if opt.get("stamps") else 96, 102 if opt.get("stamps") else 40)
    out += kd("main_kernel", 256, 102)
    if "0" in str(opt.get("seq", "12")):
        out += kd("null_kernel", 8, 8)
    return out


if __name__ == "__main__":
    opt = {}
    path = "cdna_kernels/%s.s" % NAME
    for arg in sys.argv[1:]:
        if "=" in arg:
            k, val = arg.split("=", 1)
            if k != "seq":
                try:
                    val = int(val)
                except ValueError:
                    pass
            opt[k] = val
        else:
            path = arg
    open(path, "w").write(generate(opt))
    print("wrote", path, "K2_LDS", K2_LDS, "L_G", L_G, "L_H", L_H, "L_REC", L_REC, "L_S", L_S)
```

```python
import sys, struct, re

NAME = "gather_scatter__cheap_equivariant_egnn__graph"
N, E, NB = 12500, 400000, 49
NCH, CH = 250, 1600
NQ = 12544
WS_Q, WS_REC, WS_T, WS_POS, WS_WF, WS_DBG = 0, 0x400000, 0x800000, 0x900000, 0xA00000, 0xC00000
TSTRIDE = 1152
LOG2E = 1.4426950408889634
LN2 = 0.6931471805599453
KEXP = 30


def f32(x):
    return struct.unpack("<I", struct.pack("<f", x))[0]


def v(a, n=1):
    return "v%d" % a if n == 1 else "v[%d:%d]" % (a, a + n - 1)


def s(a, n=1):
    return "s%d" % a if n == 1 else "s[%d:%d]" % (a, a + n - 1)


RS = 272
L_CNT, L_FLAG, L_EXC = 0, 256, 512
L_IMG = 768
L_LUTC = L_IMG + 768
L_WZ = L_LUTC + 128
L_WX = L_WZ + 8 * RS
L_P = L_IMG + 4096
L_POSD = L_P + 64 * RS
L_U = L_POSD + 1024
L_M = L_U + 8192
CAP = 1792
L_REC = L_M + 56 * RS
L_S = L_REC + (CAP + 64) * 8
SW = 32 * 72
L_H = (L_S + 8 * SW + 1023) // 1024 * 1024
L_G = L_H + 16384
K2_LDS = L_G + 65536
K1_LDS = 49152 + 8 * 2560
WS_IMG = WS_WF + 0x10000

VR = dict(ACC=0, D0=64, D1=80, EE=96, TT=112, PP=120, CQ=128, B3=144, A3=160, A2=164,
          W1=172, L=188, Ch=189, Ta=190, Tb=191, Pf=192, Hb1=193, Ra=194, Z=196,
          fM=204, Hh=205, Hop=206, HRa=207, Hb=208, Pw=209, WXa=210,
          CONT=220, Sb=224, A2a=225, Cq=226, B3a=227, WA=228, Xb=230, Idx=231, Rec=232, fU=233, Mr=234, Wa=235,
          stW=236, stR=237, Out=238, Us=239, DA=240, GP=242, ST=245, X=246, S=247, Nn=248, Incl=249, Tid=250,
          T0=251, T1=252, T2=253, T3=254, T4=255,
          REC0=112, RADDR=136, RANK=148, HB=64,
          MB=0, HU=32, WH2=128, WH1=172, H1=204, G2=96, HR=160, WX=120)
TABREG = [208, 224, 228, 232, 236, 204]
SR = dict(Q=24, POS=28, T=32, H=36, OUT=40, K=44, L2E=46, SEL=48,
          O=49, QUOTA=50, SAFE=51, FIRST=52, TOTAL=53, END=54, P1=55, P2=56, WB8=57, WBO8=58, WEND=59,
          MASK=60, FLUSH=62, REB=63, GW=64, REP=65, D8=66, E=67, A=68, B=69, RET=70, M=72,
          ATOM=96, FM=72, CONTC=80, CONTO=81, RE=82, RUN1=83, CN=84, ONE=86, BK=97)
SELQ, SELW = 0x0c050403, 0x0c020100
globals().update({k: x for k, x in VR.items() if k in ("ACC", "D0", "D1", "EE", "TT", "PP", "CQ", "B3", "A3", "A2")})

TOK = re.compile(r"([@$])([A-Za-z][A-Za-z0-9]*)(?:\+(\d+))?(?::(\d+))?")
EXP = re.compile(r"#\(([^()]*(?:\([^()]*\)[^()]*)*)\)")


def sub(line):
    def r(m):
        base = (VR if m.group(1) == "@" else SR)[m.group(2)] + int(m.group(3) or 0)
        return (v if m.group(1) == "@" else s)(base, int(m.group(4) or 1))

    def e(m):
        x = eval(m.group(1), globals())
        return str(x) if x < 65536 else hex(x)
    return TOK.sub(r, EXP.sub(e, line))


class Asm:
    def __init__(self):
        self.l = []

    def __call__(self, *lines):
        for x in lines:
            for y in x.strip("\n").split("\n"):
                y = y.strip()
                if not y:
                    continue
                y = sub(y)
                self.l.append(y if y.endswith(":") else "    " + y)

    def text(self):
        return "\n".join(self.l) + "\n"


MF = "v_mfma_f32_32x32x16_bf16"


def mfma(d, a, b, c):
    return "%s %s, %s, %s, %s" % (MF, v(d, 16), v(a, 4), v(b, 4), "0" if c is None else v(c, 16))


def stamp(a, opt, idx, reg, real=False):
    if not opt.get("stamps"):
        return
    a("s_waitcnt lgkmcnt(0)", "%s s[98:99]" % ("s_memrealtime" if real else "s_memtime"), "s_waitcnt lgkmcnt(0)",
      "v_writelane_b32 %s, s98, %d" % (v(reg), idx))


def lstamp(a, opt, name):
    names = opt.get("ls", "").split("+") if opt.get("ls") else []
    if name in names:
        k = 6 + 2 * names.index(name)
        a("s_memtime s[%d:%d]" % (k, k + 1))


def stamp_store(a, opt, reg, tmp, tid, base, wg, extra):
    if not opt.get("stamps"):
        return
    a("s_waitcnt vmcnt(0)",
      "s_getreg_b32 s98, hwreg(HW_REG_HW_ID)", "v_writelane_b32 %s, s98, 44" % v(reg),
      "s_getreg_b32 s98, hwreg(HW_REG_XCC_ID)", "v_writelane_b32 %s, s98, 45" % v(reg))
    stamp(a, opt, 14, reg)
    stamp(a, opt, 15, reg, True)
    a("""
    s_mov_b64 exec, -1
    s_lshl_b32 s98, %s, 11
    s_add_u32 s98, s98, %d
    v_lshl_add_u32 %s, %s, 2, s98
    global_store_dword %s, %s, %s
    """ % (wg, WS_DBG + extra, v(tmp), v(tid), v(tmp), v(reg), base))


def scan64(a, r, fill=None):
    steps = ["row_shr:%d row_mask:0xf" % sh for sh in (1, 2, 4, 8)] + ["row_bcast:15 row_mask:0xa", "row_bcast:31 row_mask:0xc"]
    for i, st in enumerate(steps):
        a(*(fill[2 * i:2 * i + 2] if fill else ["s_nop 1"]))
        a("v_add_u32_dpp %s, %s, %s %s bank_mask:0xf" % (v(r), v(r), v(r), st))


K1_GRID = 456


def gen_k1(a, opt):
    st = opt.get("k1_store", "").replace("+", " ")
    STV = 100

    def fin():
        stamp(a, opt, 13, STV)
        stamp_store(a, opt, STV, 101, 0, "s[20:21]", "s38", 0x100000)
        a("s_endpgm")
    a("""
    prep_kernel:
    s_cmp_ge_u32 s2, #(K1_GRID)
    s_cbranch_scc1 K1_END
    s_load_dwordx16 s[4:19], s[0:1], 0
    s_load_dwordx2 s[20:21], s[0:1], 80
    v_lshrrev_b32 v1, 6, v0
    v_and_b32 v2, 63, v0
    v_readfirstlane_b32 s3, v1
    """)
    if opt.get("stamps"):
        a("s_mov_b32 s38, s2")
        stamp(a, opt, 0, STV, True)
        stamp(a, opt, 1, STV)
    if opt.get("gemm_first"):
        a("""
        s_cmp_lt_u32 s2, 200
        s_cbranch_scc1 K1_GEMM
        s_sub_u32 s2, s2, 200
        """)
    else:
        a("""
        s_cmp_ge_u32 s2, 256
        s_cbranch_scc1 K1_GEMM
        """)
    a("""
    s_cmp_ge_u32 s2, #(NCH)
    s_cbranch_scc1 K1_IMG
    s_cmp_eq_u32 s3, 7
    s_cbranch_scc1 K1_EXTRA
    """)
    a("""
    v_lshlrev_b32 v3, 2, v0
    v_mov_b32 v4, 0
    ds_write_b32 v3, v4
    v_cmp_gt_u32 vcc, 400, v0
    s_mul_i32 s24, s2, #(CH*4)
    v_lshl_add_u32 v4, v0, 4, s24
    v_lshrrev_b32 v5, 1, v4
    s_mov_b64 s[22:23], vcc
    s_waitcnt lgkmcnt(0)
    s_mov_b64 exec, s[22:23]
    """)
    ld = opt.get("k1_ld", "nt").replace("+", " ")
    late = opt.get("k1_late", 0)
    l2 = ["global_load_dwordx4 v[12:15], v4, s[10:11] " + ld, "global_load_dwordx2 v[16:17], v5, s[8:9] " + ld]
    a("global_load_dwordx4 v[8:11], v4, s[12:13] " + ld)
    if not late:
        a(*l2)
    a("""
    s_mov_b32 s25, -49
    s_mov_b32 s26, 0x01000100
    s_mov_b32 s27, 0x03020302
    v_mov_b32 v6, 1
    s_barrier
    s_waitcnt vmcnt(%d)
    """ % (0 if late else 2))
    if late:
        a(*l2)
    stamp(a, opt, 2, STV)
    for k in range(4):
        a("v_mul_u32_u24 %s, 21400, %s" % (v(28 + k), v(8 + k)))
        a("v_lshrrev_b32 %s, 20, %s" % (v(28 + k), v(28 + k)))
        a("v_mad_i32_i24 %s, %s, s25, %s" % (v(8 + k), v(28 + k), v(8 + k)))
        a("v_lshlrev_b32 %s, 2, %s" % (v(28 + k), v(28 + k)))
        a("ds_add_rtn_u32 %s, %s, v6" % (v(32 + k), v(28 + k)))
    a("""
    s_mov_b64 exec, -1
    v_lshlrev_b32 v3, 4, v2
    s_waitcnt lgkmcnt(0)
    s_barrier
    ds_read_b128 v[36:39], v3
    s_waitcnt lgkmcnt(0)
    """)
    stamp(a, opt, 3, STV)
    a("""
    v_add_u32 v40, v36, v37
    v_add3_u32 v40, v40, v38, v39
    v_mov_b32 v41, v40
    """)
    scan64(a, 41)
    a("""
    v_sub_u32 v40, v41, v40
    v_add_u32 v41, v40, v36
    v_add_u32 v42, v41, v37
    v_add_u32 v43, v42, v38
    ds_write_b128 v3, v[40:43] offset:1024
    s_mov_b64 exec, s[22:23]
    """)
    for k in range(4):
        a("ds_read_b32 %s, %s offset:1024" % (v(28 + k), v(28 + k)))
    a("s_waitcnt vmcnt(0)")
    for k in range(4):
        a("v_lshl_or_b32 %s, %s, 19, %s" % (v(20 + 2 * k), v(8 + k), v(12 + k)))
        a("v_perm_b32 %s, %s, %s, %s" % (v(21 + 2 * k), v(16 + k // 2), v(16 + k // 2), s(26 + (k & 1))))
    for k in range(4):
        a("s_waitcnt lgkmcnt(3)")
        a("v_add_lshl_u32 %s, %s, %s, 3" % (v(28 + k), v(28 + k), v(32 + k)))
        a("ds_write_b64 %s, %s offset:2048" % (v(28 + k), v(20 + 2 * k, 2)))
    a("""
    s_cmp_lg_u32 s3, 6
    s_cbranch_scc1 K1_NOT
    s_mov_b64 exec, -1
    v_lshl_or_b32 v36, v36, 16, v40
    v_lshl_or_b32 v37, v37, 16, v41
    v_lshl_or_b32 v38, v38, 16, v42
    v_lshl_or_b32 v39, v39, 16, v43
    s_and_b32 s24, s2, 7
    s_lshl_b32 s24, s24, 5
    s_lshr_b32 s28, s2, 3
    s_add_u32 s24, s24, s28
    s_lshl_b32 s24, s24, 2
    s_add_u32 s24, s24, #(WS_T)
    v_lshl_add_u32 v3, v2, 12, s24
    global_store_dword v3, v36, s[20:21]
    global_store_dword v3, v37, s[20:21] offset:1024
    global_store_dword v3, v38, s[20:21] offset:2048
    global_store_dword v3, v39, s[20:21] offset:3072
    s_mov_b64 exec, s[22:23]
    K1_NOT:
    v_lshlrev_b32 v3, 4, v0
    s_mul_i32 s24, s2, #(CH*8)
    s_add_u32 s24, s24, #(WS_REC)
    v_add_u32 v4, s24, v3
    v_add_u32 v5, 6400, v4
    s_waitcnt lgkmcnt(0)
    s_barrier
    ds_read_b128 v[12:15], v3 offset:2048
    ds_read_b128 v[16:19], v3 offset:#(2048+6400)
    s_waitcnt lgkmcnt(1)
    global_store_dwordx4 v4, v[12:15], s[20:21] %s
    s_waitcnt lgkmcnt(0)
    global_store_dwordx4 v5, v[16:19], s[20:21] %s
    """ % (st, st))
    fin()
    a("""
    K1_EXTRA:
    s_mul_i32 s24, s2, 50
    v_add_u32 v3, s24, v2
    v_mul_u32_u24 v4, 6, v3
    v_lshlrev_b32 v3, 4, v3
    v_add_u32 v3, #(WS_POS), v3
    s_waitcnt lgkmcnt(0)
    s_bfm_b64 exec, 50, 0
    global_load_ushort v8, v4, s[6:7]
    global_load_ushort v9, v4, s[6:7] offset:2
    global_load_ushort v10, v4, s[6:7] offset:4
    s_mov_b64 exec, -1
    s_barrier
    s_cmp_ge_u32 s2, 96
    s_cbranch_scc1 K1_XPOS
    s_cmp_ge_u32 s2, 32
    s_cbranch_scc1 K1_XWH
    v_and_b32 v5, 15, v2
    s_lshr_b32 s24, s2, 2
    s_lshl_b32 s24, s24, 4
    v_add_lshl_u32 v5, v5, s24, 1
    v_lshrrev_b32 v6, 4, v2
    v_lshlrev_b32 v6, 1, v6
    s_movk_i32 s26, 0x9c
    v_bfe_u32 v6, s26, v6, 2
    s_and_b32 s25, s2, 3
    s_lshl_b32 s25, s25, 13
    v_lshl_add_u32 v5, v6, 11, v5
    v_add_u32 v5, s25, v5
    """)
    for j in range(8):
        a("global_load_ushort %s, v5, s[14:15] offset:%d" % (v(12 + j), j * 256))
    a("""
    s_lshl_b32 s24, s2, 10
    s_add_u32 s24, s24, #(WS_WF)
    v_lshl_add_u32 v7, v2, 4, s24
    s_branch K1_XWST
    K1_XWH:
    s_sub_u32 s24, s2, 32
    s_bfe_u32 s25, s24, 0x20003
    s_lshl_b32 s25, s25, 5
    s_and_b32 s26, s24, 1
    s_lshl_b32 s26, s26, 4
    s_add_u32 s25, s25, s26
    s_bfe_u32 s26, s24, 0x20001
    s_lshl_b32 s26, s26, 2
    s_add_u32 s25, s25, s26
    v_and_b32 v6, 3, v2
    v_add_lshl_u32 v5, v6, s25, 1
    v_lshrrev_b32 v4, 2, v2
    v_lshlrev_b32 v7, 4, v4
    v_lshl_add_u32 v7, v6, 8, v7
    s_lshl_b32 s24, s24, 10
    s_add_u32 s24, s24, #(WS_Q+NQ*256)
    v_add_u32 v7, s24, v7
    s_cmp_ge_u32 s2, 64
    s_cbranch_scc1 K1_XW2
    v_lshl_add_u32 v5, v4, 11, v5
    """)
    for j in range(8):
        a("global_load_ushort %s, v5, s[18:19] offset:%d" % (v(12 + j), j * 256))
    a("""
    s_branch K1_XWST
    K1_XW2:
    v_and_b32 v6, 7, v4
    v_lshl_add_u32 v5, v6, 10, v5
    v_lshrrev_b32 v6, 3, v4
    v_lshl_add_u32 v5, v6, 14, v5
    v_add_u32 v5, 32768, v5
    v_add_u32 v6, 8192, v5
    """)
    for j in range(8):
        a("global_load_ushort %s, %s, s[18:19] offset:%d" % (v(12 + j), v(5 + (j & 1)), (j >> 1) * 256))
    a("""
    K1_XWST:
    s_barrier
    s_waitcnt vmcnt(0)
    v_lshl_or_b32 v12, v13, 16, v12
    v_lshl_or_b32 v13, v15, 16, v14
    v_lshl_or_b32 v14, v17, 16, v16
    v_lshl_or_b32 v15, v19, 16, v18
    global_store_dwordx4 v7, v[12:15], s[20:21] %s
    s_branch K1_XP2
    K1_XPOS:
    s_barrier
    s_waitcnt vmcnt(0)
    K1_XP2:
    s_bfm_b64 exec, 50, 0
    v_lshlrev_b32 v8, 16, v8
    v_lshlrev_b32 v9, 16, v9
    v_lshlrev_b32 v10, 16, v10
    v_mov_b32 v11, 0
    global_store_dwordx4 v3, v[8:11], s[20:21] %s
    s_barrier
    """ % (st, st))
    fin()
    a("""
    K1_IMG:
    s_cmp_lg_u32 s2, #(NCH)
    s_cbranch_scc1 K1_TAB
    v_and_b32 v3, 255, v0
    v_lshlrev_b32 v4, 1, v3
    v_add_u32 v4, 65536, v4
    v_and_b32 v5, 127, v0
    v_lshlrev_b32 v6, 1, v5
    s_waitcnt lgkmcnt(0)
    global_load_ushort v8, v4, s[14:15]
    global_load_ushort v9, v6, s[16:17]
    v_lshlrev_b32 v4, 3, v0
    v_mov_b32 v10, 0
    v_mov_b32 v11, 0
    ds_write_b64 v4, v[10:11]
    v_bfe_u32 v7, v0, 7, 1
    v_mul_u32_u24 v7, #(2*RS), v7
    v_add_u32 v7, v7, v6
    v_and_b32 v12, 31, v0
    v_lshlrev_b32 v12, 4, v12
    v_bfe_u32 v13, v0, 5, 2
    v_lshl_add_u32 v12, v13, 2, v12
    v_and_b32 v13, 7, v0
    v_mul_u32_u24 v13, 18, v13
    v_mov_b32 v14, 0x3f80
    s_waitcnt lgkmcnt(0)
    s_barrier
    ds_write_b16 v13, v14 offset:#(L_LUTC-L_IMG)
    s_waitcnt vmcnt(0)
    v_lshlrev_b32 v8, 16, v8
    v_mul_f32 v8, #(f32(-LOG2E)), v8
    v_cvt_pk_bf16_f32 v10, v8, v8
    v_and_b32 v11, 0xffff0000, v10
    v_sub_f32 v8, v8, v11
    v_cvt_pk_bf16_f32 v11, v8, v8
    v_lshlrev_b32 v9, 16, v9
    v_mul_f32 v9, #(f32(-LN2*2.0**-KEXP)), v9
    ds_write_b16 v7, v10 offset:#(L_WZ+4*RS-L_IMG)
    ds_write_b16 v7, v11 offset:#(L_WZ+5*RS-L_IMG)
    ds_write_b32 v12, v9 offset:#(L_WX-L_IMG)
    s_waitcnt lgkmcnt(0)
    s_barrier
    ds_read_b64 v[10:11], v4
    v_add_u32 v4, #(WS_IMG), v4
    s_waitcnt lgkmcnt(0)
    global_store_dwordx2 v4, v[10:11], s[20:21]
    s_endpgm
    K1_TAB:
    s_cmp_lg_u32 s2, #(NCH+1)
    s_cbranch_scc1 K1_END
    s_cmp_lg_u32 s3, 0
    s_cbranch_scc1 K1_END
    v_and_b32 v3, 31, v2
    v_lshrrev_b32 v4, 5, v2
    v_bfe_u32 v5, v2, 2, 2
    v_and_b32 v6, 3, v2
    v_bfe_u32 v7, v2, 4, 1
    v_lshrrev_b32 v8, 4, v2
    v_and_b32 v9, 15, v2
    v_lshrrev_b32 v10, 2, v2
    v_lshlrev_b32 v11, 3, v6
    v_lshl_add_u32 v11, v7, 5, v11
    v_xor_b32 v12, v5, v4
    v_lshlrev_b32 v12, 4, v12
    v_lshlrev_b32 v16, 1, v8
    s_movk_i32 s24, 0x9c
    v_bfe_u32 v16, s24, v16, 2
    v_xor_b32 v16, v16, v5
    v_lshlrev_b32 v16, 4, v16
    v_lshl_add_u32 v16, v9, 6, v16
    v_add_u32 v16, #(L_H), v16
    v_mul_u32_u24 v17, #(RS), v9
    v_lshl_add_u32 v17, v8, 3, v17
    v_lshlrev_b32 v18, 4, v3
    v_mov_b32 v19, 0
    v_mul_u32_u24 v20, 72, v3
    v_add_u32 v20, #(L_S), v20
    v_lshl_add_u32 v21, v4, 2, v5
    v_mul_u32_u24 v21, 72, v21
    v_add_u32 v21, v21, v11
    v_add_u32 v21, #(L_S), v21
    v_lshl_add_u32 v22, v4, 8, v11
    v_bfe_u32 v13, v2, 3, 1
    v_lshl_add_u32 v22, v13, 6, v22
    s_mov_b32 exec_lo, 0x0f0f0f0f
    s_mov_b32 exec_hi, 0x0f0f0f0f
    v_mov_b32 v22, 0x40000
    s_mov_b64 exec, -1
    v_mul_u32_u24 v23, #(RS), v5
    v_mul_u32_u24 v13, #(L_P-L_WZ), v4
    v_add3_u32 v23, v23, v11, v13
    v_add_u32 v23, #(L_WZ), v23
    v_xor_b32 v24, v6, v8
    v_lshlrev_b32 v24, 4, v24
    v_lshl_add_u32 v24, v10, 8, v24
    v_lshl_add_u32 v24, v6, 28, v24
    v_add_u32 v24, #(NQ*256), v24
    v_add_u32 v25, 4096, v24
    v_mul_u32_u24 v26, #(L_POSD-L_LUTC), v4
    v_sub_u32 v26, #(L_POSD), v26
    v_lshlrev_b32 v27, 3, v10
    v_add_u32 v27, #(L_REC), v27
    v_lshlrev_b32 v28, 3, v3
    v_add_u32 v28, #(L_REC), v28
    v_lshl_add_u32 v29, v5, 1, v4
    v_lshl_add_u32 v29, v29, 2, v6
    v_lshlrev_b32 v29, 2, v29
    v_mul_u32_u24 v30, #(RS), v3
    v_lshl_add_u32 v30, v4, 4, v30
    v_lshl_add_u32 v31, v3, 6, v12
    v_add_u32 v31, #(L_G), v31
    v_mul_u32_u24 v32, 80, v3
    v_lshl_add_u32 v32, v4, 5, v32
    v_mul_u32_u24 v33, 80, v10
    v_lshl_add_u32 v33, v6, 4, v33
    v_lshlrev_b32 v34, 8, v10
    v_lshl_add_u32 v34, v6, 4, v34
    v_lshlrev_b32 v35, 2, v2
    v_mul_u32_u24 v36, #(RS), v4
    v_lshl_add_u32 v36, v3, 2, v36
    v_mov_b32 v37, v4
    v_lshl_add_u32 v38, v9, 6, v12
    v_lshl_add_u32 v38, v7, 12, v38
    v_add_u32 v38, #(L_H), v38
    v_mul_u32_u24 v39, 48, v4
    v_xor_b32 v39, v39, v38
    v_lshlrev_b32 v13, 4, v2
    v_add_u32 v13, #(WS_IMG+4096), v13
    v_add_u32 v14, 4096, v13
    s_waitcnt lgkmcnt(0)
    global_store_dwordx4 v13, v[16:19], s[20:21]
    global_store_dwordx4 v13, v[20:23], s[20:21] offset:1024
    global_store_dwordx4 v13, v[24:27], s[20:21] offset:2048
    global_store_dwordx4 v13, v[28:31], s[20:21] offset:3072
    global_store_dwordx4 v14, v[32:35], s[20:21]
    global_store_dwordx4 v14, v[36:39], s[20:21] offset:1024
    s_endpgm
    """)
    a("K1_GEMM:")
    if not opt.get("gemm_first"):
        a("s_sub_u32 s2, s2, 256")
    a("""
    s_and_b32 s22, s2, 7
    s_lshr_b32 s39, s2, 3
    s_mul_i32 s2, s22, 49
    s_lshl_b32 s22, s39, 1
    s_add_u32 s2, s2, s22
    v_lshrrev_b32 v3, 4, v2
    v_lshlrev_b32 v4, 2, v3
    v_and_b32 v5, 15, v2
    v_xor_b32 v4, v4, v5
    v_lshlrev_b32 v4, 4, v4
    v_lshl_add_u32 v4, v3, 8, v4
    s_lshl_b32 s22, s3, 12
    s_add_u32 s23, s22, 32768
    v_and_b32 v5, 3, v2
    v_xor_b32 v5, v5, v3
    v_lshlrev_b32 v5, 4, v5
    v_lshrrev_b32 v6, 2, v2
    v_lshl_add_u32 v5, v6, 8, v5
    s_lshr_b32 s24, s3, 1
    s_lshl_b32 s25, s2, 1
    s_add_u32 s25, s25, s24
    s_lshl_b32 s25, s25, 12
    s_and_b32 s26, s3, 1
    s_lshl_b32 s27, s26, 7
    s_add_u32 s25, s25, s27
    s_lshr_b32 s27, s3, 2
    s_lshl_b32 s27, s27, 13
    s_lshl_b32 s26, s26, 12
    s_add_u32 s27, s27, s26
    s_and_b32 s24, s24, 1
    s_lshl_b32 s24, s24, 10
    s_add_u32 s27, s27, s24
    s_add_u32 s27, s27, 32768
    s_waitcnt lgkmcnt(0)
    s_mov_b32 s28, s4
    s_mov_b32 s29, s5
    s_mov_b32 s30, #(N*256)
    s_mov_b32 s31, 0x20000
    s_mov_b32 s32, s14
    s_mov_b32 s33, s15
    s_mov_b32 s34, #(258*256)
    s_mov_b32 s35, 0x20000
    s_mov_b32 m0, s27
    v_add_u32 v5, s25, v5
    buffer_load_dwordx4 v5, s[28:31], 0 offen %s lds
    s_add_u32 m0, s27, #(2048-64)
    s_nop 0
    buffer_load_dwordx4 v5, s[28:31], 0 offen offset:64 %s lds
    s_mov_b32 m0, s22
    s_nop 0
    """ % ((opt.get("k1_hld", "nt").replace("+", " "),) * 2))
    if opt.get("k1x", 0) & 1:
        for i in range(opt.get("k1xn", 4)):
            a("buffer_load_dwordx4 v4, s[32:35], s22 offen offset:%d lds" % (i * 1024))
    for i in range(4):
        a("buffer_load_dwordx4 v4, s[32:35], s23 offen offset:%d lds" % (i * 1024))
    a("""
    s_and_b32 s24, s3, 3
    s_lshr_b32 s26, s3, 2
    v_bfe_u32 v6, v2, 2, 2
    v_xor_b32 v7, s24, v6
    v_lshlrev_b32 v7, 6, v7
    v_lshl_add_u32 v7, v6, 8, v7
    v_lshrrev_b32 v8, 5, v2
    v_lshl_add_u32 v7, v8, 11, v7
    v_and_b32 v9, 1, v2
    v_lshl_add_u32 v7, v9, 5, v7
    v_bfe_u32 v9, v2, 4, 1
    v_lshl_add_u32 v7, v9, 4, v7
    v_bfe_u32 v10, v2, 1, 1
    v_lshl_add_u32 v7, v10, 3, v7
    v_xor_b32 v6, v6, v8
    v_lshlrev_b32 v6, 4, v6
    v_and_b32 v10, 15, v2
    v_lshl_add_u32 v6, v10, 6, v6
    v_lshl_add_u32 v6, v9, 10, v6
    s_lshl_b32 s27, s26, 13
    s_add_u32 s27, s27, 32768
    v_add_u32 v6, s27, v6
    v_xor_b32 v11, 32, v6
    s_mul_i32 s27, s3, 2560
    s_add_u32 s27, s27, 49152
    v_and_b32 v10, 31, v2
    v_mul_u32_u24 v12, 80, v10
    v_lshl_add_u32 v12, v8, 5, v12
    v_add_u32 v12, s27, v12
    v_lshrrev_b32 v10, 2, v2
    v_mul_u32_u24 v13, 80, v10
    v_and_b32 v9, 3, v2
    v_lshl_add_u32 v13, v9, 4, v13
    v_add_u32 v13, s27, v13
    v_lshlrev_b32 v14, 8, v10
    v_lshl_add_u32 v14, v9, 4, v14
    s_add_u32 s25, s2, s26
    s_lshl_b32 s25, s25, 13
    s_lshl_b32 s24, s24, 6
    s_add_u32 s25, s25, s24
    v_add_u32 v14, s25, v14
    v_add_u32 v15, 4096, v14
    s_mov_b32 s36, #(f32(-LOG2E))
    s_mov_b32 s37, s36
    s_lshl_b32 s39, s39, 1
    s_add_u32 s39, s39, s26
    s_waitcnt vmcnt(0)
    s_barrier
    s_cmp_ge_u32 s39, 49
    s_cbranch_scc1 K1_GEND
    """)
    stamp(a, opt, 2, STV)
    A0, B0, DD = 32, 64, 16

    def rd(ks):
        a("ds_read_b64_tr_b16 %s, v7 offset:%d" % (v(A0 + 4 * ks, 2), ks * 4096))
        a("ds_read_b64_tr_b16 %s, v7 offset:%d" % (v(A0 + 4 * ks + 2, 2), ks * 4096 + 1024))
        a("ds_read_b128 %s, %s offset:%d" % (v(B0 + 4 * ks, 4), "v11" if ks & 1 else "v6", (ks >> 1) * 2048))
    for rep in range(2 if opt.get('k1x', 0) & 2 else 1):
        for ks in range(4):
            rd(ks)
        for ks in range(8):
            if ks + 4 < 8:
                rd(ks + 4)
            a("s_waitcnt lgkmcnt(%d)" % (3 * min(4, 7 - ks)))
            a(mfma(DD, A0 + 4 * ks, B0 + 4 * ks, None if ks == 0 else DD))
        a("s_nop 11")
        for i in range(8):
            a("v_pk_mul_f32 %s, %s, s[36:37]" % (v(DD + 2 * i, 2), v(DD + 2 * i, 2)))
        for i in range(8):
            a("v_cvt_pk_bf16_f32 %s, %s, %s" % (v(A0 + i), v(DD + 2 * i), v(DD + 2 * i + 1)))
        a("""
        ds_write_b128 v12, v[32:35]
        ds_write_b128 v12, v[36:39] offset:16
        ds_read_b128 v[40:43], v13
        ds_read_b128 v[44:47], v13 offset:1280
        s_waitcnt lgkmcnt(1)
        global_store_dwordx4 v14, v[40:43], s[20:21] %s
        s_waitcnt lgkmcnt(0)
        global_store_dwordx4 v15, v[44:47], s[20:21] %s
        """ % (st, st))
        if opt.get("k1x", 0) & 2:
            a("v_add_u32 v14, 0x2000000, v14", "v_add_u32 v15, 0x2000000, v15", "s_nop 1")
    a("""
    K1_GEND:
    """)
    fin()
    a("K1_END:", "s_endpgm")


def silu_ops(Y, ng):
    ex = ["v_exp_f32 %s, %s" % (v(EE + i), v(Y + i)) for i in range(4 * ng)]
    r1, r2, r3 = [], [], []
    for g in range(ng):
        r1.append("v_pk_fma_f32 %s, %s, $K:2, $K:2" % (v(TT + 2 * g, 2), v(EE + 4 * g, 2)))
    for g in range(ng):
        r1.append("v_pk_fma_f32 %s, %s, %s, %s" % (v(TT + 2 * g, 2), v(TT + 2 * g, 2), v(EE + 4 * g + 2, 2), v(TT + 2 * g, 2)))
    for i in range(2 * ng):
        r2.append("v_rcp_f32 %s, %s" % (v(TT + i), v(TT + i)))
    for g in range(ng):
        for p in range(2):
            y = v(Y + 4 * g + 2 * p, 2)
            r3.append("v_pk_mul_f32 %s, %s, %s" % (y, y, v(TT + 2 * g, 2)))
    for g in range(ng):
        for p in range(2):
            y = v(Y + 4 * g + 2 * p, 2)
            r3.append("v_pk_fma_f32 %s, %s, %s, %s" % (y, y, v(EE + 4 * g + 2 * (1 - p), 2), y))
    return ex, r1, r2, r3


SHORT = ("v_exp_f32", "v_rcp_f32", "v_sub_f32", "v_add_u32", "v_mov_b32", "v_mul_f32", "v_fmac_f32", "v_add_f32")


def align8(run):
    out, grp = [], []

    def flush():
        if len(grp) % 2:
            for i in range(len(grp) - 1, -1, -1):
                op = grp[i].split()[0]
                if op in SHORT:
                    grp[i] = grp[i].replace(op, op + "_e64", 1)
                    break
            else:
                grp.append("s_nop 0")
        out.extend(grp)
        del grp[:]
    for ins in run:
        op = ins.split()[0]
        if op in SHORT or op in ("s_setprio", "s_nop"):
            grp.append(ins)
        else:
            flush()
            out.append(ins)
    flush()
    return out


def cvts(Dp, n):
    return ["v_cvt_pk_bf16_f32 %s, %s, %s" % (v(PP + i), v(Dp + 2 * i), v(Dp + 2 * i + 1)) for i in range(n)]


def dma(a, slot, wait=None):
    for r in range(2):
        a("s_add_u32 m0, $GW, %d" % (slot * 2048 + r * 1024 - slot * 64))
        a("s_nop 0" if wait is None or r else "s_waitcnt lgkmcnt(%d)" % wait)
        a("buffer_load_dwordx4 @DA+%d, $Q:4, 0 offen offset:%d lds" % (r, slot * 64))


def cq_read(a, slot, n=8):
    for i in range(n):
        a("ds_read_b64_tr_b16 @CQ+%d:2, @Cq offset:%d" % (2 * i, slot * 2048 + (i >> 1) * 512 + (i & 1) * 128))


STUBS = []


def rare_call(a, tag, target):
    a("s_cbranch_scc1 K2_X%s" % tag, "K2_R%s:" % tag)
    STUBS.append("K2_X%s:\ns_call_b64 $RET:2, %s\ns_waitcnt lgkmcnt(0)\ns_branch K2_R%s" % (tag, target, tag))


def logic(a, tag):
    a("""
    s_add_u32 $P2, $P1, 32
    s_min_u32 $E, $P2, $END
    s_sub_u32 $A, $E, $P1
    s_bfm_b64 $MASK:2, $A, 0
    """)
    if tag == "P":
        a("s_call_b64 $RET:2, K2_REBASE")
    else:
        a("s_cmp_gt_u32 $E, $WEND")
        rare_call(a, "REB" + tag, "K2_REBASE")
    a("""
    s_sub_u32 $D8, $P2, $P1
    s_lshl_b32 $D8, $D8, 3
    s_cmp_lt_u32 $P2, $END
    s_cselect_b32 $SEL, $SEL, #(SELW)
    """)


GEOM_A = ["v_sub_f32 @TT+%d, @TT+%d, @GP+%d" % (i, i, i) for i in range(3)]
GEOM_B = ["v_cvt_pk_bf16_f32 @A3, @TT, @TT+1", "v_cvt_pk_bf16_f32 @A3+1, @TT+2, $K"]
GEOM_C = ["v_dot2_f32_bf16 @A3+2, @A3, @A3, 0", "v_dot2_f32_bf16 @A3+2, @A3+1, @A3+1, @A3+2"]
GEOM_D = ["v_cvt_pk_bf16_f32 @A3+2, @A3+2, @A3+2"]
PERMS = ["v_perm_b32 @DA+%d, @TT+%d, @WA+%d, $SEL" % (r, 4 + r, r) for r in range(2)]


def a3_reads(a):
    a("""
    s_mov_b32 exec_lo, 0
    ds_read_b128 @A3:4, @X
    s_not_b64 exec, exec
    ds_read_b32 @A3+3, @Rec offset:4
    s_mov_b64 exec, -1
    """)


def gather_pos(a):
    a("""
    s_mov_b32 exec_hi, 0
    buffer_load_dwordx3 @GP:3, @GP, $POS:4, 0 idxen
    s_mov_b32 exec_hi, -1
    """)


def step(a, half, opt):
    tag = "H" if half else "F"
    useprio = opt.get("prio", 1)
    for t in range(4):
        D, Dn = (D0, D1) if t % 2 == 0 else (D1, D0)
        slot = (t + 1) & 3
        last = half and t == 3
        if t > 0 and useprio:
            a("s_setprio 0")
        w = ([6, 6, 6, None] if half else [6, 7, 4, None])[t]
        a("s_cmp_lg_u32 $SAFE, 0")
        rare_call(a, "SAFE%s%d" % (tag, t), "K2_CLAMP%d" % (t & 1))
        if t == 1:
            a("s_cmp_lg_u32 $FLUSH, 0")
            rare_call(a, "FL" + tag, "K2_FLUSH")
        if t == 3 and not half:
            a("s_cmp_lg_u32 $REB, 0")
            rare_call(a, "B3", "K2_B3LOAD")
        if t == 0 and not half:
            a("ds_read_u16 @GP, @Rec")
        if w is not None:
            a("s_waitcnt vmcnt(%d)" % w)
        if not last:
            cq_read(a, slot, 4 if half else 8)
        nother = 0
        if t == 0:
            a("""
            s_mov_b64 exec, $MASK:2
            ds_write_b64 @S, @A3:2
            s_mov_b64 exec, -1
            """)
            nother = 1
            if not half:
                a("ds_read_u16 @Nn, @Rec offset:2")
                nother = 2
        if t == 1:
            nother = 2 if half else 5
            for i in range(2 if half else 4):
                a("ds_read_b64_tr_b16 @A2+%d:2, @A2a offset:%d" % (2 * i, i * 576))
            if not half:
                a("""
                s_mov_b64 exec, $MASK:2
                ds_write_b64 @S, @B3:2
                s_mov_b64 exec, -1
                """)
                logic(a, tag)
        if t == 2 and not half:
            a("ds_read_b96 @TT:3, @X")
            a("ds_read2_b32 @TT+4:2, @Idx offset0:0 offset1:32")
            nother = 2
        if t == 3 and not half:
            a3_reads(a)
            nother = 2
        if not last:
            if t == 0 and not half:
                a("s_waitcnt lgkmcnt(10)")
                gather_pos(a)
            dma(a, slot, nother)
            if nother:
                a("s_waitcnt lgkmcnt(0)")
        accp = ACC + 16 * ((t + 3) & 3)
        S2a = mfma(accp, A2, PP, accp)
        S2b = mfma(accp, A2 + 4, PP + 4, accp)
        S1 = mfma(Dn, A3, B3 + 4 * slot, CQ)
        ex, r1, r2, r3 = silu_ops(D, 2 if half else 4)
        pre, mid, late, fin = [], [], [], []
        pr = ["s_setprio 1"] if useprio else []
        if not half:
            if t == 1:
                mid = ["v_lshl_add_u32 @X, @Nn, 1, @Xb", "v_add_u32 @S, @Nn, @Sb", "v_add_u32 @Idx, $D8, @Idx"]
            if t == 2:
                mid, late, fin = GEOM_A + PERMS + GEOM_B, GEOM_C, GEOM_D
            if t == 3:
                mid = ["v_add_u32 @Rec, $D8, @Rec"]
            cv = cvts(Dn, 8)
            run = cv[:6] + [S2a] + cv[6:] + ex[:2] + [S1] + pr + ex[2:5] + [S2b] + mid + ex[5:]
            run += late + r1 + fin + r2 + r3
        else:
            if t == 0:
                cv = cvts(Dn, 8)
                run = cv[:6] + [S2a] + cv[6:] + ex[:2] + [S1] + pr + ex[2:] + r1 + [S2b] + r2 + r3
            elif not last:
                cv = cvts(Dn, 4)
                run = cv + [S1] + pr + ex[:3] + [S2a] + ex[3:] + r1 + r2 + r3
            else:
                cv = cvts(Dn, 4)
                run = cv + ex[:2] + [S2a] + pr + ex[2:] + r1 + r2 + r3
        if opt.get("align", 1):
            a(".p2align 3")
            run = align8(run)
        a(*run)


def u_part():
    f, r = [], []
    for t in range(4):
        for g in range(4):
            for c in range(3):
                f.append("%s %s, %s, @WX+%d" % ("v_fmac_f32" if t else "v_mul_f32", v(EE + 4 * g + c), v(ACC + 16 * t + 4 * g + c), t))
    for g in range(4):
        for c in range(3):
            r.append("v_add_f32_dpp %s, %s, %s row_ror:8 row_mask:0xf bank_mask:%s" % (
                v(TT + (g & 1) * 3 + c), v(EE + 4 * g + c), v(EE + 4 * g + c), "0x3" if g < 2 else "0xc"))
    for c in range(3):
        r.append("v_add_f32_dpp @EE+%d, @TT+%d, @TT+%d row_shl:4 row_mask:0xf bank_mask:0x5" % (c, c, c))
    for c in range(3):
        r.append("v_add_f32_dpp @EE+%d, @TT+%d, @TT+%d row_shr:4 row_mask:0xf bank_mask:0xa" % (c, 3 + c, 3 + c))
    for qp in ("[1,0,3,2]", "[2,3,0,1]"):
        for c in range(3):
            r.append("v_add_f32_dpp @EE+%d, @EE+%d, @EE+%d quad_perm:%s row_mask:0xf bank_mask:0xf" % (c, c, c, qp))
    r += """v_cndmask_b32 @EE, @EE, @EE+1, $FM:2
    v_cndmask_b32 @EE, @EE, @EE+2, $FM+2:2
    v_mov_b32 @EE+1, @EE
    s_nop 1
    v_permlane16_swap_b32 @EE, @EE+1
    s_nop 0
    v_add_f32 @EE, @EE, @EE+1
    v_add_f32 @T4, @T4, @EE
    v_cmp_u_f32 vcc, @EE, @EE
    ds_write_b32 @T1, @T4 offset:#(L_U)""".split("\n")
    return f, r


U_PRE = """
    s_lshl_b32 $A, $WBO8, 1
    v_add_u32 @T1, $A, @fU
    ds_read_b128 @WX:4, @WXa offset:#(L_WX)
    ds_read_b32 @T4, @T1 offset:#(L_U)
    s_mov_b32 $FM, 0x22222222
    s_mov_b32 $FM+1, 0x22222222
    s_mov_b32 $FM+2, 0x44444444
    s_mov_b32 $FM+3, 0x44444444
"""


def flush_m(a, tag):
    a("""
    v_cmp_gt_u32 vcc, $RE, @Incl
    s_mul_i32 $A, $WBO8, 34
    v_add_u32 @T2, $A, @fM
    s_lshr_b32 $A, $WBO8, 3
    s_bcnt1_i32_b64 $B, vcc
    s_sub_u32 $B, $B, $A
    v_sub_u32 @T3, $B, @Hh
    """)
    for g in range(4):
        a("v_cmp_le_i32 $FM+%d:2, %d, @T3" % (2 * g, 2 * g))
    for p in range(2):
        for g in range(4):
            a("v_cvt_pk_bf16_f32 @PP+%d, %s, %s" % (2 * g + p, v(ACC + 32 * p + 4 * g + 3), v(ACC + 32 * p + 16 + 4 * g + 3)))
    a("""
    s_lshl_b32 $B, $ATOM, 2
    s_or_b32 $B, $B, $CONTO
    s_cbranch_scc0 K2_FLW%s
    s_cmp_lg_u32 $B, 1
    s_cbranch_scc1 K2_FLX%s
    s_mov_b32 $FM, 0
    s_mov_b32 $CN, $A
    v_mov_b32 @CONT, v3
    v_mov_b32 @CONT+1, v19
    v_mov_b32 @CONT+2, v35
    v_mov_b32 @CONT+3, v51
    K2_FLW%s:
    """ % (tag, tag, tag))
    for g in range(4):
        a("s_mov_b64 exec, $FM+%d:2" % (2 * g))
        for p in range(2):
            a("ds_write_b32 @T2, @PP+%d offset:%d" % (2 * g + p, L_M + 2 * g * RS + 128 * p))
    a("K2_FLU%s:" % tag, "s_mov_b64 exec, -1")
    x = """K2_FLX%s:
    s_cmp_eq_u32 $B, 2
    s_cbranch_scc0 K2_FLA%s
    s_mov_b32 $FM, 0
    s_mov_b32 exec_hi, 0
    ds_pk_add_bf16 @T2, @PP offset:#(L_M)
    ds_pk_add_bf16 @T2, @PP+1 offset:#(L_M+128)
    s_branch K2_FLW%s
    K2_FLA%s:
    """ % (tag, tag, tag, tag)
    for g in range(4):
        x += "s_mov_b64 exec, $FM+%d:2\n" % (2 * g)
        for p in range(2):
            x += "ds_pk_add_bf16 @T2, @PP+%d offset:%d\n" % (2 * g + p, L_M + 2 * g * RS + 128 * p)
    x += "s_branch K2_FLU%s" % tag
    STUBS.append(x)


def gen_k2(a, opt):
    ST = VR["ST"]
    a("""
    main_kernel:
    s_cmp_ge_u32 s2, 256
    s_cbranch_scc1 K2_END
    s_load_dwordx2 s[22:23], s[0:1], 80
    s_load_dwordx2 s[4:5], s[0:1], 0
    s_load_dwordx2 s[20:21], s[0:1], 64
    v_mov_b32 @Tid, v0
    v_lshrrev_b32 v1, 6, v0
    s_mov_b32 $BK, s2
    v_readfirstlane_b32 s3, v1
    s_and_b32 $A, s2, 7
    s_lshl_b32 $A, $A, 5
    s_lshr_b32 s2, s2, 3
    s_add_u32 s2, s2, $A
    s_mov_b32 $O, 0
    s_mov_b32 $QUOTA, 24
    s_mov_b32 $SAFE, 0
    s_mov_b32 $FIRST, 1
    K2_ROUND:
    s_setprio 3
    v_and_b32 @L, 63, @Tid
    v_lshrrev_b32 @T0, 2, @Tid
    v_lshlrev_b32 @T0, 3, @T0
    s_lshl_b32 $A, s2, 10
    s_add_u32 $A, $A, #(WS_T)
    v_add_u32 @T0, $A, @T0
    s_waitcnt lgkmcnt(0)
    """)
    stamp(a, opt, 0, ST, True)
    stamp(a, opt, 1, ST)
    lstamp(a, opt, "start")
    a("""
    global_load_dwordx2 @Ta:2, @T0, s[22:23]
    """)
    lstamp(a, opt, "tiss")
    a("""
    s_mov_b32 $Q, s22
    s_mov_b32 $Q+1, s23
    s_mov_b32 $Q+2, #(WS_DBG)
    s_mov_b32 $Q+3, 0x20000
    """)
    NRP = opt.get("recpf", 0)
    if NRP:
        a("""
        s_lshr_b32 $A, $BK, 3
        s_lshl_b32 $A, $A, 3
        s_add_u32 $A, $A, s3
        s_mul_i32 $A, $A, #(CH*8)
        s_and_b32 $B, $BK, 7
        s_mul_i32 $B, $B, 1604
        s_add_u32 $A, $A, $B
        s_add_u32 $A, $A, %d
        v_lshl_add_u32 @T2, @L, 7, $A
        s_bfm_b64 exec, %d, 0
        buffer_load_dword @Pf, @T2, $Q:4, 0 offen
        s_mov_b64 exec, -1
        """ % ((WS_REC + 803 - 64 * (NRP - 1)) & ~3, NRP))
    a("""
    v_lshlrev_b32 @T4, 4, @L
    s_lshl_b32 $A, s3, 10
    s_add_u32 m0, $A, #(L_IMG)
    s_add_u32 $B, $A, #(WS_IMG)
    buffer_load_dwordx4 @T4, $Q:4, $B offen lds
    s_mul_i32 $E, s2, #(NB)
    s_cmp_ge_u32 s3, 3
    s_cbranch_scc1 K2_NOC2
    s_lshl_b32 $D8, $E, 4
    s_add_u32 $D8, $D8, #(WS_POS)
    s_add_u32 $B, $B, 8192
    s_add_u32 $REP, $A, #(L_IMG+8192)
    s_cmp_lt_u32 s3, 2
    s_cselect_b32 m0, $REP, #(L_POSD)
    s_cselect_b32 $B, $B, $D8
    buffer_load_dwordx4 @T4, $Q:4, $B offen lds
    K2_NOC2:
    """)
    lstamp(a, opt, "ciss")
    a("""
    s_mov_b32 $H, s4
    s_mov_b32 $H+1, s5
    s_mov_b32 $H+2, #(N*256)
    s_mov_b32 $H+3, 0x20000
    v_lshrrev_b32 @T3, 4, @L
    v_and_b32 @T1, 3, @L
    v_xor_b32 @T0, @T3, @T1
    v_lshlrev_b32 @T0, 4, @T0
    v_lshrrev_b32 @T2, 2, @L
    v_lshl_add_u32 @T0, @T2, 8, @T0
    s_lshr_b32 $B, s3, 1
    s_lshl_b32 $B, $B, 4
    s_add_u32 $B, $B, $E
    s_lshl_b32 $B, $B, 1
    s_and_b32 $D8, s3, 1
    s_add_u32 $B, $B, $D8
    s_lshl_b32 $B, $B, 7
    s_lshl_b32 $D8, s3, 11
    s_add_u32 m0, $D8, #(L_H)
    v_add_u32 @T0, $B, @T0
    buffer_load_dwordx4 @T0, $H:4, 0 offen lds
    s_add_u32 m0, $D8, #(L_H+1024-64)
    s_lshl_b32 $B, s3, 12
    buffer_load_dwordx4 @T0, $H:4, 0 offen offset:64 lds
    s_add_u32 $WEND, $B, #(WS_WF)
    """)

    def wload(lo, hi):
        for ks in range(lo, hi):
            a("buffer_load_dwordx4 @W1+%d:4, @T4, $Q:4, $WEND offen offset:%d" % (4 * ks, ks * 1024))
    W1PRE = opt.get("w1pre", 1)
    W1MID = opt.get("w1mid", 1)
    wload(0, W1PRE)
    lstamp(a, opt, "hiss")
    a("""
    v_mov_b32 @Z, 0
    v_mov_b32 @Z+1, 0
    v_mov_b32 @Z+2, 0
    v_mov_b32 @Z+3, 0
    s_mul_i32 $WBO8, s3, #(SW)
    v_lshlrev_b32 @T0, 3, @L
    ds_write_b64 @T0, @Z:2
    v_add_u32 @T0, $WBO8, @T4
    v_lshl_add_u32 @Hb1, @L, 2, $WBO8
    ds_write_b128 @T0, @Z:4 offset:#(L_S)
    ds_write_b128 @T0, @Z:4 offset:#(L_S+1024)
    ds_write_b32 @Hb1, @Z offset:#(L_S+2048)
    v_add_u32 @T0, $A, @T4
    s_cmp_eq_u32 $FIRST, 0
    s_cbranch_scc1 K2_NOZU
    ds_write_b128 @T0, @Z:4 offset:#(L_U)
    K2_NOZU:
    """)
    lstamp(a, opt, "zero")
    a("""
    v_lshlrev_b32 @T3, 1, @T3
    s_movk_i32 $B, 0x9c
    v_bfe_u32 @T3, $B, @T3, 2
    v_xor_b32 @T3, @T3, @T2
    v_and_b32 @T3, 3, @T3
    v_and_b32 @Hb1, 15, @L
    v_lshlrev_b32 @Hb1, 6, @Hb1
    v_lshl_add_u32 @Hb1, @T3, 4, @Hb1
    v_add_u32 @Hb1, #(L_H), @Hb1
    v_mul_u32_u24 @Ch, #(CH*16), @T2
    v_lshlrev_b32 @T1, 1, @T1
    v_add_u32 @T1, $O, @T1
    s_mul_i32 $B, s3, #(CH)
    s_add_u32 $B, $B, #(WS_REC//8)
    v_add3_u32 @Ch, @Ch, @T1, $B
    v_add_u32 @T3, #(8*CH), @Ch
    s_cmp_lt_u32 s3, #(NCH-248)
    s_cselect_b32 $P1, 0, 0xf0000000
    s_add_u32 $B, $O, $QUOTA
    """)
    for i in range(4):
        a("v_pk_mov_b32 @A2+%d:2, @Z:2, @Z:2" % (2 * i))
        a("v_pk_mov_b32 @RADDR+%d:2, @Z:2, @Z:2" % (2 * i))
    for i in range(8):
        a("v_bfrev_b32 @RANK+%d, -4.0" % i if False else "v_mov_b32 @RANK+%d, 0x8000" % i)
    NPF = opt.get("qpf", 24)
    if NPF:
        a("""
        s_lshr_b32 $D8, $BK, 3
        s_lshl_b32 $D8, $D8, 3
        s_add_u32 $D8, $D8, s3
        s_mul_i32 $D8, $D8, %d
        s_and_b32 $REP, $BK, 7
        s_add_u32 $REP, $REP, 1
        s_mul_i32 $REP, $REP, #(1568*256)
        s_add_u32 $D8, $D8, $REP
        s_sub_u32 $REP, $D8, #(NQ*256)
        s_cselect_b32 $P2, $D8, $REP
        v_lshlrev_b32 @X, 7, @L
        """ % (NPF * 128))
    a("""
    s_mov_b32 $L2E, #(f32(-LOG2E))
    s_mov_b32 $L2E+1, #(f32(-LOG2E))
    s_add_u32 $POS, s22, #(WS_POS)
    s_addc_u32 $POS+1, s23, 0
    s_or_b32 $POS+1, $POS+1, 0x100000
    s_mov_b32 $POS+2, #(N)
    s_mov_b32 $POS+3, 0x20000
    s_mov_b32 $K, #(f32(2.0**-KEXP))
    s_mov_b32 $K+1, #(f32(2.0**-KEXP))
    s_mov_b32 $OUT, s20
    s_mov_b32 $OUT+1, s21
    s_add_u32 $OUT+2, $E, #(NB)
    s_min_u32 $OUT+2, $OUT+2, #(N)
    s_lshl_b32 $OUT+2, $OUT+2, 8
    s_mov_b32 $OUT+3, 0x20000
    s_xor_b32 $ATOM, $FIRST, 1
    """)
    lstamp(a, opt, "preT")
    a("""
    s_mov_b32 exec_lo, 0
    s_mov_b32 exec_hi, $P1
    s_waitcnt vmcnt(%d)
    v_mov_b32 @Tb, 0
    s_mov_b64 exec, -1
    v_and_b32 @Ra, 0xffff, @Ta
    v_and_b32 @Ra+1, 0xffff, @Tb
    v_lshrrev_b32 @Ta, 16, @Ta
    v_lshrrev_b32 @Tb, 16, @Tb
    v_min_u32 @T0, $B, @Ta
    v_min_u32 @T2, $B, @Tb
    v_sub_u32 @T0, @T0, @T1
    v_sub_u32 @T2, @T2, @T1
    v_add_lshl_u32 @Ra, @Ra, @Ch, 3
    v_add_lshl_u32 @Ra+1, @Ra+1, @T3, 3
    """ % (3 + W1PRE + (1 if NRP else 0)))
    stamp(a, opt, 2, ST)
    lstamp(a, opt, "T")
    slots = [(L, i) for L in range(3) for i in range(2)]
    rem = ("@T0", "@T2")
    for q, (L, i) in enumerate(slots[:4]):
        a("v_cmp_lt_i32 $M+%d:2, %d, %s" % (4 * q, 8 * L, rem[i]))
    for q, (L, i) in enumerate(slots[:4]):
        a("s_mov_b64 exec, $M+%d:2" % (4 * q))
        a("global_load_dwordx4 @REC0+%d:4, @Ra+%d, s[22:23] offset:%d" % (4 * q, i, 64 * L))
    a("""
    s_mov_b64 exec, -1
    v_max_i32 @S, @T0, @T2
    v_cmp_lt_i32 $M+16:2, 16, @S
    """)
    wload(W1PRE, W1PRE + W1MID)
    a("""
    s_cmp_lg_u64 $M+16:2, 0
    s_cbranch_scc1 K2_L20
    K2_L20R:
    """)
    lstamp(a, opt, "r1iss")
    a("""
    s_waitcnt vmcnt(%d) lgkmcnt(0)
    s_barrier
    """ % (4 + W1PRE + W1MID))
    lstamp(a, opt, "barA")
    for k in range(12):
        a("ds_read_b128 %s, @Hb1 offset:%d" % (v(ACC + 4 * k, 4), (k >> 2) * 4096 + (k & 3) * 1024))
    wload(W1PRE + W1MID, 4)
    NLATE = 4 - W1PRE
    for q, (L, i) in enumerate(slots[:4]):
        a("v_cmp_lt_i32 $M+%d:2, %d, %s" % (4 * q + 2, 8 * L + 1, rem[i]))
    a("""
    v_max_u32 @Ch, @Ta, @Tb
    v_cmp_lt_u32 vcc, $B, @Ch
    v_mov_b32 @T3, 1
    s_waitcnt lgkmcnt(4)
    """)
    for k in range(12, 16):
        a("ds_read_b128 %s, @Hb1 offset:%d" % (v(ACC + 4 * k, 4), (k >> 2) * 4096 + (k & 3) * 1024))
    for g, r in enumerate(TABREG):
        a("ds_read_b128 %s, @T4 offset:%d" % (v(r, 4), L_P + g * 1024))
    stamp(a, opt, 3, ST)
    lstamp(a, opt, "hbiss")
    for q in range(8):
        if q % 2 == 0:
            a("s_waitcnt vmcnt(%d)%s" % (NLATE + 3 - q // 2, " lgkmcnt(7)" if q == 0 else ""))
        if q == 0:
            stamp(a, opt, 4, ST)
            lstamp(a, opt, "R1b")
        a("s_mov_b64 exec, $M+%d:2" % (2 * q))
        a("v_lshrrev_b32 @RADDR+%d, 17, @REC0+%d" % (q, 2 * q))
        a("ds_add_rtn_u32 @RANK+%d, @RADDR+%d, @T3" % (q, q))
    M16 = "v_mfma_f32_16x16x32_bf16"
    pm = []
    for ks in range(4):
        for rg in range(4):
            pm.append("%s @EE+%d:4, @W1+%d:4, %s, %s" % (M16, 4 * rg, 4 * ks, v(ACC + 16 * rg + 4 * ks, 4), "0" if ks == 0 else "@EE+%d:4" % (4 * rg)))
    a("""
    s_mov_b64 exec, -1
    s_lshl_b32 $GW, s3, 13
    s_lshl_b32 $B, s3, 5
    s_waitcnt lgkmcnt(8)
    v_add_u32 @WA, $GW, @WA
    v_add_u32 @WA+1, $GW, @WA+1
    v_add_u32 @Pw, $B, @Pw
    s_add_u32 $GW, $GW, #(L_G)
    s_or_b64 $MASK:2, vcc, $M+16:2
    s_cbranch_scc1 K2_L2A
    K2_L2AR:
    """)
    lstamp(a, opt, "hist")
    a("""
    s_waitcnt lgkmcnt(0)
    s_barrier
    """)
    lstamp(a, opt, "barB")
    a("ds_read_b32 @T1, @Us")
    if NPF:
        a("""
        %s
        buffer_load_dword @Pf, @X, $Q:4, $P2 offen
        s_mov_b64 exec, -1
        """ % ("s_bfm_b64 exec, %d, 0" % NPF if NPF < 64 else ""))
    a("s_waitcnt vmcnt(%d)" % (1 if NPF else 0))
    a(*pm[:4])
    a("s_waitcnt lgkmcnt(0)", "v_mov_b32 @Incl, @T1")
    stamp(a, opt, 5, ST)
    lstamp(a, opt, "cnt")
    scan64(a, VR["Incl"], pm[4:])
    lstamp(a, opt, "scan")
    a("""
    v_sub_u32 @Ch, @Incl, @T1
    v_readlane_b32 $TOTAL, @Incl, 63
    ds_write_b32 @Us, @Ch offset:#(L_EXC)
    """)
    for q in range(8):
        a("ds_read_b32 @RADDR+%d, @RADDR+%d offset:#(L_EXC)" % (q, q))
    a("""
    s_cmp_gt_u32 $TOTAL, #(CAP)
    s_cbranch_scc1 K2_OVERFLOW
    """)
    for i in range(8):
        a("v_pk_mul_f32 @EE+%d:2, @EE+%d:2, $L2E:2" % (2 * i, 2 * i))
    for q in range(8):
        a("s_waitcnt lgkmcnt(7)")
        a("v_add_lshl_u32 @RADDR+%d, @RADDR+%d, @RANK+%d, 3" % (q, q, q))
        a("ds_write_b64 @RADDR+%d, @REC0+%d:2 offset:#(L_REC)" % (q, 2 * q))
    lstamp(a, opt, "scat")
    for i in range(8):
        a("v_cvt_pk_bf16_f32 @EE+%d, @EE+%d, @EE+%d" % (i, 2 * i, 2 * i + 1))
    for rg in range(4):
        a("ds_write_b64 @Pw, @EE+%d:2 offset:%d" % (2 * rg, L_P + rg * 16 * RS))
    a("""
    v_add_lshl_u32 @T0, @L, $TOTAL, 3
    ds_write_b64 @T0, @Z:2 offset:#(L_REC)
    s_add_u32 $A, $TOTAL, 15
    s_bfe_u32 $B, $A, 0x30004
    s_lshr_b32 $A, $A, 7
    s_mul_i32 $P1, s3, $A
    s_min_u32 $D8, s3, $B
    s_add_u32 $P1, $P1, $D8
    s_cmp_lt_u32 s3, $B
    s_addc_u32 $END, $P1, $A
    s_lshl_b32 $B, $P1, 7
    s_lshl_b32 $A, $A, 4
    v_subrev_u32 @T1, 1, @T1
    v_cmp_le_u32 vcc, $A, @T1
    v_add_u32 @Idx, $B, @Idx
    v_add_u32 @Rec, $B, @Rec
    s_cmp_lt_u32 $P1, $END
    s_cselect_b32 $SEL, #(SELQ-SELW), 0
    s_add_u32 $SEL, $SEL, #(SELW)
    s_and_b32 vcc_hi, vcc_hi, 0x1ffff
    s_or_b64 $MASK:2, vcc, $M+16:2
    s_cbranch_scc1 K2_L2B
    K2_L2BR:
    """)
    lstamp(a, opt, "preC")
    a("""
    s_waitcnt lgkmcnt(0)
    s_barrier
    """)
    lstamp(a, opt, "barC")
    a("""
    ds_read2_b32 @TT+4:2, @Idx offset0:0 offset1:32
    ds_read_u16 @GP, @Rec
    ds_read_u16 @Nn, @Rec offset:2
    s_lshl_b32 $P1, $P1, 4
    s_lshl_b32 $END, $END, 4
    s_min_u32 $END, $END, $TOTAL
    v_cmp_ge_u32 vcc, $P1, @Incl
    """)
    a(mfma(ACC, VR["Z"], VR["Z"], None))
    a("""
    s_add_u32 $P2, $P1, 32
    s_min_u32 $D8, $P2, $END
    s_bcnt1_i32_b64 $B, vcc
    s_min_u32 $B, $B, 48
    s_add_u32 $A, $B, 7
    v_readlane_b32 $WEND, @Incl, $A
    v_readlane_b32 $CONTC, @Ch, $B
    s_lshl_b32 $WB8, $B, 3
    s_waitcnt lgkmcnt(1)
    """)
    stamp(a, opt, 6, ST)
    lstamp(a, opt, "idx")
    a(*PERMS)
    gather_pos(a)
    ND1 = opt.get("nd1", 2)
    for slot in range(ND1):
        dma(a, slot)
    lstamp(a, opt, "dma01")
    a(mfma(ACC + 16, VR["Z"], VR["Z"], None))
    a("""
    s_mov_b32 exec_lo, 0
    s_lshl_b32 $A, $WB8, 1
    v_subrev_u32 @Xb, $A, @Xb
    s_mul_i32 $A, $WB8, 34
    v_add_u32 @B3a, $A, @B3a
    s_mov_b32 exec_lo, -1
    s_cmp_gt_u32 $D8, $WEND
    s_cselect_b32 $REP, 1, 0
    s_cselect_b32 $P2, $P1, $P2
    s_cselect_b32 $A, 0, 256
    s_waitcnt lgkmcnt(0)
    v_lshl_add_u32 @X, @Nn, 1, @Xb
    v_add_u32 @Idx, $A, @Idx
    ds_read_b96 @TT:3, @X
    ds_read2_b32 @TT+4:2, @Idx offset0:0 offset1:32
    """)
    for t in range(4):
        for jj in range(2):
            a("ds_read_b64_tr_b16 @B3+%d:2, @B3a offset:%d" % (4 * t + 2 * jj, jj * 4 * RS + t * 64))
    a(mfma(ACC + 32, VR["Z"], VR["Z"], None))
    a("""
    s_min_u32 $B, $D8, $WEND
    s_sub_u32 $B, $B, $P1
    s_bfm_b64 $MASK:2, $B, 0
    s_mov_b32 $D8, $A
    s_cmp_lt_u32 $CONTC, $P1
    s_cselect_b32 $CONTC, 1, 0
    s_sub_u32 $A, $WBO8, $WB8
    v_add_u32 @Sb, $A, @Sb
    v_add_u32 @S, @Nn, @Sb
    v_add_u32 @A2a, $WBO8, @A2a
    v_add_u32 @Cq, $GW, @Cq
    s_mov_b32 $CN, -1
    s_mov_b32 $FLUSH, 0
    s_mov_b32 $REB, 0
    s_mov_b32 $WBO8, 0
    """)
    a(mfma(ACC + 48, VR["Z"], VR["Z"], None))
    lstamp(a, opt, "logic")
    a("""
    s_lshr_b32 $RE, s3, 2
    s_lshl_b32 $A, $RE, 5
    s_add_u32 $A, $A, $E
    s_lshl_b32 $A, $A, 2
    s_and_b32 $B, s3, 3
    s_add_u32 $A, $A, $B
    s_lshl_b32 $A, $A, 6
    v_add_u32 @Out, $A, @Out
    s_mul_i32 $A, $RE, #(32*RS)
    v_add_u32 @Mr, $A, @Mr
    s_lshl_b32 $A, $RE, 13
    v_add_u32 @Hop, $A, @Hop
    s_lshl_b32 $RE, $B, 10
    s_add_u32 $A, $A, $RE
    v_add_u32 @HRa, $A, @HRa
    """)
    a(mfma(D1, VR["Z"], VR["Z"], None))
    a("""
    s_lshl_b32 $A, $B, 13
    v_add_u32 @Wa, $A, @Wa
    s_lshl_b32 $A, $B, 8
    s_add_u32 $A, $A, #(L_POSD)
    v_add_u32 @Us, $A, @Us
    s_lshl_b32 $A, s3, 10
    v_add_u32 @fU, $A, @fU
    v_add_u32 @stW, $GW, @stW
    v_add_u32 @stR, $GW, @stR
    s_cmp_ge_u32 $P1, $END
    s_cbranch_scc1 K2_EMPTY
    s_cmp_lt_u32 $P2, $END
    s_cselect_b32 $SEL, $SEL, #(SELW)
    """)
    stamp(a, opt, 7, ST)
    lstamp(a, opt, "preg")
    a("s_waitcnt vmcnt(%d) lgkmcnt(0)" % (2 * ND1))
    stamp(a, opt, 8, ST)
    lstamp(a, opt, "gath")
    a(*(GEOM_A + GEOM_B + GEOM_C + ["s_waitcnt vmcnt(%d)" % (2 * ND1 - 2)]))
    cq_read(a, 0)
    a(*GEOM_D)
    a3_reads(a)
    for slot in range(ND1, 4):
        dma(a, slot)
    a("v_add_u32 @Rec, $D8, @Rec")
    a(*PERMS)
    a("s_waitcnt lgkmcnt(0)")
    a(mfma(D0, A3, B3, CQ))
    dma(a, 0)
    stamp(a, opt, 9, ST)
    lstamp(a, opt, "loop")
    if opt.get("stamps"):
        a("s_mov_b32 s100, 16")
    a("""
    s_setprio 0
    s_sub_u32 $A, $END, $P1
    s_mov_b32 $P1, $P2
    s_cmp_lt_u32 $P1, $END
    s_cselect_b32 $A, 32, $A
    s_cmp_le_u32 $A, 16
    s_cbranch_scc1 K2_HALF
    """)
    a(".p2align 3", "K2_LOOP:")
    step(a, False, opt)
    a("s_setprio 0")
    if opt.get("stamps"):
        a("s_memtime s[98:99]", "s_waitcnt lgkmcnt(0)", "s_mov_b32 m0, s100", "v_writelane_b32 @ST, s98, m0", "s_add_u32 s100, s100, 1")
    a("""
    s_sub_i32 $A, $END, $P1
    s_mov_b32 $P1, $P2
    s_cmp_lt_u32 $P1, $END
    s_cselect_b32 $A, 32, $A
    s_cmp_gt_i32 $A, 16
    s_cbranch_scc1 K2_LOOP
    s_cmp_le_i32 $A, 0
    s_cbranch_scc1 K2_TAILF
    K2_HALF:
    """)
    step(a, True, opt)
    a(*cvts(D1, 4))
    a("s_setprio 0", "s_branch K2_FIN")
    a("K2_TAILF:")
    cv = cvts(D1, 8)
    a(*(cv[4:] + cv[:4]))
    a(mfma(ACC + 48, A2 + 4, PP + 4, ACC + 48), "s_nop 0")
    a("K2_FIN:")
    a(mfma(ACC + 48, A2, PP, ACC + 48))
    stamp(a, opt, 10, ST)
    lstamp(a, opt, "fin")
    a("""
    s_mov_b32 $WBO8, $WB8
    s_mov_b32 $CONTO, $CONTC
    s_mov_b32 $RE, $END
    """)
    flush_m(a, "F")
    a("K2_JOIN:")
    stamp(a, opt, 11, ST)
    lstamp(a, opt, "join")
    a(U_PRE)
    a("""
    v_xor_b32 @T0, 32, @Hop
    v_xor_b32 @T2, 16, @HRa
    s_waitcnt lgkmcnt(4)
    """)
    for ks in range(8):
        a("ds_read_b128 @HB+%d:4, %s offset:%d" % (4 * ks, "@T0" if ks & 1 else "@Hop", (ks >> 1) * 1024))
    a("""
    ds_read_b128 @HR:4, @HRa
    ds_read_b128 @HR+4:4, @T2
    s_mul_i32 $A, $CN, #(RS)
    s_add_u32 $A, $A, #(L_M)
    v_add_u32 @T3, $A, @fM
    v_xor_b32 @T0, 32, @Wa
    s_waitcnt vmcnt(0) lgkmcnt(10)
    s_barrier
    """)
    stamp(a, opt, 12, ST)
    lstamp(a, opt, "barD")
    uf, ur = u_part()
    a("ds_read2_b32 @TT:2, @T3 offset0:0 offset1:32", "s_waitcnt lgkmcnt(6)")
    for ks in range(8):
        a("ds_read_b128 @WH1+%d:4, %s offset:%d" % (4 * ks, "@T0" if ks & 1 else "@Wa", (ks >> 1) * 2048))
    a(*uf[:12])
    a("""
    s_cmp_lt_i32 $CN, 0
    s_cbranch_scc1 K2_NOFIX
    s_waitcnt lgkmcnt(8)
    v_lshlrev_b32 @TT+2, 16, @TT
    v_and_b32 @TT+3, 0xffff0000, @TT
    v_lshlrev_b32 @TT+4, 16, @TT+1
    v_and_b32 @TT+5, 0xffff0000, @TT+1
    v_add_f32 @TT+2, @TT+2, @CONT
    v_add_f32 @TT+3, @TT+3, @CONT+1
    v_add_f32 @TT+4, @TT+4, @CONT+2
    v_add_f32 @TT+5, @TT+5, @CONT+3
    v_cvt_pk_bf16_f32 @TT, @TT+2, @TT+3
    v_cvt_pk_bf16_f32 @TT+1, @TT+4, @TT+5
    s_mov_b32 exec_hi, 0
    ds_write2_b32 @T3, @TT, @TT+1 offset0:0 offset1:32
    s_mov_b32 exec_hi, -1
    K2_NOFIX:
    s_waitcnt lgkmcnt(1)
    """)
    for ks in range(8):
        a("ds_read_b128 @WH2+%d:4, %s offset:%d" % (4 * ks, "@T0" if ks & 1 else "@Wa", 32768 + (ks >> 1) * 2048))
    rest = uf[12:] + ur
    per = opt.get("uper", 7)
    for ks in range(8):
        if ks == 7:
            a("s_waitcnt lgkmcnt(8)")
        a(mfma(VR["H1"], VR["WH1"] + 4 * ks, VR["HB"] + 4 * ks, None if ks == 0 else VR["H1"]))
        if ks < 7:
            a(*rest[per * ks:per * ks + per])
    a(*rest[per * 7:])
    a("""
    v_mov_b32 @T0, 0
    s_cbranch_vccnz K2_NAN
    K2_NANR:
    """)
    lstamp(a, opt, "preE")
    a("""
    s_waitcnt lgkmcnt(0)
    s_barrier
    """)
    lstamp(a, opt, "barE")
    for ks in range(8):
        a("ds_read_b128 @MB+%d:4, @Mr offset:%d" % (4 * ks, L_M + ks * 32))
    a("ds_read_b64 @GP:2, @T0 offset:#(L_FLAG)")
    for i in range(8):
        a("v_pk_mul_f32 @H1+%d:2, @H1+%d:2, $L2E:2" % (2 * i, 2 * i))
    assert L_U == L_POSD + 1024
    a("""
    s_cmp_lt_u32 s3, 4
    s_cbranch_scc1 K2_NOPOS
    """)
    for i in range(4):
        a("ds_read2st64_b32 @TT+%d:2, @Us offset0:%d offset1:%d" % (2 * i, 8 * i + 4, 8 * i + 8))
    a("""
    ds_read_b32 @PP, @Us
    v_bfe_u32 @T1, @Tid, 2, 6
    s_mul_i32 $B, s2, #(NB)
    v_add_u32 @T1, $B, @T1
    s_lshr_b32 $A, $OUT+2, 8
    v_cmp_gt_u32 vcc, $A, @T1
    v_mul_u32_u24 @T1, 6, @T1
    v_and_b32 @T2, 3, @Tid
    v_lshl_add_u32 @T1, @T2, 1, @T1
    v_add_u32 @T1, #(N*256), @T1
    s_mov_b32 $A, 0x77777777
    s_waitcnt lgkmcnt(0)
    v_add_f32 @TT, @TT, @TT+1
    v_add_f32 @TT+2, @TT+2, @TT+3
    v_add_f32 @TT+4, @TT+4, @TT+5
    v_add_f32 @TT+6, @TT+6, @TT+7
    v_add_f32 @TT, @TT, @TT+2
    v_add_f32 @TT+4, @TT+4, @TT+6
    v_add_f32 @TT, @TT, @TT+4
    v_add_f32 @TT, @TT, @PP
    v_cvt_pk_bf16_f32 @TT, @TT, @TT
    s_and_b32 exec_lo, vcc_lo, $A
    s_and_b32 exec_hi, vcc_hi, $A
    s_cbranch_execz K2_NOPOS2
    global_store_short @T1, @TT, s[20:21]
    K2_NOPOS2:
    s_mov_b64 exec, -1
    s_setprio 1
    K2_NOPOS:
    """)
    hu = []
    for i in range(8):
        hu += ["v_lshlrev_b32 @HU+%d, 16, @HR+%d" % (2 * i, i), "v_and_b32 @HU+%d, 0xffff0000, @HR+%d" % (2 * i + 1, i)]
    for ks in range(8):
        a("s_waitcnt lgkmcnt(%d)" % (8 - ks))
        a(mfma(VR["H1"], VR["WH2"] + 4 * ks, VR["MB"] + 4 * ks, VR["H1"]))
        a(*hu[2 * ks:2 * ks + 2])
    lstamp(a, opt, "g2")
    a("""
    s_setprio 0
    s_waitcnt lgkmcnt(0)
    v_readfirstlane_b32 $A, @GP
    v_readfirstlane_b32 $E, @GP+1
    v_add_u32 @T0, 4096, @Out
    s_andn2_b32 $E, $E, $SAFE
    s_or_b32 $A, $A, $E
    s_cbranch_scc1 K2_AGAIN
    s_mov_b32 $A, #(f32(-LN2))
    s_mov_b32 $B, #(f32(-LN2))
    .p2align 3
    """)
    assert SR["A"] % 2 == 0 and SR["B"] == SR["A"] + 1
    for i in range(16):
        a("v_exp_f32 @EE+%d, @H1+%d" % (i, i))
    for i in range(16):
        a("v_add_f32 @EE+%d, 1.0, @EE+%d" % (i, i))
    for i in range(16):
        a("v_rcp_f32 @EE+%d, @EE+%d" % (i, i))
    for i in range(8):
        a("v_pk_mul_f32 @EE+%d:2, @EE+%d:2, @H1+%d:2" % (2 * i, 2 * i, 2 * i))
    for i in range(8):
        a("v_pk_fma_f32 @EE+%d:2, @EE+%d:2, $A:2, @HU+%d:2" % (2 * i, 2 * i, 2 * i))
    a(*cvts(EE, 8))
    lstamp(a, opt, "silu")
    ost = opt.get("out_store", "").replace("+", " ")
    a("""
    ds_write_b128 @stW, @PP:4
    ds_write_b128 @stW, @PP+4:4 offset:16
    ds_read_b128 @EE:4, @stR
    ds_read_b128 @EE+4:4, @stR offset:1280
    s_waitcnt lgkmcnt(1)
    buffer_store_dwordx4 @EE:4, @Out, $OUT:4, 0 offen %s
    s_waitcnt lgkmcnt(0)
    buffer_store_dwordx4 @EE+4:4, @T0, $OUT:4, 0 offen %s
    """ % (ost, ost))
    stamp(a, opt, 13, ST)
    lstamp(a, opt, "store")
    if opt.get("stamps"):
        a("v_writelane_b32 @ST, $SAFE, 40", "v_writelane_b32 @ST, $O, 41", "v_writelane_b32 @ST, $TOTAL, 42",
          "v_writelane_b32 @ST, s100, 43", "v_writelane_b32 @ST, $ATOM, 46")
    stamp_store(a, opt, ST, VR["T0"], VR["Tid"], "s[22:23]", s(SR["BK"]), 0)
    if opt.get("ls"):
        a("s_waitcnt vmcnt(0)")
        lstamp(a, opt, "end")
        a("s_waitcnt lgkmcnt(0)")
        for k in range(7):
            a("v_writelane_b32 @ST, s%d, %d" % (6 + 2 * k, k))
        a("""
        s_lshl_b32 s98, $BK, 11
        s_add_u32 s98, s98, #(WS_DBG)
        v_lshl_add_u32 @T0, @Tid, 2, s98
        global_store_dword @T0, @ST, s[22:23]
        """)
    a("K2_END:", "s_endpgm")
    a("K2_FLUSH:")
    flush_m(a, "M")
    a("s_waitcnt lgkmcnt(0)")
    a(U_PRE, "s_waitcnt lgkmcnt(0)")
    a(*(uf + ur))
    a("""
    v_mov_b32 @T0, 0
    v_mov_b32 @T1, 1
    s_cbranch_vccz K2_FL2
    ds_write_b32 @T0, @T1 offset:#(L_FLAG+4)
    K2_FL2:
    """)
    for i in range(64):
        a("v_mov_b32 %s, 0" % v(ACC + i))
    a("""
    s_mov_b32 $FLUSH, 0
    s_setpc_b64 $RET:2
    K2_NAN:
    v_mov_b32 @T1, 1
    ds_write_b32 @T0, @T1 offset:#(L_FLAG+4)
    s_branch K2_NANR
    """)
    for stub in STUBS:
        a(stub)
    del STUBS[:]
    a("K2_EMPTY:")
    for slot in range(ND1, 4):
        dma(a, slot)
    a("""
    s_waitcnt lgkmcnt(0)
    s_branch K2_JOIN
    K2_L20:
    v_cmp_lt_i32 $M+18:2, 16, @T0
    v_cmp_lt_i32 $M+20:2, 16, @T2
    v_mov_b32 @RADDR+8, 0
    v_mov_b32 @RADDR+9, 0
    v_mov_b32 @RADDR+10, 0
    v_mov_b32 @RADDR+11, 0
    v_mov_b32 @RANK+8, 0x8000
    v_mov_b32 @RANK+9, 0x8000
    v_mov_b32 @RANK+10, 0x8000
    v_mov_b32 @RANK+11, 0x8000
    s_mov_b64 exec, $M+18:2
    global_load_dwordx4 @REC0+16:4, @Ra, s[22:23] offset:128
    s_mov_b64 exec, $M+20:2
    global_load_dwordx4 @REC0+20:4, @Ra+1, s[22:23] offset:128
    s_mov_b64 exec, -1
    s_branch K2_L20R
    K2_L2A:
    s_cbranch_vccz K2_L2A1
    ds_write_b32 @Z, @T3 offset:#(L_FLAG)
    K2_L2A1:
    s_cmp_eq_u64 $M+16:2, 0
    s_cbranch_scc1 K2_L2AR
    s_mov_b64 exec, $M+20:2
    s_waitcnt vmcnt(0)
    v_lshrrev_b32 @RADDR+10, 17, @REC0+20
    ds_add_rtn_u32 @RANK+10, @RADDR+10, @T3
    s_mov_b64 exec, $M+18:2
    v_lshrrev_b32 @RADDR+8, 17, @REC0+16
    ds_add_rtn_u32 @RANK+8, @RADDR+8, @T3
    s_mov_b64 exec, -1
    v_cmp_lt_i32 $M+18:2, 17, @T0
    v_cmp_lt_i32 $M+20:2, 17, @T2
    s_nop 1
    s_mov_b64 exec, $M+18:2
    v_lshrrev_b32 @RADDR+9, 17, @REC0+18
    ds_add_rtn_u32 @RANK+9, @RADDR+9, @T3
    s_mov_b64 exec, $M+20:2
    v_lshrrev_b32 @RADDR+11, 17, @REC0+22
    ds_add_rtn_u32 @RANK+11, @RADDR+11, @T3
    s_mov_b64 exec, -1
    s_waitcnt lgkmcnt(0)
    s_branch K2_L2AR
    K2_L2B:
    s_waitcnt lgkmcnt(0)
    s_cmp_eq_u64 vcc, 0
    s_cbranch_scc1 K2_L2B1
    s_mov_b32 $ATOM, 1
    s_cmp_eq_u32 $FIRST, 0
    s_cbranch_scc1 K2_L2B1
    v_lshlrev_b32 @T0, 4, @Tid
    ds_write_b128 @T0, @Z:4 offset:#(L_M)
    v_cmp_gt_u32 vcc, #((56*RS-8192)//16), @Tid
    s_nop 1
    s_and_b64 exec, vcc, vcc
    ds_write_b128 @T0, @Z:4 offset:#(L_M+8192)
    s_mov_b64 exec, -1
    K2_L2B1:
    s_cmp_eq_u64 $M+16:2, 0
    s_cbranch_scc1 K2_L2BR
    """)
    for q in range(8, 12):
        a("ds_read_b32 @RADDR+%d, @RADDR+%d offset:#(L_EXC)" % (q, q))
    a("s_waitcnt lgkmcnt(0)")
    for q in range(8, 12):
        a("v_add_lshl_u32 @RADDR+%d, @RADDR+%d, @RANK+%d, 3" % (q, q, q))
        a("ds_write_b64 @RADDR+%d, @REC0+%d:2 offset:#(L_REC)" % (q, 2 * q))
    a("""
    s_branch K2_L2BR
    K2_AGAIN:
    s_add_u32 $O, $O, $QUOTA
    s_mov_b32 $FIRST, 0
    s_cmp_eq_u32 $E, 0
    s_cbranch_scc1 K2_AGAIN2
    s_mov_b32 $SAFE, 1
    s_mov_b32 $O, 0
    s_mov_b32 $FIRST, 1
    K2_AGAIN2:
    s_nop 15
    s_waitcnt vmcnt(0) lgkmcnt(0)
    s_barrier
    s_branch K2_ROUND
    K2_OVERFLOW:
    s_mov_b32 $QUOTA, 7
    s_branch K2_AGAIN2
    K2_REBASE:
    s_cmp_eq_u32 $REP, 0
    s_cselect_b32 $A, $P1, $WEND
    v_cmp_ge_u32 vcc, $A, @Incl
    s_nop 1
    s_bcnt1_i32_b64 $B, vcc
    s_add_u32 $D8, $B, 7
    v_readlane_b32 $WEND, @Incl, $D8
    s_lshl_b32 $D8, $B, 3
    s_cmp_eq_u32 $D8, $WB8
    s_cbranch_scc1 K2_RB2
    s_mov_b32 $WBO8, $WB8
    s_mov_b32 $WB8, $D8
    s_mov_b32 $FLUSH, 1
    s_mov_b32 $REB, 1
    s_mov_b32 $RE, $A
    s_mov_b32 $CONTO, $CONTC
    s_sub_u32 $D8, $B, 1
    v_readlane_b32 $CONTC, @Incl, $D8
    s_nop 1
    s_cmp_lt_u32 $CONTC, $A
    s_cselect_b32 $CONTC, 2, 0
    s_sub_u32 $B, $WBO8, $WB8
    v_add_u32 @Sb, $B, @Sb
    s_mov_b32 exec_lo, 0
    s_lshl_b32 $D8, $B, 1
    v_add_u32 @Xb, $D8, @Xb
    s_mul_i32 $D8, $B, -34
    v_add_u32 @B3a, $D8, @B3a
    s_mov_b32 exec_lo, -1
    K2_RB2:
    s_min_u32 $B, $E, $WEND
    s_sub_u32 $B, $B, $A
    s_sub_u32 $A, $A, $P1
    s_bfm_b64 $MASK:2, $B, $A
    s_cmp_gt_u32 $E, $WEND
    s_cselect_b32 $REP, 1, 0
    s_cselect_b32 $P2, $P1, $P2
    s_setpc_b64 $RET:2
    K2_B3LOAD:
    """)
    for t in range(4):
        for jj in range(2):
            a("ds_read_b64_tr_b16 @B3+%d:2, @B3a offset:%d" % (4 * t + 2 * jj, jj * 4 * RS + t * 64))
    a("s_mov_b32 $REB, 0", "s_setpc_b64 $RET:2")
    for par, D in ((0, D0), (1, D1)):
        a("K2_CLAMP%d:" % par, "s_nop 11")
        for i in range(16):
            a("v_min_f32 %s, #(f32(126.0)), %s" % (v(D + i), v(D + i)))
        a("s_setpc_b64 $RET:2")


def kd(name, vgpr, sgpr):
    return """.p2align 6
.amdhsa_kernel %s
  .amdhsa_next_free_vgpr %d
  .amdhsa_next_free_sgpr %d
  .amdhsa_accum_offset %d
  .amdhsa_group_segment_fixed_size 0
  .amdhsa_kernarg_size 88
  .amdhsa_user_sgpr_count 2
  .amdhsa_user_sgpr_kernarg_segment_ptr 1
  .amdhsa_system_sgpr_workgroup_id_x 1
  .amdhsa_float_denorm_mode_32 3
.end_amdhsa_kernel
""" % (name, vgpr, sgpr, (vgpr + 3) // 4 * 4)


def generate(opt):
    ref = open("cdna_kernels/%s.s.ref" % NAME).read().split("\n")
    head = []
    for ln in ref:
        if ln.startswith("; Override launch") or "@launch" in ln or ln.startswith("; grid=ceil"):
            continue
        if not ln.startswith(";"):
            break
        head.append(ln)
    out = "\n".join(head) + "\n"
    l1 = "; @launch kernel=prep_kernel grid=(%d,1,1) block=(512,1,1) lds=%d\n" % (K1_GRID, K1_LDS)
    l2 = "; @launch kernel=main_kernel grid=(256,1,1) block=(512,1,1) lds=%d\n" % K2_LDS
    l0 = "; @launch kernel=null_kernel grid=(256,1,1) block=(64,1,1) lds=0\n"
    for c in str(opt.get("seq", "12")):
        out += {"0": l0, "1": l1, "2": l2}[c]
    out += '.amdgcn_target "amdgcn-amd-amdhsa--gfx950"\n.text\n'
    kernels = [("prep_kernel", gen_k1), ("main_kernel", gen_k2)]
    if "0" in str(opt.get("seq", "12")):
        kernels.append(("null_kernel", lambda a, o: a("null_kernel:", "s_endpgm")))
    for name, g in kernels:
        a = Asm()
        g(a, opt)
        out += ".globl %s\n.p2align 8\n.type %s,@function\n" % (name, name) + a.text()
    out += '.section .rodata,"a"\n'
    out += kd("prep_kernel", 104 if opt.get("stamps") else 96, 102 if opt.get("stamps") else 40)
    out += kd("main_kernel", 256, 102)
    if "0" in str(opt.get("seq", "12")):
        out += kd("null_kernel", 8, 8)
    return out


if __name__ == "__main__":
    opt = {}
    path = "cdna_kernels/%s.s" % NAME
    for arg in sys.argv[1:]:
        if "=" in arg:
            k, val = arg.split("=", 1)
            if k != "seq":
                try:
                    val = int(val)
                except ValueError:
                    pass
            opt[k] = val
        else:
            path = arg
    open(path, "w").write(generate(opt))
    print("wrote", path, "K2_LDS", K2_LDS, "L_G", L_G, "L_H", L_H, "L_REC", L_REC, "L_S", L_S)
```

```python
import sys, struct, re

NAME = "gather_scatter__cheap_equivariant_egnn__graph"
N, E, NB = 12500, 400000, 49
NCH, CH = 250, 1600
NQ = 12544
WS_Q, WS_REC, WS_T, WS_POS, WS_WF, WS_DBG = 0, 0x400000, 0x800000, 0x900000, 0xA00000, 0xC00000
TSTRIDE = 1152
LOG2E = 1.4426950408889634
LN2 = 0.6931471805599453
KEXP = 30


def f32(x):
    return struct.unpack("<I", struct.pack("<f", x))[0]


def v(a, n=1):
    return "v%d" % a if n == 1 else "v[%d:%d]" % (a, a + n - 1)


def s(a, n=1):
    return "s%d" % a if n == 1 else "s[%d:%d]" % (a, a + n - 1)


RS = 272
L_CNT, L_FLAG, L_EXC = 0, 256, 512
L_IMG = 768
L_LUTC = L_IMG + 768
L_WZ = L_LUTC + 128
L_WX = L_WZ + 8 * RS
L_P = L_IMG + 4096
L_POSD = L_P + 64 * RS
L_U = L_POSD + 1024
L_M = L_U + 8192
CAP = 1792
L_REC = L_M + 56 * RS
L_S = L_REC + (CAP + 64) * 8
SW = 32 * 72
L_H = (L_S + 8 * SW + 1023) // 1024 * 1024
L_G = L_H + 16384
K2_LDS = L_G + 65536
K1_LDS = 49152 + 8 * 2560
WS_IMG = WS_WF + 0x10000

VR = dict(ACC=0, D0=64, D1=80, EE=96, TT=112, PP=120, CQ=128, B3=144, A3=160, A2=164,
          W1=172, L=188, Ch=189, Ta=190, Tb=191, Pf=192, Hb1=193, Ra=194, Z=196,
          fM=204, Hh=205, Hop=206, HRa=207, Hb=208, Pw=209, WXa=210,
          CONT=220, Sb=224, A2a=225, Cq=226, B3a=227, WA=228, Xb=230, Idx=231, Rec=232, fU=233, Mr=234, Wa=235,
          stW=236, stR=237, Out=238, Us=239, DA=240, GP=242, ST=245, X=246, S=247, Nn=248, Incl=249, Tid=250,
          T0=251, T1=252, T2=253, T3=254, T4=255,
          REC0=112, RADDR=136, RANK=148, HB=64,
          MB=0, HU=32, WH2=128, WH1=172, H1=204, G2=96, HR=160, WX=120)
TABREG = [208, 224, 228, 232, 236, 204]
SR = dict(Q=24, POS=28, T=32, H=36, OUT=40, K=44, L2E=46, SEL=48,
          O=49, QUOTA=50, SAFE=51, FIRST=52, TOTAL=53, END=54, P1=55, P2=56, WB8=57, WBO8=58, WEND=59,
          MASK=60, FLUSH=62, REB=63, GW=64, REP=65, D8=66, E=67, A=68, B=69, RET=70, M=72,
          ATOM=96, FM=72, CONTC=80, CONTO=81, RE=82, RUN1=83, CN=84, ONE=86, BK=97)
SELQ, SELW = 0x0c050403, 0x0c020100
globals().update({k: x for k, x in VR.items() if k in ("ACC", "D0", "D1", "EE", "TT", "PP", "CQ", "B3", "A3", "A2")})

TOK = re.compile(r"([@$])([A-Za-z][A-Za-z0-9]*)(?:\+(\d+))?(?::(\d+))?")
EXP = re.compile(r"#\(([^()]*(?:\([^()]*\)[^()]*)*)\)")


def sub(line):
    def r(m):
        base = (VR if m.group(1) == "@" else SR)[m.group(2)] + int(m.group(3) or 0)
        return (v if m.group(1) == "@" else s)(base, int(m.group(4) or 1))

    def e(m):
        x = eval(m.group(1), globals())
        return str(x) if x < 65536 else hex(x)
    return TOK.sub(r, EXP.sub(e, line))


class Asm:
    def __init__(self):
        self.l = []

    def __call__(self, *lines):
        for x in lines:
            for y in x.strip("\n").split("\n"):
                y = y.strip()
                if not y:
                    continue
                y = sub(y)
                self.l.append(y if y.endswith(":") else "    " + y)

    def text(self):
        return "\n".join(self.l) + "\n"


MF = "v_mfma_f32_32x32x16_bf16"


def mfma(d, a, b, c):
    return "%s %s, %s, %s, %s" % (MF, v(d, 16), v(a, 4), v(b, 4), "0" if c is None else v(c, 16))


def stamp(a, opt, idx, reg, real=False):
    if not opt.get("stamps"):
        return
    a("s_waitcnt lgkmcnt(0)", "%s s[98:99]" % ("s_memrealtime" if real else "s_memtime"), "s_waitcnt lgkmcnt(0)",
      "v_writelane_b32 %s, s98, %d" % (v(reg), idx))


def lstamp(a, opt, name):
    names = opt.get("ls", "").split("+") if opt.get("ls") else []
    if name in names:
        k = 6 + 2 * names.index(name)
        a("s_memtime s[%d:%d]" % (k, k + 1))


def stamp_store(a, opt, reg, tmp, tid, base, wg, extra):
    if not opt.get("stamps"):
        return
    a("s_waitcnt vmcnt(0)",
      "s_getreg_b32 s98, hwreg(HW_REG_HW_ID)", "v_writelane_b32 %s, s98, 44" % v(reg),
      "s_getreg_b32 s98, hwreg(HW_REG_XCC_ID)", "v_writelane_b32 %s, s98, 45" % v(reg))
    stamp(a, opt, 14, reg)
    stamp(a, opt, 15, reg, True)
    a("""
    s_mov_b64 exec, -1
    s_lshl_b32 s98, %s, 11
    s_add_u32 s98, s98, %d
    v_lshl_add_u32 %s, %s, 2, s98
    global_store_dword %s, %s, %s
    """ % (wg, WS_DBG + extra, v(tmp), v(tid), v(tmp), v(reg), base))


def scan64(a, r, fill=None):
    steps = ["row_shr:%d row_mask:0xf" % sh for sh in (1, 2, 4, 8)] + ["row_bcast:15 row_mask:0xa", "row_bcast:31 row_mask:0xc"]
    for i, st in enumerate(steps):
        a(*(fill[2 * i:2 * i + 2] if fill else ["s_nop 1"]))
        a("v_add_u32_dpp %s, %s, %s %s bank_mask:0xf" % (v(r), v(r), v(r), st))


K1_GRID = 456


def gen_k1(a, opt):
    st = opt.get("k1_store", "").replace("+", " ")
    STV = 100

    def fin():
        stamp(a, opt, 13, STV)
        stamp_store(a, opt, STV, 101, 0, "s[20:21]", "s38", 0x100000)
        a("s_endpgm")
    a("""
    prep_kernel:
    s_cmp_ge_u32 s2, #(K1_GRID)
    s_cbranch_scc1 K1_END
    s_load_dwordx16 s[4:19], s[0:1], 0
    s_load_dwordx2 s[20:21], s[0:1], 80
    v_lshrrev_b32 v1, 6, v0
    v_and_b32 v2, 63, v0
    v_readfirstlane_b32 s3, v1
    """)
    if opt.get("stamps"):
        a("s_mov_b32 s38, s2")
        stamp(a, opt, 0, STV, True)
        stamp(a, opt, 1, STV)
    if opt.get("gemm_first"):
        a("""
        s_cmp_lt_u32 s2, 200
        s_cbranch_scc1 K1_GEMM
        s_sub_u32 s2, s2, 200
        """)
    else:
        a("""
        s_cmp_ge_u32 s2, 256
        s_cbranch_scc1 K1_GEMM
        """)
    a("""
    s_cmp_ge_u32 s2, #(NCH)
    s_cbranch_scc1 K1_IMG
    s_cmp_eq_u32 s3, 7
    s_cbranch_scc1 K1_EXTRA
    """)
    a("""
    v_lshlrev_b32 v3, 2, v0
    v_mov_b32 v4, 0
    ds_write_b32 v3, v4
    v_cmp_gt_u32 vcc, 400, v0
    s_mul_i32 s24, s2, #(CH*4)
    v_lshl_add_u32 v4, v0, 4, s24
    v_lshrrev_b32 v5, 1, v4
    s_mov_b64 s[22:23], vcc
    s_waitcnt lgkmcnt(0)
    s_mov_b64 exec, s[22:23]
    """)
    ld = opt.get("k1_ld", "").replace("+", " ")
    late = opt.get("k1_late", 0)
    l2 = ["global_load_dwordx4 v[12:15], v4, s[10:11] " + ld, "global_load_dwordx2 v[16:17], v5, s[8:9] " + ld]
    a("global_load_dwordx4 v[8:11], v4, s[12:13] " + ld)
    if not late:
        a(*l2)
    a("""
    s_mov_b32 s25, -49
    s_mov_b32 s26, 0x01000100
    s_mov_b32 s27, 0x03020302
    v_mov_b32 v6, 1
    s_barrier
    s_waitcnt vmcnt(%d)
    """ % (0 if late else 2))
    if late:
        a(*l2)
    stamp(a, opt, 2, STV)
    for k in range(4):
        a("v_mul_u32_u24 %s, 21400, %s" % (v(28 + k), v(8 + k)))
        a("v_lshrrev_b32 %s, 20, %s" % (v(28 + k), v(28 + k)))
        a("v_mad_i32_i24 %s, %s, s25, %s" % (v(8 + k), v(28 + k), v(8 + k)))
        a("v_lshlrev_b32 %s, 2, %s" % (v(28 + k), v(28 + k)))
        a("ds_add_rtn_u32 %s, %s, v6" % (v(32 + k), v(28 + k)))
    a("""
    s_mov_b64 exec, -1
    v_lshlrev_b32 v3, 4, v2
    s_waitcnt lgkmcnt(0)
    s_barrier
    ds_read_b128 v[36:39], v3
    s_waitcnt lgkmcnt(0)
    """)
    stamp(a, opt, 3, STV)
    a("""
    v_add_u32 v40, v36, v37
    v_add3_u32 v40, v40, v38, v39
    v_mov_b32 v41, v40
    """)
    scan64(a, 41)
    a("""
    v_sub_u32 v40, v41, v40
    v_add_u32 v41, v40, v36
    v_add_u32 v42, v41, v37
    v_add_u32 v43, v42, v38
    ds_write_b128 v3, v[40:43] offset:1024
    s_mov_b64 exec, s[22:23]
    """)
    for k in range(4):
        a("ds_read_b32 %s, %s offset:1024" % (v(28 + k), v(28 + k)))
    a("s_waitcnt vmcnt(0)")
    for k in range(4):
        a("v_lshl_or_b32 %s, %s, 19, %s" % (v(20 + 2 * k), v(8 + k), v(12 + k)))
        a("v_perm_b32 %s, %s, %s, %s" % (v(21 + 2 * k), v(16 + k // 2), v(16 + k // 2), s(26 + (k & 1))))
    for k in range(4):
        a("s_waitcnt lgkmcnt(3)")
        a("v_add_lshl_u32 %s, %s, %s, 3" % (v(28 + k), v(28 + k), v(32 + k)))
        a("ds_write_b64 %s, %s offset:2048" % (v(28 + k), v(20 + 2 * k, 2)))
    a("""
    s_cmp_lg_u32 s3, 6
    s_cbranch_scc1 K1_NOT
    s_mov_b64 exec, -1
    v_lshl_or_b32 v36, v36, 16, v40
    v_lshl_or_b32 v37, v37, 16, v41
    v_lshl_or_b32 v38, v38, 16, v42
    v_lshl_or_b32 v39, v39, 16, v43
    s_and_b32 s24, s2, 7
    s_lshl_b32 s24, s24, 5
    s_lshr_b32 s28, s2, 3
    s_add_u32 s24, s24, s28
    s_lshl_b32 s24, s24, 2
    s_add_u32 s24, s24, #(WS_T)
    v_lshl_add_u32 v3, v2, 12, s24
    global_store_dword v3, v36, s[20:21]
    global_store_dword v3, v37, s[20:21] offset:1024
    global_store_dword v3, v38, s[20:21] offset:2048
    global_store_dword v3, v39, s[20:21] offset:3072
    s_mov_b64 exec, s[22:23]
    K1_NOT:
    v_lshlrev_b32 v3, 4, v0
    s_mul_i32 s24, s2, #(CH*8)
    s_add_u32 s24, s24, #(WS_REC)
    v_add_u32 v4, s24, v3
    v_add_u32 v5, 6400, v4
    s_waitcnt lgkmcnt(0)
    s_barrier
    ds_read_b128 v[12:15], v3 offset:2048
    ds_read_b128 v[16:19], v3 offset:#(2048+6400)
    s_waitcnt lgkmcnt(1)
    global_store_dwordx4 v4, v[12:15], s[20:21] %s
    s_waitcnt lgkmcnt(0)
    global_store_dwordx4 v5, v[16:19], s[20:21] %s
    """ % (st, st))
    fin()
    a("""
    K1_EXTRA:
    s_mul_i32 s24, s2, 50
    v_add_u32 v3, s24, v2
    v_mul_u32_u24 v4, 6, v3
    v_lshlrev_b32 v3, 4, v3
    v_add_u32 v3, #(WS_POS), v3
    s_waitcnt lgkmcnt(0)
    s_bfm_b64 exec, 50, 0
    global_load_ushort v8, v4, s[6:7]
    global_load_ushort v9, v4, s[6:7] offset:2
    global_load_ushort v10, v4, s[6:7] offset:4
    s_mov_b64 exec, -1
    """)
    if opt.get("tlbw"):
        a("""
        s_load_dwordx2 s[28:29], s[0:1], 64
        s_lshr_b32 s24, s2, 3
        v_lshl_add_u32 v20, v2, 5, s24
        v_mul_u32_u24 v21, #(11*4096), v20
        v_mul_u32_u24 v22, 12792, v20
        s_mov_b64 exec, 0xff
        global_load_dword v23, v21, s[20:21]
        s_waitcnt lgkmcnt(0)
        global_load_dword v24, v22, s[28:29]
        s_mov_b64 exec, -1
        """)
    a("""
    s_barrier
    s_cmp_ge_u32 s2, 96
    s_cbranch_scc1 K1_XPOS
    s_cmp_ge_u32 s2, 32
    s_cbranch_scc1 K1_XWH
    v_and_b32 v5, 15, v2
    s_lshr_b32 s24, s2, 2
    s_lshl_b32 s24, s24, 4
    v_add_lshl_u32 v5, v5, s24, 1
    v_lshrrev_b32 v6, 4, v2
    v_lshlrev_b32 v6, 1, v6
    s_movk_i32 s26, 0x9c
    v_bfe_u32 v6, s26, v6, 2
    s_and_b32 s25, s2, 3
    s_lshl_b32 s25, s25, 13
    v_lshl_add_u32 v5, v6, 11, v5
    v_add_u32 v5, s25, v5
    """)
    for j in range(8):
        a("global_load_ushort %s, v5, s[14:15] offset:%d" % (v(12 + j), j * 256))
    a("""
    s_lshl_b32 s24, s2, 10
    s_add_u32 s24, s24, #(WS_WF)
    v_lshl_add_u32 v7, v2, 4, s24
    s_branch K1_XWST
    K1_XWH:
    s_sub_u32 s24, s2, 32
    s_bfe_u32 s25, s24, 0x20003
    s_lshl_b32 s25, s25, 5
    s_and_b32 s26, s24, 1
    s_lshl_b32 s26, s26, 4
    s_add_u32 s25, s25, s26
    s_bfe_u32 s26, s24, 0x20001
    s_lshl_b32 s26, s26, 2
    s_add_u32 s25, s25, s26
    v_and_b32 v6, 3, v2
    v_add_lshl_u32 v5, v6, s25, 1
    v_lshrrev_b32 v4, 2, v2
    v_lshlrev_b32 v7, 4, v4
    v_lshl_add_u32 v7, v6, 8, v7
    s_lshl_b32 s24, s24, 10
    s_add_u32 s24, s24, #(WS_Q+NQ*256)
    v_add_u32 v7, s24, v7
    s_cmp_ge_u32 s2, 64
    s_cbranch_scc1 K1_XW2
    v_lshl_add_u32 v5, v4, 11, v5
    """)
    for j in range(8):
        a("global_load_ushort %s, v5, s[18:19] offset:%d" % (v(12 + j), j * 256))
    a("""
    s_branch K1_XWST
    K1_XW2:
    v_and_b32 v6, 7, v4
    v_lshl_add_u32 v5, v6, 10, v5
    v_lshrrev_b32 v6, 3, v4
    v_lshl_add_u32 v5, v6, 14, v5
    v_add_u32 v5, 32768, v5
    v_add_u32 v6, 8192, v5
    """)
    for j in range(8):
        a("global_load_ushort %s, %s, s[18:19] offset:%d" % (v(12 + j), v(5 + (j & 1)), (j >> 1) * 256))
    a("""
    K1_XWST:
    s_barrier
    s_waitcnt vmcnt(0)
    v_lshl_or_b32 v12, v13, 16, v12
    v_lshl_or_b32 v13, v15, 16, v14
    v_lshl_or_b32 v14, v17, 16, v16
    v_lshl_or_b32 v15, v19, 16, v18
    global_store_dwordx4 v7, v[12:15], s[20:21] %s
    s_branch K1_XP2
    K1_XPOS:
    s_barrier
    s_waitcnt vmcnt(0)
    K1_XP2:
    s_bfm_b64 exec, 50, 0
    v_lshlrev_b32 v8, 16, v8
    v_lshlrev_b32 v9, 16, v9
    v_lshlrev_b32 v10, 16, v10
    v_mov_b32 v11, 0
    global_store_dwordx4 v3, v[8:11], s[20:21] %s
    s_barrier
    """ % (st, st))
    fin()
    a("""
    K1_IMG:
    s_cmp_lg_u32 s2, #(NCH)
    s_cbranch_scc1 K1_TAB
    v_and_b32 v3, 255, v0
    v_lshlrev_b32 v4, 1, v3
    v_add_u32 v4, 65536, v4
    v_and_b32 v5, 127, v0
    v_lshlrev_b32 v6, 1, v5
    s_waitcnt lgkmcnt(0)
    global_load_ushort v8, v4, s[14:15]
    global_load_ushort v9, v6, s[16:17]
    v_lshlrev_b32 v4, 3, v0
    v_mov_b32 v10, 0
    v_mov_b32 v11, 0
    ds_write_b64 v4, v[10:11]
    v_bfe_u32 v7, v0, 7, 1
    v_mul_u32_u24 v7, #(2*RS), v7
    v_add_u32 v7, v7, v6
    v_and_b32 v12, 31, v0
    v_lshlrev_b32 v12, 4, v12
    v_bfe_u32 v13, v0, 5, 2
    v_lshl_add_u32 v12, v13, 2, v12
    v_and_b32 v13, 7, v0
    v_mul_u32_u24 v13, 18, v13
    v_mov_b32 v14, 0x3f80
    s_waitcnt lgkmcnt(0)
    s_barrier
    ds_write_b16 v13, v14 offset:#(L_LUTC-L_IMG)
    s_waitcnt vmcnt(0)
    v_lshlrev_b32 v8, 16, v8
    v_mul_f32 v8, #(f32(-LOG2E)), v8
    v_cvt_pk_bf16_f32 v10, v8, v8
    v_and_b32 v11, 0xffff0000, v10
    v_sub_f32 v8, v8, v11
    v_cvt_pk_bf16_f32 v11, v8, v8
    v_lshlrev_b32 v9, 16, v9
    v_mul_f32 v9, #(f32(-LN2*2.0**-KEXP)), v9
    ds_write_b16 v7, v10 offset:#(L_WZ+4*RS-L_IMG)
    ds_write_b16 v7, v11 offset:#(L_WZ+5*RS-L_IMG)
    ds_write_b32 v12, v9 offset:#(L_WX-L_IMG)
    s_waitcnt lgkmcnt(0)
    s_barrier
    ds_read_b64 v[10:11], v4
    v_add_u32 v4, #(WS_IMG), v4
    s_waitcnt lgkmcnt(0)
    global_store_dwordx2 v4, v[10:11], s[20:21]
    s_endpgm
    K1_TAB:
    s_cmp_lg_u32 s2, #(NCH+1)
    s_cbranch_scc1 K1_END
    s_cmp_lg_u32 s3, 0
    s_cbranch_scc1 K1_END
    v_and_b32 v3, 31, v2
    v_lshrrev_b32 v4, 5, v2
    v_bfe_u32 v5, v2, 2, 2
    v_and_b32 v6, 3, v2
    v_bfe_u32 v7, v2, 4, 1
    v_lshrrev_b32 v8, 4, v2
    v_and_b32 v9, 15, v2
    v_lshrrev_b32 v10, 2, v2
    v_lshlrev_b32 v11, 3, v6
    v_lshl_add_u32 v11, v7, 5, v11
    v_xor_b32 v12, v5, v4
    v_lshlrev_b32 v12, 4, v12
    v_lshlrev_b32 v16, 1, v8
    s_movk_i32 s24, 0x9c
    v_bfe_u32 v16, s24, v16, 2
    v_xor_b32 v16, v16, v5
    v_lshlrev_b32 v16, 4, v16
    v_lshl_add_u32 v16, v9, 6, v16
    v_add_u32 v16, #(L_H), v16
    v_mul_u32_u24 v17, #(RS), v9
    v_lshl_add_u32 v17, v8, 3, v17
    v_lshlrev_b32 v18, 4, v3
    v_mov_b32 v19, 0
    v_mul_u32_u24 v20, 72, v3
    v_add_u32 v20, #(L_S), v20
    v_lshl_add_u32 v21, v4, 2, v5
    v_mul_u32_u24 v21, 72, v21
    v_add_u32 v21, v21, v11
    v_add_u32 v21, #(L_S), v21
    v_lshl_add_u32 v22, v4, 8, v11
    v_bfe_u32 v13, v2, 3, 1
    v_lshl_add_u32 v22, v13, 6, v22
    s_mov_b32 exec_lo, 0x0f0f0f0f
    s_mov_b32 exec_hi, 0x0f0f0f0f
    v_mov_b32 v22, 0x40000
    s_mov_b64 exec, -1
    v_mul_u32_u24 v23, #(RS), v5
    v_mul_u32_u24 v13, #(L_P-L_WZ), v4
    v_add3_u32 v23, v23, v11, v13
    v_add_u32 v23, #(L_WZ), v23
    v_xor_b32 v24, v6, v8
    v_lshlrev_b32 v24, 4, v24
    v_lshl_add_u32 v24, v10, 8, v24
    v_lshl_add_u32 v24, v6, 28, v24
    v_add_u32 v24, #(NQ*256), v24
    v_add_u32 v25, 4096, v24
    v_mul_u32_u24 v26, #(L_POSD-L_LUTC), v4
    v_sub_u32 v26, #(L_POSD), v26
    v_lshlrev_b32 v27, 3, v10
    v_add_u32 v27, #(L_REC), v27
    v_lshlrev_b32 v28, 3, v3
    v_add_u32 v28, #(L_REC), v28
    v_lshl_add_u32 v29, v5, 1, v4
    v_lshl_add_u32 v29, v29, 2, v6
    v_lshlrev_b32 v29, 2, v29
    v_mul_u32_u24 v30, #(RS), v3
    v_lshl_add_u32 v30, v4, 4, v30
    v_lshl_add_u32 v31, v3, 6, v12
    v_add_u32 v31, #(L_G), v31
    v_mul_u32_u24 v32, 80, v3
    v_lshl_add_u32 v32, v4, 5, v32
    v_mul_u32_u24 v33, 80, v10
    v_lshl_add_u32 v33, v6, 4, v33
    v_lshlrev_b32 v34, 8, v10
    v_lshl_add_u32 v34, v6, 4, v34
    v_lshlrev_b32 v35, 2, v2
    v_mul_u32_u24 v36, #(RS), v4
    v_lshl_add_u32 v36, v3, 2, v36
    v_mov_b32 v37, v4
    v_lshl_add_u32 v38, v9, 6, v12
    v_lshl_add_u32 v38, v7, 12, v38
    v_add_u32 v38, #(L_H), v38
    v_mul_u32_u24 v39, 48, v4
    v_xor_b32 v39, v39, v38
    v_lshlrev_b32 v13, 4, v2
    v_add_u32 v13, #(WS_IMG+4096), v13
    v_add_u32 v14, 4096, v13
    s_waitcnt lgkmcnt(0)
    global_store_dwordx4 v13, v[16:19], s[20:21]
    global_store_dwordx4 v13, v[20:23], s[20:21] offset:1024
    global_store_dwordx4 v13, v[24:27], s[20:21] offset:2048
    global_store_dwordx4 v13, v[28:31], s[20:21] offset:3072
    global_store_dwordx4 v14, v[32:35], s[20:21]
    global_store_dwordx4 v14, v[36:39], s[20:21] offset:1024
    s_endpgm
    """)
    a("K1_GEMM:")
    if not opt.get("gemm_first"):
        a("s_sub_u32 s2, s2, 256")
    a("""
    s_and_b32 s22, s2, 7
    s_lshr_b32 s39, s2, 3
    s_mul_i32 s2, s22, 49
    s_lshl_b32 s22, s39, 1
    s_add_u32 s2, s2, s22
    v_lshrrev_b32 v3, 4, v2
    v_lshlrev_b32 v4, 2, v3
    v_and_b32 v5, 15, v2
    v_xor_b32 v4, v4, v5
    v_lshlrev_b32 v4, 4, v4
    v_lshl_add_u32 v4, v3, 8, v4
    s_lshl_b32 s22, s3, 12
    s_add_u32 s23, s22, 32768
    v_and_b32 v5, 3, v2
    v_xor_b32 v5, v5, v3
    v_lshlrev_b32 v5, 4, v5
    v_lshrrev_b32 v6, 2, v2
    v_lshl_add_u32 v5, v6, 8, v5
    s_lshr_b32 s24, s3, 1
    s_lshl_b32 s25, s2, 1
    s_add_u32 s25, s25, s24
    s_lshl_b32 s25, s25, 12
    s_and_b32 s26, s3, 1
    s_lshl_b32 s27, s26, 7
    s_add_u32 s25, s25, s27
    s_lshr_b32 s27, s3, 2
    s_lshl_b32 s27, s27, 13
    s_lshl_b32 s26, s26, 12
    s_add_u32 s27, s27, s26
    s_and_b32 s24, s24, 1
    s_lshl_b32 s24, s24, 10
    s_add_u32 s27, s27, s24
    s_add_u32 s27, s27, 32768
    s_waitcnt lgkmcnt(0)
    s_mov_b32 s28, s4
    s_mov_b32 s29, s5
    s_mov_b32 s30, #(N*256)
    s_mov_b32 s31, 0x20000
    s_mov_b32 s32, s14
    s_mov_b32 s33, s15
    s_mov_b32 s34, #(258*256)
    s_mov_b32 s35, 0x20000
    s_mov_b32 m0, s27
    v_add_u32 v5, s25, v5
    buffer_load_dwordx4 v5, s[28:31], 0 offen %s lds
    s_add_u32 m0, s27, #(2048-64)
    s_nop 0
    buffer_load_dwordx4 v5, s[28:31], 0 offen offset:64 %s lds
    s_mov_b32 m0, s22
    s_nop 0
    """ % ((opt.get("k1_hld", "").replace("+", " "),) * 2))
    if opt.get("k1x", 0) & 1:
        for i in range(opt.get("k1xn", 4)):
            a("buffer_load_dwordx4 v4, s[32:35], s22 offen offset:%d lds" % (i * 1024))
    for i in range(4):
        a("buffer_load_dwordx4 v4, s[32:35], s23 offen offset:%d lds" % (i * 1024))
    a("""
    s_and_b32 s24, s3, 3
    s_lshr_b32 s26, s3, 2
    v_bfe_u32 v6, v2, 2, 2
    v_xor_b32 v7, s24, v6
    v_lshlrev_b32 v7, 6, v7
    v_lshl_add_u32 v7, v6, 8, v7
    v_lshrrev_b32 v8, 5, v2
    v_lshl_add_u32 v7, v8, 11, v7
    v_and_b32 v9, 1, v2
    v_lshl_add_u32 v7, v9, 5, v7
    v_bfe_u32 v9, v2, 4, 1
    v_lshl_add_u32 v7, v9, 4, v7
    v_bfe_u32 v10, v2, 1, 1
    v_lshl_add_u32 v7, v10, 3, v7
    v_xor_b32 v6, v6, v8
    v_lshlrev_b32 v6, 4, v6
    v_and_b32 v10, 15, v2
    v_lshl_add_u32 v6, v10, 6, v6
    v_lshl_add_u32 v6, v9, 10, v6
    s_lshl_b32 s27, s26, 13
    s_add_u32 s27, s27, 32768
    v_add_u32 v6, s27, v6
    v_xor_b32 v11, 32, v6
    s_mul_i32 s27, s3, 2560
    s_add_u32 s27, s27, 49152
    v_and_b32 v10, 31, v2
    v_mul_u32_u24 v12, 80, v10
    v_lshl_add_u32 v12, v8, 5, v12
    v_add_u32 v12, s27, v12
    v_lshrrev_b32 v10, 2, v2
    v_mul_u32_u24 v13, 80, v10
    v_and_b32 v9, 3, v2
    v_lshl_add_u32 v13, v9, 4, v13
    v_add_u32 v13, s27, v13
    v_lshlrev_b32 v14, 8, v10
    v_lshl_add_u32 v14, v9, 4, v14
    s_add_u32 s25, s2, s26
    s_lshl_b32 s25, s25, 13
    s_lshl_b32 s24, s24, 6
    s_add_u32 s25, s25, s24
    v_add_u32 v14, s25, v14
    v_add_u32 v15, 4096, v14
    s_mov_b32 s36, #(f32(-LOG2E))
    s_mov_b32 s37, s36
    s_lshl_b32 s39, s39, 1
    s_add_u32 s39, s39, s26
    s_waitcnt vmcnt(0)
    s_barrier
    s_cmp_ge_u32 s39, 49
    s_cbranch_scc1 K1_GEND
    """)
    stamp(a, opt, 2, STV)
    A0, B0, DD = 32, 64, 16

    def rd(ks):
        a("ds_read_b64_tr_b16 %s, v7 offset:%d" % (v(A0 + 4 * ks, 2), ks * 4096))
        a("ds_read_b64_tr_b16 %s, v7 offset:%d" % (v(A0 + 4 * ks + 2, 2), ks * 4096 + 1024))
        a("ds_read_b128 %s, %s offset:%d" % (v(B0 + 4 * ks, 4), "v11" if ks & 1 else "v6", (ks >> 1) * 2048))
    for rep in range(2 if opt.get('k1x', 0) & 2 else 1):
        for ks in range(4):
            rd(ks)
        for ks in range(8):
            if ks + 4 < 8:
                rd(ks + 4)
            a("s_waitcnt lgkmcnt(%d)" % (3 * min(4, 7 - ks)))
            a(mfma(DD, A0 + 4 * ks, B0 + 4 * ks, None if ks == 0 else DD))
        a("s_nop 11")
        for i in range(8):
            a("v_pk_mul_f32 %s, %s, s[36:37]" % (v(DD + 2 * i, 2), v(DD + 2 * i, 2)))
        for i in range(8):
            a("v_cvt_pk_bf16_f32 %s, %s, %s" % (v(A0 + i), v(DD + 2 * i), v(DD + 2 * i + 1)))
        a("""
        ds_write_b128 v12, v[32:35]
        ds_write_b128 v12, v[36:39] offset:16
        ds_read_b128 v[40:43], v13
        ds_read_b128 v[44:47], v13 offset:1280
        s_waitcnt lgkmcnt(1)
        global_store_dwordx4 v14, v[40:43], s[20:21] %s
        s_waitcnt lgkmcnt(0)
        global_store_dwordx4 v15, v[44:47], s[20:21] %s
        """ % (st, st))
        if opt.get("k1x", 0) & 2:
            a("v_add_u32 v14, 0x2000000, v14", "v_add_u32 v15, 0x2000000, v15", "s_nop 1")
    a("""
    K1_GEND:
    """)
    fin()
    a("K1_END:", "s_endpgm")


def silu_ops(Y, ng):
    ex = ["v_exp_f32 %s, %s" % (v(EE + i), v(Y + i)) for i in range(4 * ng)]
    r1, r2, r3 = [], [], []
    for g in range(ng):
        r1.append("v_pk_fma_f32 %s, %s, $K:2, $K:2" % (v(TT + 2 * g, 2), v(EE + 4 * g, 2)))
    for g in range(ng):
        r1.append("v_pk_fma_f32 %s, %s, %s, %s" % (v(TT + 2 * g, 2), v(TT + 2 * g, 2), v(EE + 4 * g + 2, 2), v(TT + 2 * g, 2)))
    for i in range(2 * ng):
        r2.append("v_rcp_f32 %s, %s" % (v(TT + i), v(TT + i)))
    for g in range(ng):
        for p in range(2):
            y = v(Y + 4 * g + 2 * p, 2)
            r3.append("v_pk_mul_f32 %s, %s, %s" % (y, y, v(TT + 2 * g, 2)))
    for g in range(ng):
        for p in range(2):
            y = v(Y + 4 * g + 2 * p, 2)
            r3.append("v_pk_fma_f32 %s, %s, %s, %s" % (y, y, v(EE + 4 * g + 2 * (1 - p), 2), y))
    return ex, r1, r2, r3


SHORT = ("v_exp_f32", "v_rcp_f32", "v_sub_f32", "v_add_u32", "v_mov_b32", "v_mul_f32", "v_fmac_f32", "v_add_f32")


def align8(run):
    out, grp = [], []

    def flush():
        if len(grp) % 2:
            for i in range(len(grp) - 1, -1, -1):
                op = grp[i].split()[0]
                if op in SHORT:
                    grp[i] = grp[i].replace(op, op + "_e64", 1)
                    break
            else:
                grp.append("s_nop 0")
        out.extend(grp)
        del grp[:]
    for ins in run:
        op = ins.split()[0]
        if op in SHORT or op in ("s_setprio", "s_nop"):
            grp.append(ins)
        else:
            flush()
            out.append(ins)
    flush()
    return out


def cvts(Dp, n):
    return ["v_cvt_pk_bf16_f32 %s, %s, %s" % (v(PP + i), v(Dp + 2 * i), v(Dp + 2 * i + 1)) for i in range(n)]


def dma(a, slot, wait=None):
    for r in range(2):
        a("s_add_u32 m0, $GW, %d" % (slot * 2048 + r * 1024 - slot * 64))
        a("s_nop 0" if wait is None or r else "s_waitcnt lgkmcnt(%d)" % wait)
        a("buffer_load_dwordx4 @DA+%d, $Q:4, 0 offen offset:%d lds" % (r, slot * 64))


def cq_read(a, slot, n=8):
    for i in range(n):
        a("ds_read_b64_tr_b16 @CQ+%d:2, @Cq offset:%d" % (2 * i, slot * 2048 + (i >> 1) * 512 + (i & 1) * 128))


STUBS = []


def rare_call(a, tag, target):
    a("s_cbranch_scc1 K2_X%s" % tag, "K2_R%s:" % tag)
    STUBS.append("K2_X%s:\ns_call_b64 $RET:2, %s\ns_waitcnt lgkmcnt(0)\ns_branch K2_R%s" % (tag, target, tag))


def logic(a, tag):
    a("""
    s_add_u32 $P2, $P1, 32
    s_min_u32 $E, $P2, $END
    s_sub_u32 $A, $E, $P1
    s_bfm_b64 $MASK:2, $A, 0
    """)
    if tag == "P":
        a("s_call_b64 $RET:2, K2_REBASE")
    else:
        a("s_cmp_gt_u32 $E, $WEND")
        rare_call(a, "REB" + tag, "K2_REBASE")
    a("""
    s_sub_u32 $D8, $P2, $P1
    s_lshl_b32 $D8, $D8, 3
    s_cmp_lt_u32 $P2, $END
    s_cselect_b32 $SEL, $SEL, #(SELW)
    """)


GEOM_A = ["v_sub_f32 @TT+%d, @TT+%d, @GP+%d" % (i, i, i) for i in range(3)]
GEOM_B = ["v_cvt_pk_bf16_f32 @A3, @TT, @TT+1", "v_cvt_pk_bf16_f32 @A3+1, @TT+2, $K"]
GEOM_C = ["v_dot2_f32_bf16 @A3+2, @A3, @A3, 0", "v_dot2_f32_bf16 @A3+2, @A3+1, @A3+1, @A3+2"]
GEOM_D = ["v_cvt_pk_bf16_f32 @A3+2, @A3+2, @A3+2"]
PERMS = ["v_perm_b32 @DA+%d, @TT+%d, @WA+%d, $SEL" % (r, 4 + r, r) for r in range(2)]


def a3_reads(a):
    a("""
    s_mov_b32 exec_lo, 0
    ds_read_b128 @A3:4, @X
    s_not_b64 exec, exec
    ds_read_b32 @A3+3, @Rec offset:4
    s_mov_b64 exec, -1
    """)


def gather_pos(a):
    a("""
    s_mov_b32 exec_hi, 0
    buffer_load_dwordx3 @GP:3, @GP, $POS:4, 0 idxen
    s_mov_b32 exec_hi, -1
    """)


def step(a, half, opt):
    tag = "H" if half else "F"
    useprio = opt.get("prio", 1)
    for t in range(4):
        D, Dn = (D0, D1) if t % 2 == 0 else (D1, D0)
        slot = (t + 1) & 3
        last = half and t == 3
        if t > 0 and useprio:
            a("s_setprio 0")
        w = ([6, 6, 6, None] if half else [6, 7, 4, None])[t]
        a("s_cmp_lg_u32 $SAFE, 0")
        rare_call(a, "SAFE%s%d" % (tag, t), "K2_CLAMP%d" % (t & 1))
        if t == 1:
            a("s_cmp_lg_u32 $FLUSH, 0")
            rare_call(a, "FL" + tag, "K2_FLUSH")
        if t == 3 and not half:
            a("s_cmp_lg_u32 $REB, 0")
            rare_call(a, "B3", "K2_B3LOAD")
        if t == 0 and not half:
            a("ds_read_u16 @GP, @Rec")
        if w is not None:
            a("s_waitcnt vmcnt(%d)" % w)
        if not last:
            cq_read(a, slot, 4 if half else 8)
        nother = 0
        if t == 0:
            a("""
            s_mov_b64 exec, $MASK:2
            ds_write_b64 @S, @A3:2
            s_mov_b64 exec, -1
            """)
            nother = 1
            if not half:
                a("ds_read_u16 @Nn, @Rec offset:2")
                nother = 2
        if t == 1:
            nother = 2 if half else 5
            for i in range(2 if half else 4):
                a("ds_read_b64_tr_b16 @A2+%d:2, @A2a offset:%d" % (2 * i, i * 576))
            if not half:
                a("""
                s_mov_b64 exec, $MASK:2
                ds_write_b64 @S, @B3:2
                s_mov_b64 exec, -1
                """)
                logic(a, tag)
        if t == 2 and not half:
            a("ds_read_b96 @TT:3, @X")
            a("ds_read2_b32 @TT+4:2, @Idx offset0:0 offset1:32")
            nother = 2
        if t == 3 and not half:
            a3_reads(a)
            nother = 2
        if not last:
            if t == 0 and not half:
                a("s_waitcnt lgkmcnt(10)")
                gather_pos(a)
            dma(a, slot, nother)
            if nother:
                a("s_waitcnt lgkmcnt(0)")
        accp = ACC + 16 * ((t + 3) & 3)
        S2a = mfma(accp, A2, PP, accp)
        S2b = mfma(accp, A2 + 4, PP + 4, accp)
        S1 = mfma(Dn, A3, B3 + 4 * slot, CQ)
        ex, r1, r2, r3 = silu_ops(D, 2 if half else 4)
        pre, mid, late, fin = [], [], [], []
        pr = ["s_setprio 1"] if useprio else []
        if not half:
            if t == 1:
                mid = ["v_lshl_add_u32 @X, @Nn, 1, @Xb", "v_add_u32 @S, @Nn, @Sb", "v_add_u32 @Idx, $D8, @Idx"]
            if t == 2:
                mid, late, fin = GEOM_A + PERMS + GEOM_B, GEOM_C, GEOM_D
            if t == 3:
                mid = ["v_add_u32 @Rec, $D8, @Rec"]
            cv = cvts(Dn, 8)
            run = cv[:6] + [S2a] + cv[6:] + ex[:2] + [S1] + pr + ex[2:5] + [S2b] + mid + ex[5:]
            run += late + r1 + fin + r2 + r3
        else:
            if t == 0:
                cv = cvts(Dn, 8)
                run = cv[:6] + [S2a] + cv[6:] + ex[:2] + [S1] + pr + ex[2:] + r1 + [S2b] + r2 + r3
            elif not last:
                cv = cvts(Dn, 4)
                run = cv + [S1] + pr + ex[:3] + [S2a] + ex[3:] + r1 + r2 + r3
            else:
                cv = cvts(Dn, 4)
                run = cv + ex[:2] + [S2a] + pr + ex[2:] + r1 + r2 + r3
        if opt.get("align", 1):
            a(".p2align 3")
            run = align8(run)
        a(*run)


def u_part():
    f, r = [], []
    for t in range(4):
        for g in range(4):
            for c in range(3):
                f.append("%s %s, %s, @WX+%d" % ("v_fmac_f32" if t else "v_mul_f32", v(EE + 4 * g + c), v(ACC + 16 * t + 4 * g + c), t))
    for g in range(4):
        for c in range(3):
            r.append("v_add_f32_dpp %s, %s, %s row_ror:8 row_mask:0xf bank_mask:%s" % (
                v(TT + (g & 1) * 3 + c), v(EE + 4 * g + c), v(EE + 4 * g + c), "0x3" if g < 2 else "0xc"))
    for c in range(3):
        r.append("v_add_f32_dpp @EE+%d, @TT+%d, @TT+%d row_shl:4 row_mask:0xf bank_mask:0x5" % (c, c, c))
    for c in range(3):
        r.append("v_add_f32_dpp @EE+%d, @TT+%d, @TT+%d row_shr:4 row_mask:0xf bank_mask:0xa" % (c, 3 + c, 3 + c))
    for qp in ("[1,0,3,2]", "[2,3,0,1]"):
        for c in range(3):
            r.append("v_add_f32_dpp @EE+%d, @EE+%d, @EE+%d quad_perm:%s row_mask:0xf bank_mask:0xf" % (c, c, c, qp))
    r += """v_cndmask_b32 @EE, @EE, @EE+1, $FM:2
    v_cndmask_b32 @EE, @EE, @EE+2, $FM+2:2
    v_mov_b32 @EE+1, @EE
    s_nop 1
    v_permlane16_swap_b32 @EE, @EE+1
    s_nop 0
    v_add_f32 @EE, @EE, @EE+1
    v_add_f32 @T4, @T4, @EE
    v_cmp_u_f32 vcc, @EE, @EE
    ds_write_b32 @T1, @T4 offset:#(L_U)""".split("\n")
    return f, r


U_PRE = """
    s_lshl_b32 $A, $WBO8, 1
    v_add_u32 @T1, $A, @fU
    ds_read_b128 @WX:4, @WXa offset:#(L_WX)
    ds_read_b32 @T4, @T1 offset:#(L_U)
    s_mov_b32 $FM, 0x22222222
    s_mov_b32 $FM+1, 0x22222222
    s_mov_b32 $FM+2, 0x44444444
    s_mov_b32 $FM+3, 0x44444444
"""


def flush_m(a, tag):
    a("""
    v_cmp_gt_u32 vcc, $RE, @Incl
    s_mul_i32 $A, $WBO8, 34
    v_add_u32 @T2, $A, @fM
    s_lshr_b32 $A, $WBO8, 3
    s_bcnt1_i32_b64 $B, vcc
    s_sub_u32 $B, $B, $A
    v_sub_u32 @T3, $B, @Hh
    """)
    for g in range(4):
        a("v_cmp_le_i32 $FM+%d:2, %d, @T3" % (2 * g, 2 * g))
    for p in range(2):
        for g in range(4):
            a("v_cvt_pk_bf16_f32 @PP+%d, %s, %s" % (2 * g + p, v(ACC + 32 * p + 4 * g + 3), v(ACC + 32 * p + 16 + 4 * g + 3)))
    a("""
    s_lshl_b32 $B, $ATOM, 2
    s_or_b32 $B, $B, $CONTO
    s_cbranch_scc0 K2_FLW%s
    s_cmp_lg_u32 $B, 1
    s_cbranch_scc1 K2_FLX%s
    s_mov_b32 $FM, 0
    s_mov_b32 $CN, $A
    v_mov_b32 @CONT, v3
    v_mov_b32 @CONT+1, v19
    v_mov_b32 @CONT+2, v35
    v_mov_b32 @CONT+3, v51
    K2_FLW%s:
    """ % (tag, tag, tag))
    for g in range(4):
        a("s_mov_b64 exec, $FM+%d:2" % (2 * g))
        for p in range(2):
            a("ds_write_b32 @T2, @PP+%d offset:%d" % (2 * g + p, L_M + 2 * g * RS + 128 * p))
    a("K2_FLU%s:" % tag, "s_mov_b64 exec, -1")
    x = """K2_FLX%s:
    s_cmp_eq_u32 $B, 2
    s_cbranch_scc0 K2_FLA%s
    s_mov_b32 $FM, 0
    s_mov_b32 exec_hi, 0
    ds_pk_add_bf16 @T2, @PP offset:#(L_M)
    ds_pk_add_bf16 @T2, @PP+1 offset:#(L_M+128)
    s_branch K2_FLW%s
    K2_FLA%s:
    """ % (tag, tag, tag, tag)
    for g in range(4):
        x += "s_mov_b64 exec, $FM+%d:2\n" % (2 * g)
        for p in range(2):
            x += "ds_pk_add_bf16 @T2, @PP+%d offset:%d\n" % (2 * g + p, L_M + 2 * g * RS + 128 * p)
    x += "s_branch K2_FLU%s" % tag
    STUBS.append(x)


def gen_k2(a, opt):
    ST = VR["ST"]
    a("""
    main_kernel:
    s_cmp_ge_u32 s2, 256
    s_cbranch_scc1 K2_END
    s_load_dwordx2 s[22:23], s[0:1], 80
    s_load_dwordx2 s[4:5], s[0:1], 0
    s_load_dwordx2 s[20:21], s[0:1], 64
    v_mov_b32 @Tid, v0
    v_lshrrev_b32 v1, 6, v0
    s_mov_b32 $BK, s2
    v_readfirstlane_b32 s3, v1
    s_and_b32 $A, s2, 7
    s_lshl_b32 $A, $A, 5
    s_lshr_b32 s2, s2, 3
    s_add_u32 s2, s2, $A
    s_mov_b32 $O, 0
    s_mov_b32 $QUOTA, 24
    s_mov_b32 $SAFE, 0
    s_mov_b32 $FIRST, 1
    K2_ROUND:
    s_setprio 3
    v_and_b32 @L, 63, @Tid
    v_lshrrev_b32 @T0, 2, @Tid
    v_lshlrev_b32 @T0, 3, @T0
    s_lshl_b32 $A, s2, 10
    s_add_u32 $A, $A, #(WS_T)
    v_add_u32 @T0, $A, @T0
    s_waitcnt lgkmcnt(0)
    """)
    stamp(a, opt, 0, ST, True)
    stamp(a, opt, 1, ST)
    lstamp(a, opt, "start")
    a("""
    global_load_dwordx2 @Ta:2, @T0, s[22:23]
    """)
    lstamp(a, opt, "tiss")
    a("""
    s_mov_b32 $Q, s22
    s_mov_b32 $Q+1, s23
    s_mov_b32 $Q+2, #(WS_DBG)
    s_mov_b32 $Q+3, 0x20000
    """)
    NRP = opt.get("recpf", 0)
    if NRP:
        a("""
        s_lshr_b32 $A, $BK, 3
        s_lshl_b32 $A, $A, 3
        s_add_u32 $A, $A, s3
        s_mul_i32 $A, $A, #(CH*8)
        s_and_b32 $B, $BK, 7
        s_mul_i32 $B, $B, 1604
        s_add_u32 $A, $A, $B
        s_add_u32 $A, $A, %d
        v_lshl_add_u32 @T2, @L, 7, $A
        s_bfm_b64 exec, %d, 0
        buffer_load_dword @Pf, @T2, $Q:4, 0 offen
        s_mov_b64 exec, -1
        """ % ((WS_REC + 803 - 64 * (NRP - 1)) & ~3, NRP))
    a("""
    v_lshlrev_b32 @T4, 4, @L
    s_lshl_b32 $A, s3, 10
    s_add_u32 m0, $A, #(L_IMG)
    s_add_u32 $B, $A, #(WS_IMG)
    buffer_load_dwordx4 @T4, $Q:4, $B offen lds
    s_mul_i32 $E, s2, #(NB)
    s_cmp_ge_u32 s3, 3
    s_cbranch_scc1 K2_NOC2
    s_lshl_b32 $D8, $E, 4
    s_add_u32 $D8, $D8, #(WS_POS)
    s_add_u32 $B, $B, 8192
    s_add_u32 $REP, $A, #(L_IMG+8192)
    s_cmp_lt_u32 s3, 2
    s_cselect_b32 m0, $REP, #(L_POSD)
    s_cselect_b32 $B, $B, $D8
    buffer_load_dwordx4 @T4, $Q:4, $B offen lds
    K2_NOC2:
    """)
    lstamp(a, opt, "ciss")
    a("""
    s_mov_b32 $H, s4
    s_mov_b32 $H+1, s5
    s_mov_b32 $H+2, #(N*256)
    s_mov_b32 $H+3, 0x20000
    v_lshrrev_b32 @T3, 4, @L
    v_and_b32 @T1, 3, @L
    v_xor_b32 @T0, @T3, @T1
    v_lshlrev_b32 @T0, 4, @T0
    v_lshrrev_b32 @T2, 2, @L
    v_lshl_add_u32 @T0, @T2, 8, @T0
    s_lshr_b32 $B, s3, 1
    s_lshl_b32 $B, $B, 4
    s_add_u32 $B, $B, $E
    s_lshl_b32 $B, $B, 1
    s_and_b32 $D8, s3, 1
    s_add_u32 $B, $B, $D8
    s_lshl_b32 $B, $B, 7
    s_lshl_b32 $D8, s3, 11
    s_add_u32 m0, $D8, #(L_H)
    v_add_u32 @T0, $B, @T0
    buffer_load_dwordx4 @T0, $H:4, 0 offen lds
    s_add_u32 m0, $D8, #(L_H+1024-64)
    s_lshl_b32 $B, s3, 12
    buffer_load_dwordx4 @T0, $H:4, 0 offen offset:64 lds
    s_add_u32 $WEND, $B, #(WS_WF)
    """)

    def wload(lo, hi):
        for ks in range(lo, hi):
            a("buffer_load_dwordx4 @W1+%d:4, @T4, $Q:4, $WEND offen offset:%d" % (4 * ks, ks * 1024))
    W1PRE = opt.get("w1pre", 1)
    W1MID = opt.get("w1mid", 1)
    wload(0, W1PRE)
    lstamp(a, opt, "hiss")
    a("""
    v_mov_b32 @Z, 0
    v_mov_b32 @Z+1, 0
    v_mov_b32 @Z+2, 0
    v_mov_b32 @Z+3, 0
    s_mul_i32 $WBO8, s3, #(SW)
    v_lshlrev_b32 @T0, 3, @L
    ds_write_b64 @T0, @Z:2
    v_add_u32 @T0, $WBO8, @T4
    v_lshl_add_u32 @Hb1, @L, 2, $WBO8
    ds_write_b128 @T0, @Z:4 offset:#(L_S)
    ds_write_b128 @T0, @Z:4 offset:#(L_S+1024)
    ds_write_b32 @Hb1, @Z offset:#(L_S+2048)
    v_add_u32 @T0, $A, @T4
    s_cmp_eq_u32 $FIRST, 0
    s_cbranch_scc1 K2_NOZU
    ds_write_b128 @T0, @Z:4 offset:#(L_U)
    K2_NOZU:
    """)
    lstamp(a, opt, "zero")
    a("""
    v_lshlrev_b32 @T3, 1, @T3
    s_movk_i32 $B, 0x9c
    v_bfe_u32 @T3, $B, @T3, 2
    v_xor_b32 @T3, @T3, @T2
    v_and_b32 @T3, 3, @T3
    v_and_b32 @Hb1, 15, @L
    v_lshlrev_b32 @Hb1, 6, @Hb1
    v_lshl_add_u32 @Hb1, @T3, 4, @Hb1
    v_add_u32 @Hb1, #(L_H), @Hb1
    v_mul_u32_u24 @Ch, #(CH*16), @T2
    v_lshlrev_b32 @T1, 1, @T1
    v_add_u32 @T1, $O, @T1
    s_mul_i32 $B, s3, #(CH)
    s_add_u32 $B, $B, #(WS_REC//8)
    v_add3_u32 @Ch, @Ch, @T1, $B
    v_add_u32 @T3, #(8*CH), @Ch
    s_cmp_lt_u32 s3, #(NCH-248)
    s_cselect_b32 $P1, 0, 0xf0000000
    s_add_u32 $B, $O, $QUOTA
    """)
    for i in range(4):
        a("v_pk_mov_b32 @A2+%d:2, @Z:2, @Z:2" % (2 * i))
        a("v_pk_mov_b32 @RADDR+%d:2, @Z:2, @Z:2" % (2 * i))
    for i in range(8):
        a("v_bfrev_b32 @RANK+%d, -4.0" % i if False else "v_mov_b32 @RANK+%d, 0x8000" % i)
    NPF = opt.get("qpf", 24)
    if NPF:
        a("""
        s_lshr_b32 $D8, $BK, 3
        s_lshl_b32 $D8, $D8, 3
        s_add_u32 $D8, $D8, s3
        s_mul_i32 $D8, $D8, %d
        s_and_b32 $REP, $BK, 7
        s_add_u32 $REP, $REP, 1
        s_mul_i32 $REP, $REP, #(1568*256)
        s_add_u32 $D8, $D8, $REP
        s_sub_u32 $REP, $D8, #(NQ*256)
        s_cselect_b32 $P2, $D8, $REP
        v_lshlrev_b32 @X, 7, @L
        """ % (NPF * 128))
    a("""
    s_mov_b32 $L2E, #(f32(-LOG2E))
    s_mov_b32 $L2E+1, #(f32(-LOG2E))
    s_add_u32 $POS, s22, #(WS_POS)
    s_addc_u32 $POS+1, s23, 0
    s_or_b32 $POS+1, $POS+1, 0x100000
    s_mov_b32 $POS+2, #(N)
    s_mov_b32 $POS+3, 0x20000
    s_mov_b32 $K, #(f32(2.0**-KEXP))
    s_mov_b32 $K+1, #(f32(2.0**-KEXP))
    s_mov_b32 $OUT, s20
    s_mov_b32 $OUT+1, s21
    s_add_u32 $OUT+2, $E, #(NB)
    s_min_u32 $OUT+2, $OUT+2, #(N)
    s_lshl_b32 $OUT+2, $OUT+2, 8
    s_mov_b32 $OUT+3, 0x20000
    s_xor_b32 $ATOM, $FIRST, 1
    """)
    lstamp(a, opt, "preT")
    a("""
    s_mov_b32 exec_lo, 0
    s_mov_b32 exec_hi, $P1
    s_waitcnt vmcnt(%d)
    v_mov_b32 @Tb, 0
    s_mov_b64 exec, -1
    v_and_b32 @Ra, 0xffff, @Ta
    v_and_b32 @Ra+1, 0xffff, @Tb
    v_lshrrev_b32 @Ta, 16, @Ta
    v_lshrrev_b32 @Tb, 16, @Tb
    v_min_u32 @T0, $B, @Ta
    v_min_u32 @T2, $B, @Tb
    v_sub_u32 @T0, @T0, @T1
    v_sub_u32 @T2, @T2, @T1
    v_add_lshl_u32 @Ra, @Ra, @Ch, 3
    v_add_lshl_u32 @Ra+1, @Ra+1, @T3, 3
    """ % (3 + W1PRE + (1 if NRP else 0)))
    stamp(a, opt, 2, ST)
    lstamp(a, opt, "T")
    slots = [(L, i) for L in range(3) for i in range(2)]
    rem = ("@T0", "@T2")
    for q, (L, i) in enumerate(slots[:4]):
        a("v_cmp_lt_i32 $M+%d:2, %d, %s" % (4 * q, 8 * L, rem[i]))
    for q, (L, i) in enumerate(slots[:4]):
        a("s_mov_b64 exec, $M+%d:2" % (4 * q))
        a("global_load_dwordx4 @REC0+%d:4, @Ra+%d, s[22:23] offset:%d" % (4 * q, i, 64 * L))
    a("""
    s_mov_b64 exec, -1
    v_max_i32 @S, @T0, @T2
    v_cmp_lt_i32 $M+16:2, 16, @S
    """)
    wload(W1PRE, W1PRE + W1MID)
    a("""
    s_cmp_lg_u64 $M+16:2, 0
    s_cbranch_scc1 K2_L20
    K2_L20R:
    """)
    lstamp(a, opt, "r1iss")
    a("""
    s_waitcnt vmcnt(%d) lgkmcnt(0)
    s_barrier
    """ % (4 + W1PRE + W1MID))
    lstamp(a, opt, "barA")
    for k in range(12):
        a("ds_read_b128 %s, @Hb1 offset:%d" % (v(ACC + 4 * k, 4), (k >> 2) * 4096 + (k & 3) * 1024))
    wload(W1PRE + W1MID, 4)
    NLATE = 4 - W1PRE
    for q, (L, i) in enumerate(slots[:4]):
        a("v_cmp_lt_i32 $M+%d:2, %d, %s" % (4 * q + 2, 8 * L + 1, rem[i]))
    a("""
    v_max_u32 @Ch, @Ta, @Tb
    v_cmp_lt_u32 vcc, $B, @Ch
    v_mov_b32 @T3, 1
    s_waitcnt lgkmcnt(4)
    """)
    for k in range(12, 16):
        a("ds_read_b128 %s, @Hb1 offset:%d" % (v(ACC + 4 * k, 4), (k >> 2) * 4096 + (k & 3) * 1024))
    for g, r in enumerate(TABREG):
        a("ds_read_b128 %s, @T4 offset:%d" % (v(r, 4), L_P + g * 1024))
    stamp(a, opt, 3, ST)
    lstamp(a, opt, "hbiss")
    for q in range(8):
        if q % 2 == 0:
            a("s_waitcnt vmcnt(%d)%s" % (NLATE + 3 - q // 2, " lgkmcnt(7)" if q == 0 else ""))
        if q == 0:
            stamp(a, opt, 4, ST)
            lstamp(a, opt, "R1b")
        a("s_mov_b64 exec, $M+%d:2" % (2 * q))
        a("v_lshrrev_b32 @RADDR+%d, 17, @REC0+%d" % (q, 2 * q))
        a("ds_add_rtn_u32 @RANK+%d, @RADDR+%d, @T3" % (q, q))
    M16 = "v_mfma_f32_16x16x32_bf16"
    pm = []
    for ks in range(4):
        for rg in range(4):
            pm.append("%s @EE+%d:4, @W1+%d:4, %s, %s" % (M16, 4 * rg, 4 * ks, v(ACC + 16 * rg + 4 * ks, 4), "0" if ks == 0 else "@EE+%d:4" % (4 * rg)))
    a("""
    s_mov_b64 exec, -1
    s_lshl_b32 $GW, s3, 13
    s_lshl_b32 $B, s3, 5
    s_waitcnt lgkmcnt(8)
    v_add_u32 @WA, $GW, @WA
    v_add_u32 @WA+1, $GW, @WA+1
    v_add_u32 @Pw, $B, @Pw
    s_add_u32 $GW, $GW, #(L_G)
    s_or_b64 $MASK:2, vcc, $M+16:2
    s_cbranch_scc1 K2_L2A
    K2_L2AR:
    """)
    lstamp(a, opt, "hist")
    a("""
    s_waitcnt lgkmcnt(0)
    s_barrier
    """)
    lstamp(a, opt, "barB")
    a("ds_read_b32 @T1, @Us")
    if NPF:
        a("""
        %s
        buffer_load_dword @Pf, @X, $Q:4, $P2 offen
        s_mov_b64 exec, -1
        """ % ("s_bfm_b64 exec, %d, 0" % NPF if NPF < 64 else ""))
    a("s_waitcnt vmcnt(%d)" % (1 if NPF else 0))
    a(*pm[:4])
    a("s_waitcnt lgkmcnt(0)", "v_mov_b32 @Incl, @T1")
    stamp(a, opt, 5, ST)
    lstamp(a, opt, "cnt")
    scan64(a, VR["Incl"], pm[4:])
    lstamp(a, opt, "scan")
    a("""
    v_sub_u32 @Ch, @Incl, @T1
    v_readlane_b32 $TOTAL, @Incl, 63
    ds_write_b32 @Us, @Ch offset:#(L_EXC)
    """)
    for q in range(8):
        a("ds_read_b32 @RADDR+%d, @RADDR+%d offset:#(L_EXC)" % (q, q))
    a("""
    s_cmp_gt_u32 $TOTAL, #(CAP)
    s_cbranch_scc1 K2_OVERFLOW
    """)
    for i in range(8):
        a("v_pk_mul_f32 @EE+%d:2, @EE+%d:2, $L2E:2" % (2 * i, 2 * i))
    for q in range(8):
        a("s_waitcnt lgkmcnt(7)")
        a("v_add_lshl_u32 @RADDR+%d, @RADDR+%d, @RANK+%d, 3" % (q, q, q))
        a("ds_write_b64 @RADDR+%d, @REC0+%d:2 offset:#(L_REC)" % (q, 2 * q))
    lstamp(a, opt, "scat")
    for i in range(8):
        a("v_cvt_pk_bf16_f32 @EE+%d, @EE+%d, @EE+%d" % (i, 2 * i, 2 * i + 1))
    for rg in range(4):
        a("ds_write_b64 @Pw, @EE+%d:2 offset:%d" % (2 * rg, L_P + rg * 16 * RS))
    a("""
    v_add_lshl_u32 @T0, @L, $TOTAL, 3
    ds_write_b64 @T0, @Z:2 offset:#(L_REC)
    s_add_u32 $A, $TOTAL, 15
    s_bfe_u32 $B, $A, 0x30004
    s_lshr_b32 $A, $A, 7
    s_mul_i32 $P1, s3, $A
    s_min_u32 $D8, s3, $B
    s_add_u32 $P1, $P1, $D8
    s_cmp_lt_u32 s3, $B
    s_addc_u32 $END, $P1, $A
    s_lshl_b32 $B, $P1, 7
    s_lshl_b32 $A, $A, 4
    v_subrev_u32 @T1, 1, @T1
    v_cmp_le_u32 vcc, $A, @T1
    v_add_u32 @Idx, $B, @Idx
    v_add_u32 @Rec, $B, @Rec
    s_cmp_lt_u32 $P1, $END
    s_cselect_b32 $SEL, #(SELQ-SELW), 0
    s_add_u32 $SEL, $SEL, #(SELW)
    s_and_b32 vcc_hi, vcc_hi, 0x1ffff
    s_or_b64 $MASK:2, vcc, $M+16:2
    s_cbranch_scc1 K2_L2B
    K2_L2BR:
    """)
    lstamp(a, opt, "preC")
    a("""
    s_waitcnt lgkmcnt(0)
    s_barrier
    """)
    lstamp(a, opt, "barC")
    a("""
    ds_read2_b32 @TT+4:2, @Idx offset0:0 offset1:32
    ds_read_u16 @GP, @Rec
    ds_read_u16 @Nn, @Rec offset:2
    s_lshl_b32 $P1, $P1, 4
    s_lshl_b32 $END, $END, 4
    s_min_u32 $END, $END, $TOTAL
    v_cmp_ge_u32 vcc, $P1, @Incl
    """)
    a(mfma(ACC, VR["Z"], VR["Z"], None))
    a("""
    s_add_u32 $P2, $P1, 32
    s_min_u32 $D8, $P2, $END
    s_bcnt1_i32_b64 $B, vcc
    s_min_u32 $B, $B, 48
    s_add_u32 $A, $B, 7
    v_readlane_b32 $WEND, @Incl, $A
    v_readlane_b32 $CONTC, @Ch, $B
    s_lshl_b32 $WB8, $B, 3
    s_waitcnt lgkmcnt(1)
    """)
    stamp(a, opt, 6, ST)
    lstamp(a, opt, "idx")
    a(*PERMS)
    gather_pos(a)
    ND1 = opt.get("nd1", 2)
    for slot in range(ND1):
        dma(a, slot)
    lstamp(a, opt, "dma01")
    a(mfma(ACC + 16, VR["Z"], VR["Z"], None))
    a("""
    s_mov_b32 exec_lo, 0
    s_lshl_b32 $A, $WB8, 1
    v_subrev_u32 @Xb, $A, @Xb
    s_mul_i32 $A, $WB8, 34
    v_add_u32 @B3a, $A, @B3a
    s_mov_b32 exec_lo, -1
    s_cmp_gt_u32 $D8, $WEND
    s_cselect_b32 $REP, 1, 0
    s_cselect_b32 $P2, $P1, $P2
    s_cselect_b32 $A, 0, 256
    s_waitcnt lgkmcnt(0)
    v_lshl_add_u32 @X, @Nn, 1, @Xb
    v_add_u32 @Idx, $A, @Idx
    ds_read_b96 @TT:3, @X
    ds_read2_b32 @TT+4:2, @Idx offset0:0 offset1:32
    """)
    for t in range(4):
        for jj in range(2):
            a("ds_read_b64_tr_b16 @B3+%d:2, @B3a offset:%d" % (4 * t + 2 * jj, jj * 4 * RS + t * 64))
    a(mfma(ACC + 32, VR["Z"], VR["Z"], None))
    a("""
    s_min_u32 $B, $D8, $WEND
    s_sub_u32 $B, $B, $P1
    s_bfm_b64 $MASK:2, $B, 0
    s_mov_b32 $D8, $A
    s_cmp_lt_u32 $CONTC, $P1
    s_cselect_b32 $CONTC, 1, 0
    s_sub_u32 $A, $WBO8, $WB8
    v_add_u32 @Sb, $A, @Sb
    v_add_u32 @S, @Nn, @Sb
    v_add_u32 @A2a, $WBO8, @A2a
    v_add_u32 @Cq, $GW, @Cq
    s_mov_b32 $CN, -1
    s_mov_b32 $FLUSH, 0
    s_mov_b32 $REB, 0
    s_mov_b32 $WBO8, 0
    """)
    a(mfma(ACC + 48, VR["Z"], VR["Z"], None))
    lstamp(a, opt, "logic")
    a("""
    s_lshr_b32 $RE, s3, 2
    s_lshl_b32 $A, $RE, 5
    s_add_u32 $A, $A, $E
    s_lshl_b32 $A, $A, 2
    s_and_b32 $B, s3, 3
    s_add_u32 $A, $A, $B
    s_lshl_b32 $A, $A, 6
    v_add_u32 @Out, $A, @Out
    s_mul_i32 $A, $RE, #(32*RS)
    v_add_u32 @Mr, $A, @Mr
    s_lshl_b32 $A, $RE, 13
    v_add_u32 @Hop, $A, @Hop
    s_lshl_b32 $RE, $B, 10
    s_add_u32 $A, $A, $RE
    v_add_u32 @HRa, $A, @HRa
    """)
    a(mfma(D1, VR["Z"], VR["Z"], None))
    a("""
    s_lshl_b32 $A, $B, 13
    v_add_u32 @Wa, $A, @Wa
    s_lshl_b32 $A, $B, 8
    s_add_u32 $A, $A, #(L_POSD)
    v_add_u32 @Us, $A, @Us
    s_lshl_b32 $A, s3, 10
    v_add_u32 @fU, $A, @fU
    v_add_u32 @stW, $GW, @stW
    v_add_u32 @stR, $GW, @stR
    s_cmp_ge_u32 $P1, $END
    s_cbranch_scc1 K2_EMPTY
    s_cmp_lt_u32 $P2, $END
    s_cselect_b32 $SEL, $SEL, #(SELW)
    """)
    stamp(a, opt, 7, ST)
    lstamp(a, opt, "preg")
    a("s_waitcnt vmcnt(%d) lgkmcnt(0)" % (2 * ND1))
    stamp(a, opt, 8, ST)
    lstamp(a, opt, "gath")
    a(*(GEOM_A + GEOM_B + GEOM_C + ["s_waitcnt vmcnt(%d)" % (2 * ND1 - 2)]))
    cq_read(a, 0)
    a(*GEOM_D)
    a3_reads(a)
    for slot in range(ND1, 4):
        dma(a, slot)
    a("v_add_u32 @Rec, $D8, @Rec")
    a(*PERMS)
    a("s_waitcnt lgkmcnt(0)")
    a(mfma(D0, A3, B3, CQ))
    dma(a, 0)
    stamp(a, opt, 9, ST)
    lstamp(a, opt, "loop")
    if opt.get("stamps"):
        a("s_mov_b32 s100, 16")
    a("""
    s_setprio 0
    s_sub_u32 $A, $END, $P1
    s_mov_b32 $P1, $P2
    s_cmp_lt_u32 $P1, $END
    s_cselect_b32 $A, 32, $A
    s_cmp_le_u32 $A, 16
    s_cbranch_scc1 K2_HALF
    """)
    a(".p2align 3", "K2_LOOP:")
    step(a, False, opt)
    a("s_setprio 0")
    if opt.get("stamps"):
        a("s_memtime s[98:99]", "s_waitcnt lgkmcnt(0)", "s_mov_b32 m0, s100", "v_writelane_b32 @ST, s98, m0", "s_add_u32 s100, s100, 1")
    a("""
    s_sub_i32 $A, $END, $P1
    s_mov_b32 $P1, $P2
    s_cmp_lt_u32 $P1, $END
    s_cselect_b32 $A, 32, $A
    s_cmp_gt_i32 $A, 16
    s_cbranch_scc1 K2_LOOP
    s_cmp_le_i32 $A, 0
    s_cbranch_scc1 K2_TAILF
    K2_HALF:
    """)
    step(a, True, opt)
    a(*cvts(D1, 4))
    a("s_setprio 0", "s_branch K2_FIN")
    a("K2_TAILF:")
    cv = cvts(D1, 8)
    a(*(cv[4:] + cv[:4]))
    a(mfma(ACC + 48, A2 + 4, PP + 4, ACC + 48), "s_nop 0")
    a("K2_FIN:")
    a(mfma(ACC + 48, A2, PP, ACC + 48))
    stamp(a, opt, 10, ST)
    lstamp(a, opt, "fin")
    a("""
    s_mov_b32 $WBO8, $WB8
    s_mov_b32 $CONTO, $CONTC
    s_mov_b32 $RE, $END
    """)
    flush_m(a, "F")
    a("K2_JOIN:")
    stamp(a, opt, 11, ST)
    lstamp(a, opt, "join")
    a(U_PRE)
    a("""
    v_xor_b32 @T0, 32, @Hop
    v_xor_b32 @T2, 16, @HRa
    s_waitcnt lgkmcnt(4)
    """)
    for ks in range(8):
        a("ds_read_b128 @HB+%d:4, %s offset:%d" % (4 * ks, "@T0" if ks & 1 else "@Hop", (ks >> 1) * 1024))
    a("""
    ds_read_b128 @HR:4, @HRa
    ds_read_b128 @HR+4:4, @T2
    s_mul_i32 $A, $CN, #(RS)
    s_add_u32 $A, $A, #(L_M)
    v_add_u32 @T3, $A, @fM
    v_xor_b32 @T0, 32, @Wa
    s_waitcnt vmcnt(0) lgkmcnt(10)
    s_barrier
    """)
    stamp(a, opt, 12, ST)
    lstamp(a, opt, "barD")
    uf, ur = u_part()
    a("ds_read2_b32 @TT:2, @T3 offset0:0 offset1:32", "s_waitcnt lgkmcnt(6)")
    for ks in range(8):
        a("ds_read_b128 @WH1+%d:4, %s offset:%d" % (4 * ks, "@T0" if ks & 1 else "@Wa", (ks >> 1) * 2048))
    a(*uf[:12])
    a("""
    s_cmp_lt_i32 $CN, 0
    s_cbranch_scc1 K2_NOFIX
    s_waitcnt lgkmcnt(8)
    v_lshlrev_b32 @TT+2, 16, @TT
    v_and_b32 @TT+3, 0xffff0000, @TT
    v_lshlrev_b32 @TT+4, 16, @TT+1
    v_and_b32 @TT+5, 0xffff0000, @TT+1
    v_add_f32 @TT+2, @TT+2, @CONT
    v_add_f32 @TT+3, @TT+3, @CONT+1
    v_add_f32 @TT+4, @TT+4, @CONT+2
    v_add_f32 @TT+5, @TT+5, @CONT+3
    v_cvt_pk_bf16_f32 @TT, @TT+2, @TT+3
    v_cvt_pk_bf16_f32 @TT+1, @TT+4, @TT+5
    s_mov_b32 exec_hi, 0
    ds_write2_b32 @T3, @TT, @TT+1 offset0:0 offset1:32
    s_mov_b32 exec_hi, -1
    K2_NOFIX:
    s_waitcnt lgkmcnt(1)
    """)
    for ks in range(8):
        a("ds_read_b128 @WH2+%d:4, %s offset:%d" % (4 * ks, "@T0" if ks & 1 else "@Wa", 32768 + (ks >> 1) * 2048))
    rest = uf[12:] + ur
    per = opt.get("uper", 7)
    for ks in range(8):
        if ks == 7:
            a("s_waitcnt lgkmcnt(8)")
        a(mfma(VR["H1"], VR["WH1"] + 4 * ks, VR["HB"] + 4 * ks, None if ks == 0 else VR["H1"]))
        if ks < 7:
            a(*rest[per * ks:per * ks + per])
    a(*rest[per * 7:])
    a("""
    v_mov_b32 @T0, 0
    s_cbranch_vccnz K2_NAN
    K2_NANR:
    """)
    lstamp(a, opt, "preE")
    a("""
    s_waitcnt lgkmcnt(0)
    s_barrier
    """)
    lstamp(a, opt, "barE")
    for ks in range(8):
        a("ds_read_b128 @MB+%d:4, @Mr offset:%d" % (4 * ks, L_M + ks * 32))
    a("ds_read_b64 @GP:2, @T0 offset:#(L_FLAG)")
    for i in range(8):
        a("v_pk_mul_f32 @H1+%d:2, @H1+%d:2, $L2E:2" % (2 * i, 2 * i))
    assert L_U == L_POSD + 1024
    a("""
    s_cmp_lt_u32 s3, 4
    s_cbranch_scc1 K2_NOPOS
    """)
    for i in range(4):
        a("ds_read2st64_b32 @TT+%d:2, @Us offset0:%d offset1:%d" % (2 * i, 8 * i + 4, 8 * i + 8))
    a("""
    ds_read_b32 @PP, @Us
    v_bfe_u32 @T1, @Tid, 2, 6
    s_mul_i32 $B, s2, #(NB)
    v_add_u32 @T1, $B, @T1
    s_lshr_b32 $A, $OUT+2, 8
    v_cmp_gt_u32 vcc, $A, @T1
    v_mul_u32_u24 @T1, 6, @T1
    v_and_b32 @T2, 3, @Tid
    v_lshl_add_u32 @T1, @T2, 1, @T1
    v_add_u32 @T1, #(N*256), @T1
    s_mov_b32 $A, 0x77777777
    s_waitcnt lgkmcnt(0)
    v_add_f32 @TT, @TT, @TT+1
    v_add_f32 @TT+2, @TT+2, @TT+3
    v_add_f32 @TT+4, @TT+4, @TT+5
    v_add_f32 @TT+6, @TT+6, @TT+7
    v_add_f32 @TT, @TT, @TT+2
    v_add_f32 @TT+4, @TT+4, @TT+6
    v_add_f32 @TT, @TT, @TT+4
    v_add_f32 @TT, @TT, @PP
    v_cvt_pk_bf16_f32 @TT, @TT, @TT
    s_and_b32 exec_lo, vcc_lo, $A
    s_and_b32 exec_hi, vcc_hi, $A
    s_cbranch_execz K2_NOPOS2
    global_store_short @T1, @TT, s[20:21]
    K2_NOPOS2:
    s_mov_b64 exec, -1
    s_setprio 1
    K2_NOPOS:
    """)
    hu = []
    for i in range(8):
        hu += ["v_lshlrev_b32 @HU+%d, 16, @HR+%d" % (2 * i, i), "v_and_b32 @HU+%d, 0xffff0000, @HR+%d" % (2 * i + 1, i)]
    for ks in range(8):
        a("s_waitcnt lgkmcnt(%d)" % (8 - ks))
        a(mfma(VR["H1"], VR["WH2"] + 4 * ks, VR["MB"] + 4 * ks, VR["H1"]))
        a(*hu[2 * ks:2 * ks + 2])
    lstamp(a, opt, "g2")
    a("""
    s_setprio 0
    s_waitcnt lgkmcnt(0)
    v_readfirstlane_b32 $A, @GP
    v_readfirstlane_b32 $E, @GP+1
    v_add_u32 @T0, 4096, @Out
    s_andn2_b32 $E, $E, $SAFE
    s_or_b32 $A, $A, $E
    s_cbranch_scc1 K2_AGAIN
    s_mov_b32 $A, #(f32(-LN2))
    s_mov_b32 $B, #(f32(-LN2))
    .p2align 3
    """)
    assert SR["A"] % 2 == 0 and SR["B"] == SR["A"] + 1
    for i in range(16):
        a("v_exp_f32 @EE+%d, @H1+%d" % (i, i))
    for i in range(16):
        a("v_add_f32 @EE+%d, 1.0, @EE+%d" % (i, i))
    for i in range(16):
        a("v_rcp_f32 @EE+%d, @EE+%d" % (i, i))
    for i in range(8):
        a("v_pk_mul_f32 @EE+%d:2, @EE+%d:2, @H1+%d:2" % (2 * i, 2 * i, 2 * i))
    for i in range(8):
        a("v_pk_fma_f32 @EE+%d:2, @EE+%d:2, $A:2, @HU+%d:2" % (2 * i, 2 * i, 2 * i))
    a(*cvts(EE, 8))
    lstamp(a, opt, "silu")
    ost = opt.get("out_store", "").replace("+", " ")
    a("""
    ds_write_b128 @stW, @PP:4
    ds_write_b128 @stW, @PP+4:4 offset:16
    ds_read_b128 @EE:4, @stR
    ds_read_b128 @EE+4:4, @stR offset:1280
    s_waitcnt lgkmcnt(1)
    buffer_store_dwordx4 @EE:4, @Out, $OUT:4, 0 offen %s
    s_waitcnt lgkmcnt(0)
    buffer_store_dwordx4 @EE+4:4, @T0, $OUT:4, 0 offen %s
    """ % (ost, ost))
    stamp(a, opt, 13, ST)
    lstamp(a, opt, "store")
    if opt.get("stamps"):
        a("v_writelane_b32 @ST, $SAFE, 40", "v_writelane_b32 @ST, $O, 41", "v_writelane_b32 @ST, $TOTAL, 42",
          "v_writelane_b32 @ST, s100, 43", "v_writelane_b32 @ST, $ATOM, 46")
    stamp_store(a, opt, ST, VR["T0"], VR["Tid"], "s[22:23]", s(SR["BK"]), 0)
    if opt.get("ls"):
        a("s_waitcnt vmcnt(0)")
        lstamp(a, opt, "end")
        a("s_waitcnt lgkmcnt(0)")
        for k in range(7):
            a("v_writelane_b32 @ST, s%d, %d" % (6 + 2 * k, k))
        a("""
        s_lshl_b32 s98, $BK, 11
        s_add_u32 s98, s98, #(WS_DBG)
        v_lshl_add_u32 @T0, @Tid, 2, s98
        global_store_dword @T0, @ST, s[22:23]
        """)
    a("K2_END:", "s_endpgm")
    a("K2_FLUSH:")
    flush_m(a, "M")
    a("s_waitcnt lgkmcnt(0)")
    a(U_PRE, "s_waitcnt lgkmcnt(0)")
    a(*(uf + ur))
    a("""
    v_mov_b32 @T0, 0
    v_mov_b32 @T1, 1
    s_cbranch_vccz K2_FL2
    ds_write_b32 @T0, @T1 offset:#(L_FLAG+4)
    K2_FL2:
    """)
    for i in range(64):
        a("v_mov_b32 %s, 0" % v(ACC + i))
    a("""
    s_mov_b32 $FLUSH, 0
    s_setpc_b64 $RET:2
    K2_NAN:
    v_mov_b32 @T1, 1
    ds_write_b32 @T0, @T1 offset:#(L_FLAG+4)
    s_branch K2_NANR
    """)
    for stub in STUBS:
        a(stub)
    del STUBS[:]
    a("K2_EMPTY:")
    for slot in range(ND1, 4):
        dma(a, slot)
    a("""
    s_waitcnt lgkmcnt(0)
    s_branch K2_JOIN
    K2_L20:
    v_cmp_lt_i32 $M+18:2, 16, @T0
    v_cmp_lt_i32 $M+20:2, 16, @T2
    v_mov_b32 @RADDR+8, 0
    v_mov_b32 @RADDR+9, 0
    v_mov_b32 @RADDR+10, 0
    v_mov_b32 @RADDR+11, 0
    v_mov_b32 @RANK+8, 0x8000
    v_mov_b32 @RANK+9, 0x8000
    v_mov_b32 @RANK+10, 0x8000
    v_mov_b32 @RANK+11, 0x8000
    s_mov_b64 exec, $M+18:2
    global_load_dwordx4 @REC0+16:4, @Ra, s[22:23] offset:128
    s_mov_b64 exec, $M+20:2
    global_load_dwordx4 @REC0+20:4, @Ra+1, s[22:23] offset:128
    s_mov_b64 exec, -1
    s_branch K2_L20R
    K2_L2A:
    s_cbranch_vccz K2_L2A1
    ds_write_b32 @Z, @T3 offset:#(L_FLAG)
    K2_L2A1:
    s_cmp_eq_u64 $M+16:2, 0
    s_cbranch_scc1 K2_L2AR
    s_mov_b64 exec, $M+20:2
    s_waitcnt vmcnt(0)
    v_lshrrev_b32 @RADDR+10, 17, @REC0+20
    ds_add_rtn_u32 @RANK+10, @RADDR+10, @T3
    s_mov_b64 exec, $M+18:2
    v_lshrrev_b32 @RADDR+8, 17, @REC0+16
    ds_add_rtn_u32 @RANK+8, @RADDR+8, @T3
    s_mov_b64 exec, -1
    v_cmp_lt_i32 $M+18:2, 17, @T0
    v_cmp_lt_i32 $M+20:2, 17, @T2
    s_nop 1
    s_mov_b64 exec, $M+18:2
    v_lshrrev_b32 @RADDR+9, 17, @REC0+18
    ds_add_rtn_u32 @RANK+9, @RADDR+9, @T3
    s_mov_b64 exec, $M+20:2
    v_lshrrev_b32 @RADDR+11, 17, @REC0+22
    ds_add_rtn_u32 @RANK+11, @RADDR+11, @T3
    s_mov_b64 exec, -1
    s_waitcnt lgkmcnt(0)
    s_branch K2_L2AR
    K2_L2B:
    s_waitcnt lgkmcnt(0)
    s_cmp_eq_u64 vcc, 0
    s_cbranch_scc1 K2_L2B1
    s_mov_b32 $ATOM, 1
    s_cmp_eq_u32 $FIRST, 0
    s_cbranch_scc1 K2_L2B1
    v_lshlrev_b32 @T0, 4, @Tid
    ds_write_b128 @T0, @Z:4 offset:#(L_M)
    v_cmp_gt_u32 vcc, #((56*RS-8192)//16), @Tid
    s_nop 1
    s_and_b64 exec, vcc, vcc
    ds_write_b128 @T0, @Z:4 offset:#(L_M+8192)
    s_mov_b64 exec, -1
    K2_L2B1:
    s_cmp_eq_u64 $M+16:2, 0
    s_cbranch_scc1 K2_L2BR
    """)
    for q in range(8, 12):
        a("ds_read_b32 @RADDR+%d, @RADDR+%d offset:#(L_EXC)" % (q, q))
    a("s_waitcnt lgkmcnt(0)")
    for q in range(8, 12):
        a("v_add_lshl_u32 @RADDR+%d, @RADDR+%d, @RANK+%d, 3" % (q, q, q))
        a("ds_write_b64 @RADDR+%d, @REC0+%d:2 offset:#(L_REC)" % (q, 2 * q))
    a("""
    s_branch K2_L2BR
    K2_AGAIN:
    s_add_u32 $O, $O, $QUOTA
    s_mov_b32 $FIRST, 0
    s_cmp_eq_u32 $E, 0
    s_cbranch_scc1 K2_AGAIN2
    s_mov_b32 $SAFE, 1
    s_mov_b32 $O, 0
    s_mov_b32 $FIRST, 1
    K2_AGAIN2:
    s_nop 15
    s_waitcnt vmcnt(0) lgkmcnt(0)
    s_barrier
    s_branch K2_ROUND
    K2_OVERFLOW:
    s_mov_b32 $QUOTA, 7
    s_branch K2_AGAIN2
    K2_REBASE:
    s_cmp_eq_u32 $REP, 0
    s_cselect_b32 $A, $P1, $WEND
    v_cmp_ge_u32 vcc, $A, @Incl
    s_nop 1
    s_bcnt1_i32_b64 $B, vcc
    s_add_u32 $D8, $B, 7
    v_readlane_b32 $WEND, @Incl, $D8
    s_lshl_b32 $D8, $B, 3
    s_cmp_eq_u32 $D8, $WB8
    s_cbranch_scc1 K2_RB2
    s_mov_b32 $WBO8, $WB8
    s_mov_b32 $WB8, $D8
    s_mov_b32 $FLUSH, 1
    s_mov_b32 $REB, 1
    s_mov_b32 $RE, $A
    s_mov_b32 $CONTO, $CONTC
    s_sub_u32 $D8, $B, 1
    v_readlane_b32 $CONTC, @Incl, $D8
    s_nop 1
    s_cmp_lt_u32 $CONTC, $A
    s_cselect_b32 $CONTC, 2, 0
    s_sub_u32 $B, $WBO8, $WB8
    v_add_u32 @Sb, $B, @Sb
    s_mov_b32 exec_lo, 0
    s_lshl_b32 $D8, $B, 1
    v_add_u32 @Xb, $D8, @Xb
    s_mul_i32 $D8, $B, -34
    v_add_u32 @B3a, $D8, @B3a
    s_mov_b32 exec_lo, -1
    K2_RB2:
    s_min_u32 $B, $E, $WEND
    s_sub_u32 $B, $B, $A
    s_sub_u32 $A, $A, $P1
    s_bfm_b64 $MASK:2, $B, $A
    s_cmp_gt_u32 $E, $WEND
    s_cselect_b32 $REP, 1, 0
    s_cselect_b32 $P2, $P1, $P2
    s_setpc_b64 $RET:2
    K2_B3LOAD:
    """)
    for t in range(4):
        for jj in range(2):
            a("ds_read_b64_tr_b16 @B3+%d:2, @B3a offset:%d" % (4 * t + 2 * jj, jj * 4 * RS + t * 64))
    a("s_mov_b32 $REB, 0", "s_setpc_b64 $RET:2")
    for par, D in ((0, D0), (1, D1)):
        a("K2_CLAMP%d:" % par, "s_nop 11")
        for i in range(16):
            a("v_min_f32 %s, #(f32(126.0)), %s" % (v(D + i), v(D + i)))
        a("s_setpc_b64 $RET:2")


def kd(name, vgpr, sgpr):
    return """.p2align 6
.amdhsa_kernel %s
  .amdhsa_next_free_vgpr %d
  .amdhsa_next_free_sgpr %d
  .amdhsa_accum_offset %d
  .amdhsa_group_segment_fixed_size 0
  .amdhsa_kernarg_size 88
  .amdhsa_user_sgpr_count 2
  .amdhsa_user_sgpr_kernarg_segment_ptr 1
  .amdhsa_system_sgpr_workgroup_id_x 1
  .amdhsa_float_denorm_mode_32 3
.end_amdhsa_kernel
""" % (name, vgpr, sgpr, (vgpr + 3) // 4 * 4)


def generate(opt):
    ref = open("cdna_kernels/%s.s.ref" % NAME).read().split("\n")
    head = []
    for ln in ref:
        if ln.startswith("; Override launch") or "@launch" in ln or ln.startswith("; grid=ceil"):
            continue
        if not ln.startswith(";"):
            break
        head.append(ln)
    out = "\n".join(head) + "\n"
    l1 = "; @launch kernel=prep_kernel grid=(%d,1,1) block=(512,1,1) lds=%d\n" % (K1_GRID, K1_LDS)
    l2 = "; @launch kernel=main_kernel grid=(256,1,1) block=(512,1,1) lds=%d\n" % K2_LDS
    l0 = "; @launch kernel=null_kernel grid=(256,1,1) block=(64,1,1) lds=0\n"
    for c in str(opt.get("seq", "12")):
        out += {"0": l0, "1": l1, "2": l2}[c]
    out += '.amdgcn_target "amdgcn-amd-amdhsa--gfx950"\n.text\n'
    kernels = [("prep_kernel", gen_k1), ("main_kernel", gen_k2)]
    if "0" in str(opt.get("seq", "12")):
        kernels.append(("null_kernel", lambda a, o: a("null_kernel:", "s_endpgm")))
    for name, g in kernels:
        a = Asm()
        g(a, opt)
        out += ".globl %s\n.p2align 8\n.type %s,@function\n" % (name, name) + a.text()
    out += '.section .rodata,"a"\n'
    out += kd("prep_kernel", 104 if opt.get("stamps") else 96, 102 if opt.get("stamps") else 40)
    out += kd("main_kernel", 256, 102)
    if "0" in str(opt.get("seq", "12")):
        out += kd("null_kernel", 8, 8)
    return out


if __name__ == "__main__":
    opt = {}
    path = "cdna_kernels/%s.s" % NAME
    for arg in sys.argv[1:]:
        if "=" in arg:
            k, val = arg.split("=", 1)
            if k != "seq":
                try:
                    val = int(val)
                except ValueError:
                    pass
            opt[k] = val
        else:
            path = arg
    open(path, "w").write(generate(opt))
    print("wrote", path, "K2_LDS", K2_LDS, "L_G", L_G, "L_H", L_H, "L_REC", L_REC, "L_S", L_S)
```

```python
import sys, struct, re

NAME = "gather_scatter__cheap_equivariant_egnn__graph"
N, E, NB = 12500, 400000, 49
NCH, CH = 250, 1600
NQ = 12544
WS_Q, WS_REC, WS_T, WS_POS, WS_WF, WS_DBG = 0, 0x400000, 0x800000, 0x900000, 0xA00000, 0xC00000
TSTRIDE = 1152
LOG2E = 1.4426950408889634
LN2 = 0.6931471805599453
KEXP = 30


def f32(x):
    return struct.unpack("<I", struct.pack("<f", x))[0]


def v(a, n=1):
    return "v%d" % a if n == 1 else "v[%d:%d]" % (a, a + n - 1)


def s(a, n=1):
    return "s%d" % a if n == 1 else "s[%d:%d]" % (a, a + n - 1)


RS = 272
L_CNT, L_FLAG, L_EXC = 0, 256, 512
L_IMG = 768
L_LUTC = L_IMG + 768
L_WZ = L_LUTC + 128
L_WX = L_WZ + 8 * RS
L_P = L_IMG + 4096
L_POSD = L_P + 64 * RS
L_U = L_POSD + 1024
L_M = L_U + 8192
CAP = 1792
L_REC = L_M + 56 * RS
L_S = L_REC + (CAP + 64) * 8
SW = 32 * 72
L_H = (L_S + 8 * SW + 1023) // 1024 * 1024
L_G = L_H + 16384
K2_LDS = L_G + 65536
K1_LDS = 49152 + 8 * 2560
WS_IMG = WS_WF + 0x10000

VR = dict(ACC=0, D0=64, D1=80, EE=96, TT=112, PP=120, CQ=128, B3=144, A3=160, A2=164,
          W1=172, L=188, Ch=189, Ta=190, Tb=191, Pf=192, Hb1=193, Ra=194, Z=196, Tg=172, Tad=180, L4=182, F2a=183,
          fM=204, Hh=205, Hop=206, HRa=207, Hb=208, Pw=209, WXa=210,
          CONT=220, Sb=224, A2a=225, Cq=226, B3a=227, WA=228, Xb=230, Idx=231, Rec=232, fU=233, Mr=234, Wa=235,
          stW=236, stR=237, Out=238, Us=239, DA=240, GP=242, ST=245, X=246, S=247, Nn=248, Incl=249, Tid=250,
          T0=251, T1=252, T2=253, T3=254, T4=255,
          REC0=112, RADDR=136, RANK=148, HB=64,
          MB=0, HU=32, WH2=128, WH1=172, H1=204, G2=96, HR=160, WX=120)
TABREG = [208, 224, 228, 232, 236, 204]
SR = dict(Q=24, POS=28, T=32, H=36, OUT=40, K=44, L2E=46, SEL=48,
          O=49, QUOTA=50, SAFE=51, FIRST=52, TOTAL=53, END=54, P1=55, P2=56, WB8=57, WBO8=58, WEND=59,
          MASK=60, FLUSH=62, REB=63, GW=64, REP=65, D8=66, E=67, A=68, B=69, RET=70, M=72,
          ATOM=96, FM=72, CONTC=80, CONTO=81, RE=82, RUN1=83, CN=84, ONE=86, BK=97, TAG=98)
SELQ, SELW = 0x0c050403, 0x0c020100
globals().update({k: x for k, x in VR.items() if k in ("ACC", "D0", "D1", "EE", "TT", "PP", "CQ", "B3", "A3", "A2")})

TOK = re.compile(r"([@$])([A-Za-z][A-Za-z0-9]*)(?:\+(\d+))?(?::(\d+))?")
EXP = re.compile(r"#\(([^()]*(?:\([^()]*\)[^()]*)*)\)")


def sub(line):
    def r(m):
        base = (VR if m.group(1) == "@" else SR)[m.group(2)] + int(m.group(3) or 0)
        return (v if m.group(1) == "@" else s)(base, int(m.group(4) or 1))

    def e(m):
        x = eval(m.group(1), globals())
        return str(x) if x < 65536 else hex(x)
    return TOK.sub(r, EXP.sub(e, line))


class Asm:
    def __init__(self):
        self.l = []

    def __call__(self, *lines):
        for x in lines:
            for y in x.strip("\n").split("\n"):
                y = y.strip()
                if not y:
                    continue
                y = sub(y)
                self.l.append(y if y.endswith(":") else "    " + y)

    def text(self):
        return "\n".join(self.l) + "\n"


MF = "v_mfma_f32_32x32x16_bf16"


def mfma(d, a, b, c):
    return "%s %s, %s, %s, %s" % (MF, v(d, 16), v(a, 4), v(b, 4), "0" if c is None else v(c, 16))


def stamp(a, opt, idx, reg, real=False):
    if not opt.get("stamps"):
        return
    a("s_waitcnt lgkmcnt(0)", "%s s[100:101]" % ("s_memrealtime" if real else "s_memtime"), "s_waitcnt lgkmcnt(0)",
      "v_writelane_b32 %s, s100, %d" % (v(reg), idx))


def lstamp(a, opt, name):
    names = opt.get("ls", "").split("+") if opt.get("ls") else []
    if name in names:
        k = 6 + 2 * names.index(name)
        a("s_memtime s[%d:%d]" % (k, k + 1))


def refstamp(a, opt, name, wgreg, base, vt, wait=True):
    if opt.get("ref") != name:
        return
    a("""
    s_memrealtime s[100:101]
    s_cmp_lg_u32 %s, %d
    s_cbranch_scc1 REF_SKIP
    s_waitcnt lgkmcnt(0)
    v_mov_b32 %s, s100
    v_mov_b32 %s, #(WS_DBG)
    global_store_dword %s, %s, %s
    s_waitcnt vmcnt(0)
    REF_SKIP:
    """ % (wgreg, opt.get("refwg", 0), v(vt), v(vt + 1), v(vt + 1), v(vt), base))


def gen_diag(a, opt):
    a("""
    diag_kernel:
    s_memrealtime s[8:9]
    s_cmp_ge_u32 s2, 1
    s_cbranch_scc1 DG_END
    s_load_dwordx2 s[4:5], s[0:1], 80
    v_mov_b32 v1, #(WS_DBG)
    s_waitcnt lgkmcnt(0)
    global_load_dword v2, v1, s[4:5]
    s_waitcnt vmcnt(0)
    v_readfirstlane_b32 s6, v2
    %s
    s_mov_b32 s7, 0
    DG_LOOP:
    s_memrealtime s[10:11]
    s_add_u32 s7, s7, 1
    s_waitcnt lgkmcnt(0)
    s_cmp_gt_u32 s7, 20000
    s_cbranch_scc1 DG_END
    s_sub_u32 s10, s10, s6
    s_cmp_lt_u32 s10, 6000
    s_cbranch_scc1 DG_LOOP
    DG_END:
    s_endpgm
    """ % ("s_mov_b32 s6, s8" if opt.get("ref") == "diag" else ""))


def stamp_store(a, opt, reg, tmp, tid, base, wg, extra):
    if not opt.get("stamps"):
        return
    a("s_waitcnt vmcnt(0)",
      "s_getreg_b32 s100, hwreg(HW_REG_HW_ID)", "v_writelane_b32 %s, s100, 44" % v(reg),
      "s_getreg_b32 s100, hwreg(HW_REG_XCC_ID)", "v_writelane_b32 %s, s100, 45" % v(reg))
    stamp(a, opt, 14, reg)
    stamp(a, opt, 15, reg, True)
    a("""
    s_mov_b64 exec, -1
    s_lshl_b32 s100, %s, 11
    s_add_u32 s100, s100, %d
    v_lshl_add_u32 %s, %s, 2, s100
    global_store_dword %s, %s, %s
    """ % (wg, WS_DBG + extra, v(tmp), v(tid), v(tmp), v(reg), base))


def scan64(a, r, fill=None):
    steps = ["row_shr:%d row_mask:0xf" % sh for sh in (1, 2, 4, 8)] + ["row_bcast:15 row_mask:0xa", "row_bcast:31 row_mask:0xc"]
    for i, st in enumerate(steps):
        a(*(fill[2 * i:2 * i + 2] if fill else ["s_nop 1"]))
        a("v_add_u32_dpp %s, %s, %s %s bank_mask:0xf" % (v(r), v(r), v(r), st))


K1_GRID = 456


def gen_k1(a, opt):
    st = opt.get("k1_store", "").replace("+", " ")
    STV = 100

    def fin(who=None):
        stamp(a, opt, 13, STV)
        if who:
            refstamp(a, opt, who, "s2", "s[20:21]", 90)
        stamp_store(a, opt, STV, 101, 0, "s[20:21]", "s38", 0x100000)
        a("s_endpgm")
    a("""
    prep_kernel:
    s_cmp_ge_u32 s2, #(K1_GRID)
    s_cbranch_scc1 K1_END
    s_load_dwordx16 s[4:19], s[0:1], 0
    s_load_dwordx2 s[20:21], s[0:1], 80
    v_lshrrev_b32 v1, 6, v0
    v_and_b32 v2, 63, v0
    v_readfirstlane_b32 s3, v1
    """)
    refstamp(a, opt, "k1", "s2", "s[20:21]", 90)
    if opt.get("ref") == "k1w":
        a("s_waitcnt lgkmcnt(0)")
    refstamp(a, opt, "k1w", "s2", "s[20:21]", 90)
    if opt.get("stamps"):
        a("s_mov_b32 s38, s2")
        stamp(a, opt, 0, STV, True)
        stamp(a, opt, 1, STV)
    if opt.get("gemm_first"):
        a("""
        s_cmp_lt_u32 s2, 200
        s_cbranch_scc1 K1_GEMM
        s_sub_u32 s2, s2, 200
        """)
    else:
        a("""
        s_cmp_ge_u32 s2, 256
        s_cbranch_scc1 K1_GEMM
        """)
    a("""
    s_cmp_ge_u32 s2, #(NCH)
    s_cbranch_scc1 K1_IMG
    s_cmp_eq_u32 s3, 7
    s_cbranch_scc1 K1_EXTRA
    """)
    a("""
    v_lshlrev_b32 v3, 2, v0
    v_mov_b32 v4, 0
    ds_write_b32 v3, v4
    v_cmp_gt_u32 vcc, 400, v0
    s_mul_i32 s24, s2, #(CH*4)
    v_lshl_add_u32 v4, v0, 4, s24
    v_lshrrev_b32 v5, 1, v4
    s_mov_b64 s[22:23], vcc
    s_waitcnt lgkmcnt(0)
    s_mov_b64 exec, s[22:23]
    """)
    ld = opt.get("k1_ld", "").replace("+", " ")
    late = opt.get("k1_late", 0)
    l2 = ["global_load_dwordx4 v[12:15], v4, s[10:11] " + ld, "global_load_dwordx2 v[16:17], v5, s[8:9] " + ld]
    a("global_load_dwordx4 v[8:11], v4, s[12:13] " + ld)
    if not late:
        a(*l2)
    a("""
    s_mov_b32 s25, -49
    s_mov_b32 s26, 0x01000100
    s_mov_b32 s27, 0x03020302
    v_mov_b32 v6, 1
    s_barrier
    s_waitcnt vmcnt(%d)
    """ % (0 if late else 2))
    if late:
        a(*l2)
    stamp(a, opt, 2, STV)
    for k in range(4):
        a("v_mul_u32_u24 %s, 21400, %s" % (v(28 + k), v(8 + k)))
        a("v_lshrrev_b32 %s, 20, %s" % (v(28 + k), v(28 + k)))
        a("v_mad_i32_i24 %s, %s, s25, %s" % (v(8 + k), v(28 + k), v(8 + k)))
        a("v_lshlrev_b32 %s, 2, %s" % (v(28 + k), v(28 + k)))
        a("ds_add_rtn_u32 %s, %s, v6" % (v(32 + k), v(28 + k)))
    a("""
    s_mov_b64 exec, -1
    v_lshlrev_b32 v3, 4, v2
    s_waitcnt lgkmcnt(0)
    s_barrier
    ds_read_b128 v[36:39], v3
    s_waitcnt lgkmcnt(0)
    """)
    stamp(a, opt, 3, STV)
    a("""
    v_add_u32 v40, v36, v37
    v_add3_u32 v40, v40, v38, v39
    v_mov_b32 v41, v40
    """)
    scan64(a, 41)
    a("""
    v_sub_u32 v40, v41, v40
    v_add_u32 v41, v40, v36
    v_add_u32 v42, v41, v37
    v_add_u32 v43, v42, v38
    ds_write_b128 v3, v[40:43] offset:1024
    s_mov_b64 exec, s[22:23]
    """)
    for k in range(4):
        a("ds_read_b32 %s, %s offset:1024" % (v(28 + k), v(28 + k)))
    a("s_waitcnt vmcnt(0)")
    for k in range(4):
        a("v_lshl_or_b32 %s, %s, 19, %s" % (v(20 + 2 * k), v(8 + k), v(12 + k)))
        a("v_perm_b32 %s, %s, %s, %s" % (v(21 + 2 * k), v(16 + k // 2), v(16 + k // 2), s(26 + (k & 1))))
    for k in range(4):
        a("s_waitcnt lgkmcnt(3)")
        a("v_add_lshl_u32 %s, %s, %s, 3" % (v(28 + k), v(28 + k), v(32 + k)))
        a("ds_write_b64 %s, %s offset:2048" % (v(28 + k), v(20 + 2 * k, 2)))
    a("""
    s_cmp_lg_u32 s3, 6
    s_cbranch_scc1 K1_NOT
    s_mov_b64 exec, -1
    v_lshl_or_b32 v36, v36, 16, v40
    v_lshl_or_b32 v37, v37, 16, v41
    v_lshl_or_b32 v38, v38, 16, v42
    v_lshl_or_b32 v39, v39, 16, v43
    s_and_b32 s24, s2, 7
    s_lshl_b32 s24, s24, 5
    s_lshr_b32 s28, s2, 3
    s_add_u32 s24, s24, s28
    s_lshl_b32 s24, s24, 2
    s_add_u32 s24, s24, #(WS_T)
    v_lshl_add_u32 v3, v2, 12, s24
    global_store_dword v3, v36, s[20:21]
    global_store_dword v3, v37, s[20:21] offset:1024
    global_store_dword v3, v38, s[20:21] offset:2048
    global_store_dword v3, v39, s[20:21] offset:3072
    s_mov_b64 exec, s[22:23]
    K1_NOT:
    v_lshlrev_b32 v3, 4, v0
    s_mul_i32 s24, s2, #(CH*8)
    s_add_u32 s24, s24, #(WS_REC)
    v_add_u32 v4, s24, v3
    v_add_u32 v5, 6400, v4
    s_waitcnt lgkmcnt(0)
    s_barrier
    ds_read_b128 v[12:15], v3 offset:2048
    ds_read_b128 v[16:19], v3 offset:#(2048+6400)
    s_waitcnt lgkmcnt(1)
    global_store_dwordx4 v4, v[12:15], s[20:21] %s
    s_waitcnt lgkmcnt(0)
    global_store_dwordx4 v5, v[16:19], s[20:21] %s
    """ % (st, st))
    fin("sortend")
    a("""
    K1_EXTRA:
    s_mul_i32 s24, s2, 50
    v_add_u32 v3, s24, v2
    v_mul_u32_u24 v4, 6, v3
    v_lshlrev_b32 v3, 4, v3
    v_add_u32 v3, #(WS_POS), v3
    s_waitcnt lgkmcnt(0)
    s_bfm_b64 exec, 50, 0
    global_load_ushort v8, v4, s[6:7]
    global_load_ushort v9, v4, s[6:7] offset:2
    global_load_ushort v10, v4, s[6:7] offset:4
    s_mov_b64 exec, -1
    """)
    if opt.get("codepf"):
        a("""
        s_getpc_b64 s[28:29]
        K1_PC:
        s_add_u32 s28, s28, main_kernel-K1_PC
        s_addc_u32 s29, s29, 0
        s_lshr_b32 s24, s2, 3
        s_and_b32 s24, s24, 1
        s_lshl_b32 s24, s24, 13
        v_lshl_add_u32 v20, v2, 7, s24
        v_min_u32 v20, K2_LAST-main_kernel, v20
        v_mov_b32 v23, s29
        v_add_co_u32 v22, vcc, s28, v20
        s_nop 1
        v_addc_co_u32 v23, vcc, 0, v23, vcc
        global_load_dword v24, v[22:23], off
        """)
    if opt.get("tlbw"):
        a("""
        s_load_dwordx2 s[28:29], s[0:1], 64
        s_lshr_b32 s24, s2, 3
        v_lshl_add_u32 v20, v2, 5, s24
        v_mul_u32_u24 v21, #(11*4096), v20
        v_mul_u32_u24 v22, 12792, v20
        s_mov_b64 exec, 0xff
        global_load_dword v23, v21, s[20:21]
        s_waitcnt lgkmcnt(0)
        global_load_dword v24, v22, s[28:29]
        s_mov_b64 exec, -1
        """)
    a("""
    s_barrier
    s_cmp_ge_u32 s2, 96
    s_cbranch_scc1 K1_XPOS
    s_cmp_ge_u32 s2, 32
    s_cbranch_scc1 K1_XWH
    v_and_b32 v5, 15, v2
    s_lshr_b32 s24, s2, 2
    s_lshl_b32 s24, s24, 4
    v_add_lshl_u32 v5, v5, s24, 1
    v_lshrrev_b32 v6, 4, v2
    v_lshlrev_b32 v6, 1, v6
    s_movk_i32 s26, 0x9c
    v_bfe_u32 v6, s26, v6, 2
    s_and_b32 s25, s2, 3
    s_lshl_b32 s25, s25, 13
    v_lshl_add_u32 v5, v6, 11, v5
    v_add_u32 v5, s25, v5
    """)
    for j in range(8):
        a("global_load_ushort %s, v5, s[14:15] offset:%d" % (v(12 + j), j * 256))
    a("""
    s_lshl_b32 s24, s2, 10
    s_add_u32 s24, s24, #(WS_WF)
    v_lshl_add_u32 v7, v2, 4, s24
    s_branch K1_XWST
    K1_XWH:
    s_sub_u32 s24, s2, 32
    s_bfe_u32 s25, s24, 0x20003
    s_lshl_b32 s25, s25, 5
    s_and_b32 s26, s24, 1
    s_lshl_b32 s26, s26, 4
    s_add_u32 s25, s25, s26
    s_bfe_u32 s26, s24, 0x20001
    s_lshl_b32 s26, s26, 2
    s_add_u32 s25, s25, s26
    v_and_b32 v6, 3, v2
    v_add_lshl_u32 v5, v6, s25, 1
    v_lshrrev_b32 v4, 2, v2
    v_lshlrev_b32 v7, 4, v4
    v_lshl_add_u32 v7, v6, 8, v7
    s_lshl_b32 s24, s24, 10
    s_add_u32 s24, s24, #(WS_Q+NQ*256)
    v_add_u32 v7, s24, v7
    s_cmp_ge_u32 s2, 64
    s_cbranch_scc1 K1_XW2
    v_lshl_add_u32 v5, v4, 11, v5
    """)
    for j in range(8):
        a("global_load_ushort %s, v5, s[18:19] offset:%d" % (v(12 + j), j * 256))
    a("""
    s_branch K1_XWST
    K1_XW2:
    v_and_b32 v6, 7, v4
    v_lshl_add_u32 v5, v6, 10, v5
    v_lshrrev_b32 v6, 3, v4
    v_lshl_add_u32 v5, v6, 14, v5
    v_add_u32 v5, 32768, v5
    v_add_u32 v6, 8192, v5
    """)
    for j in range(8):
        a("global_load_ushort %s, %s, s[18:19] offset:%d" % (v(12 + j), v(5 + (j & 1)), (j >> 1) * 256))
    a("""
    K1_XWST:
    s_barrier
    s_waitcnt vmcnt(0)
    v_lshl_or_b32 v12, v13, 16, v12
    v_lshl_or_b32 v13, v15, 16, v14
    v_lshl_or_b32 v14, v17, 16, v16
    v_lshl_or_b32 v15, v19, 16, v18
    global_store_dwordx4 v7, v[12:15], s[20:21] %s
    s_branch K1_XP2
    K1_XPOS:
    s_barrier
    s_waitcnt vmcnt(0)
    K1_XP2:
    s_bfm_b64 exec, 50, 0
    v_lshlrev_b32 v8, 16, v8
    v_lshlrev_b32 v9, 16, v9
    v_lshlrev_b32 v10, 16, v10
    v_mov_b32 v11, 0
    global_store_dwordx4 v3, v[8:11], s[20:21] %s
    s_barrier
    """ % (st, st))
    fin()
    a("""
    K1_IMG:
    s_cmp_lg_u32 s2, #(NCH)
    s_cbranch_scc1 K1_TAB
    v_and_b32 v3, 255, v0
    v_lshlrev_b32 v4, 1, v3
    v_add_u32 v4, 65536, v4
    v_and_b32 v5, 127, v0
    v_lshlrev_b32 v6, 1, v5
    s_waitcnt lgkmcnt(0)
    global_load_ushort v8, v4, s[14:15]
    global_load_ushort v9, v6, s[16:17]
    v_lshlrev_b32 v4, 3, v0
    v_mov_b32 v10, 0
    v_mov_b32 v11, 0
    ds_write_b64 v4, v[10:11]
    v_bfe_u32 v7, v0, 7, 1
    v_mul_u32_u24 v7, #(2*RS), v7
    v_add_u32 v7, v7, v6
    v_and_b32 v12, 31, v0
    v_lshlrev_b32 v12, 4, v12
    v_bfe_u32 v13, v0, 5, 2
    v_lshl_add_u32 v12, v13, 2, v12
    v_and_b32 v13, 7, v0
    v_mul_u32_u24 v13, 18, v13
    v_mov_b32 v14, 0x3f80
    s_waitcnt lgkmcnt(0)
    s_barrier
    ds_write_b16 v13, v14 offset:#(L_LUTC-L_IMG)
    s_waitcnt vmcnt(0)
    v_lshlrev_b32 v8, 16, v8
    v_mul_f32 v8, #(f32(-LOG2E)), v8
    v_cvt_pk_bf16_f32 v10, v8, v8
    v_and_b32 v11, 0xffff0000, v10
    v_sub_f32 v8, v8, v11
    v_cvt_pk_bf16_f32 v11, v8, v8
    v_lshlrev_b32 v9, 16, v9
    v_mul_f32 v9, #(f32(-LN2*2.0**-KEXP)), v9
    ds_write_b16 v7, v10 offset:#(L_WZ+4*RS-L_IMG)
    ds_write_b16 v7, v11 offset:#(L_WZ+5*RS-L_IMG)
    ds_write_b32 v12, v9 offset:#(L_WX-L_IMG)
    s_waitcnt lgkmcnt(0)
    s_barrier
    ds_read_b64 v[10:11], v4
    v_add_u32 v4, #(WS_IMG), v4
    s_waitcnt lgkmcnt(0)
    global_store_dwordx2 v4, v[10:11], s[20:21]
    s_endpgm
    K1_TAB:
    s_cmp_lg_u32 s2, #(NCH+1)
    s_cbranch_scc1 K1_END
    s_cmp_lg_u32 s3, 0
    s_cbranch_scc1 K1_END
    v_and_b32 v3, 31, v2
    v_lshrrev_b32 v4, 5, v2
    v_bfe_u32 v5, v2, 2, 2
    v_and_b32 v6, 3, v2
    v_bfe_u32 v7, v2, 4, 1
    v_lshrrev_b32 v8, 4, v2
    v_and_b32 v9, 15, v2
    v_lshrrev_b32 v10, 2, v2
    v_lshlrev_b32 v11, 3, v6
    v_lshl_add_u32 v11, v7, 5, v11
    v_xor_b32 v12, v5, v4
    v_lshlrev_b32 v12, 4, v12
    v_lshlrev_b32 v16, 1, v8
    s_movk_i32 s24, 0x9c
    v_bfe_u32 v16, s24, v16, 2
    v_xor_b32 v16, v16, v5
    v_lshlrev_b32 v16, 4, v16
    v_lshl_add_u32 v16, v9, 6, v16
    v_add_u32 v16, #(L_H), v16
    v_mul_u32_u24 v17, #(RS), v9
    v_lshl_add_u32 v17, v8, 3, v17
    v_lshlrev_b32 v18, 4, v3
    v_mov_b32 v19, 0
    v_mul_u32_u24 v20, 72, v3
    v_add_u32 v20, #(L_S), v20
    v_lshl_add_u32 v21, v4, 2, v5
    v_mul_u32_u24 v21, 72, v21
    v_add_u32 v21, v21, v11
    v_add_u32 v21, #(L_S), v21
    v_lshl_add_u32 v22, v4, 8, v11
    v_bfe_u32 v13, v2, 3, 1
    v_lshl_add_u32 v22, v13, 6, v22
    s_mov_b32 exec_lo, 0x0f0f0f0f
    s_mov_b32 exec_hi, 0x0f0f0f0f
    v_mov_b32 v22, 0x40000
    s_mov_b64 exec, -1
    v_mul_u32_u24 v23, #(RS), v5
    v_mul_u32_u24 v13, #(L_P-L_WZ), v4
    v_add3_u32 v23, v23, v11, v13
    v_add_u32 v23, #(L_WZ), v23
    v_xor_b32 v24, v6, v8
    v_lshlrev_b32 v24, 4, v24
    v_lshl_add_u32 v24, v10, 8, v24
    v_lshl_add_u32 v24, v6, 28, v24
    v_add_u32 v24, #(NQ*256), v24
    v_add_u32 v25, 4096, v24
    v_mul_u32_u24 v26, #(L_POSD-L_LUTC), v4
    v_sub_u32 v26, #(L_POSD), v26
    v_lshlrev_b32 v27, 3, v10
    v_add_u32 v27, #(L_REC), v27
    v_lshlrev_b32 v28, 3, v3
    v_add_u32 v28, #(L_REC), v28
    v_lshl_add_u32 v29, v5, 1, v4
    v_lshl_add_u32 v29, v29, 2, v6
    v_lshlrev_b32 v29, 2, v29
    v_mul_u32_u24 v30, #(RS), v3
    v_lshl_add_u32 v30, v4, 4, v30
    v_lshl_add_u32 v31, v3, 6, v12
    v_add_u32 v31, #(L_G), v31
    v_mul_u32_u24 v32, 80, v3
    v_lshl_add_u32 v32, v4, 5, v32
    v_mul_u32_u24 v33, 80, v10
    v_lshl_add_u32 v33, v6, 4, v33
    v_lshlrev_b32 v34, 8, v10
    v_lshl_add_u32 v34, v6, 4, v34
    v_lshlrev_b32 v35, 2, v2
    v_mul_u32_u24 v36, #(RS), v4
    v_lshl_add_u32 v36, v3, 2, v36
    v_mov_b32 v37, v4
    v_lshl_add_u32 v38, v9, 6, v12
    v_lshl_add_u32 v38, v7, 12, v38
    v_add_u32 v38, #(L_H), v38
    v_mul_u32_u24 v39, 48, v4
    v_xor_b32 v39, v39, v38
    v_lshlrev_b32 v13, 4, v2
    v_add_u32 v13, #(WS_IMG+4096), v13
    v_add_u32 v14, 4096, v13
    s_waitcnt lgkmcnt(0)
    global_store_dwordx4 v13, v[16:19], s[20:21]
    global_store_dwordx4 v13, v[20:23], s[20:21] offset:1024
    global_store_dwordx4 v13, v[24:27], s[20:21] offset:2048
    global_store_dwordx4 v13, v[28:31], s[20:21] offset:3072
    global_store_dwordx4 v14, v[32:35], s[20:21]
    global_store_dwordx4 v14, v[36:39], s[20:21] offset:1024
    s_endpgm
    """)
    a("K1_GEMM:")
    if not opt.get("gemm_first"):
        a("s_sub_u32 s2, s2, 256")
    a("""
    s_and_b32 s22, s2, 7
    s_lshr_b32 s39, s2, 3
    s_mul_i32 s2, s22, 49
    s_lshl_b32 s22, s39, 1
    s_add_u32 s2, s2, s22
    v_lshrrev_b32 v3, 4, v2
    v_lshlrev_b32 v4, 2, v3
    v_and_b32 v5, 15, v2
    v_xor_b32 v4, v4, v5
    v_lshlrev_b32 v4, 4, v4
    v_lshl_add_u32 v4, v3, 8, v4
    s_lshl_b32 s22, s3, 12
    s_add_u32 s23, s22, 32768
    v_and_b32 v5, 3, v2
    v_xor_b32 v5, v5, v3
    v_lshlrev_b32 v5, 4, v5
    v_lshrrev_b32 v6, 2, v2
    v_lshl_add_u32 v5, v6, 8, v5
    s_lshr_b32 s24, s3, 1
    s_lshl_b32 s25, s2, 1
    s_add_u32 s25, s25, s24
    s_lshl_b32 s25, s25, 12
    s_and_b32 s26, s3, 1
    s_lshl_b32 s27, s26, 7
    s_add_u32 s25, s25, s27
    s_lshr_b32 s27, s3, 2
    s_lshl_b32 s27, s27, 13
    s_lshl_b32 s26, s26, 12
    s_add_u32 s27, s27, s26
    s_and_b32 s24, s24, 1
    s_lshl_b32 s24, s24, 10
    s_add_u32 s27, s27, s24
    s_add_u32 s27, s27, 32768
    s_waitcnt lgkmcnt(0)
    s_mov_b32 s28, s4
    s_mov_b32 s29, s5
    s_mov_b32 s30, #(N*256)
    s_mov_b32 s31, 0x20000
    s_mov_b32 s32, s14
    s_mov_b32 s33, s15
    s_mov_b32 s34, #(258*256)
    s_mov_b32 s35, 0x20000
    s_mov_b32 m0, s27
    v_add_u32 v5, s25, v5
    buffer_load_dwordx4 v5, s[28:31], 0 offen %s lds
    s_add_u32 m0, s27, #(2048-64)
    s_nop 0
    buffer_load_dwordx4 v5, s[28:31], 0 offen offset:64 %s lds
    s_mov_b32 m0, s22
    s_nop 0
    """ % ((opt.get("k1_hld", "").replace("+", " "),) * 2))
    if opt.get("k1x", 0) & 1:
        for i in range(opt.get("k1xn", 4)):
            a("buffer_load_dwordx4 v4, s[32:35], s22 offen offset:%d lds" % (i * 1024))
    for i in range(4):
        a("buffer_load_dwordx4 v4, s[32:35], s23 offen offset:%d lds" % (i * 1024))
    a("""
    s_and_b32 s24, s3, 3
    s_lshr_b32 s26, s3, 2
    v_bfe_u32 v6, v2, 2, 2
    v_xor_b32 v7, s24, v6
    v_lshlrev_b32 v7, 6, v7
    v_lshl_add_u32 v7, v6, 8, v7
    v_lshrrev_b32 v8, 5, v2
    v_lshl_add_u32 v7, v8, 11, v7
    v_and_b32 v9, 1, v2
    v_lshl_add_u32 v7, v9, 5, v7
    v_bfe_u32 v9, v2, 4, 1
    v_lshl_add_u32 v7, v9, 4, v7
    v_bfe_u32 v10, v2, 1, 1
    v_lshl_add_u32 v7, v10, 3, v7
    v_xor_b32 v6, v6, v8
    v_lshlrev_b32 v6, 4, v6
    v_and_b32 v10, 15, v2
    v_lshl_add_u32 v6, v10, 6, v6
    v_lshl_add_u32 v6, v9, 10, v6
    s_lshl_b32 s27, s26, 13
    s_add_u32 s27, s27, 32768
    v_add_u32 v6, s27, v6
    v_xor_b32 v11, 32, v6
    s_mul_i32 s27, s3, 2560
    s_add_u32 s27, s27, 49152
    v_and_b32 v10, 31, v2
    v_mul_u32_u24 v12, 80, v10
    v_lshl_add_u32 v12, v8, 5, v12
    v_add_u32 v12, s27, v12
    v_lshrrev_b32 v10, 2, v2
    v_mul_u32_u24 v13, 80, v10
    v_and_b32 v9, 3, v2
    v_lshl_add_u32 v13, v9, 4, v13
    v_add_u32 v13, s27, v13
    v_lshlrev_b32 v14, 8, v10
    v_lshl_add_u32 v14, v9, 4, v14
    s_add_u32 s25, s2, s26
    s_lshl_b32 s25, s25, 13
    s_lshl_b32 s24, s24, 6
    s_add_u32 s25, s25, s24
    v_add_u32 v14, s25, v14
    v_add_u32 v15, 4096, v14
    s_mov_b32 s36, #(f32(-LOG2E))
    s_mov_b32 s37, s36
    s_lshl_b32 s39, s39, 1
    s_add_u32 s39, s39, s26
    s_waitcnt vmcnt(0)
    s_barrier
    s_cmp_ge_u32 s39, 49
    s_cbranch_scc1 K1_GEND
    """)
    stamp(a, opt, 2, STV)
    A0, B0, DD = 32, 64, 16

    def rd(ks):
        a("ds_read_b64_tr_b16 %s, v7 offset:%d" % (v(A0 + 4 * ks, 2), ks * 4096))
        a("ds_read_b64_tr_b16 %s, v7 offset:%d" % (v(A0 + 4 * ks + 2, 2), ks * 4096 + 1024))
        a("ds_read_b128 %s, %s offset:%d" % (v(B0 + 4 * ks, 4), "v11" if ks & 1 else "v6", (ks >> 1) * 2048))
    for rep in range(2 if opt.get('k1x', 0) & 2 else 1):
        for ks in range(4):
            rd(ks)
        for ks in range(8):
            if ks + 4 < 8:
                rd(ks + 4)
            a("s_waitcnt lgkmcnt(%d)" % (3 * min(4, 7 - ks)))
            a(mfma(DD, A0 + 4 * ks, B0 + 4 * ks, None if ks == 0 else DD))
        a("s_nop 11")
        for i in range(8):
            a("v_pk_mul_f32 %s, %s, s[36:37]" % (v(DD + 2 * i, 2), v(DD + 2 * i, 2)))
        for i in range(8):
            a("v_cvt_pk_bf16_f32 %s, %s, %s" % (v(A0 + i), v(DD + 2 * i), v(DD + 2 * i + 1)))
        a("""
        ds_write_b128 v12, v[32:35]
        ds_write_b128 v12, v[36:39] offset:16
        ds_read_b128 v[40:43], v13
        ds_read_b128 v[44:47], v13 offset:1280
        s_waitcnt lgkmcnt(1)
        global_store_dwordx4 v14, v[40:43], s[20:21] %s
        s_waitcnt lgkmcnt(0)
        global_store_dwordx4 v15, v[44:47], s[20:21] %s
        """ % (st, st))
        if opt.get("k1x", 0) & 2:
            a("v_add_u32 v14, 0x2000000, v14", "v_add_u32 v15, 0x2000000, v15", "s_nop 1")
    a("""
    K1_GEND:
    """)
    fin("gemmend")
    a("K1_END:", "s_endpgm")


def silu_ops(Y, ng):
    ex = ["v_exp_f32 %s, %s" % (v(EE + i), v(Y + i)) for i in range(4 * ng)]
    r1, r2, r3 = [], [], []
    for g in range(ng):
        r1.append("v_pk_fma_f32 %s, %s, $K:2, $K:2" % (v(TT + 2 * g, 2), v(EE + 4 * g, 2)))
    for g in range(ng):
        r1.append("v_pk_fma_f32 %s, %s, %s, %s" % (v(TT + 2 * g, 2), v(TT + 2 * g, 2), v(EE + 4 * g + 2, 2), v(TT + 2 * g, 2)))
    for i in range(2 * ng):
        r2.append("v_rcp_f32 %s, %s" % (v(TT + i), v(TT + i)))
    for g in range(ng):
        for p in range(2):
            y = v(Y + 4 * g + 2 * p, 2)
            r3.append("v_pk_mul_f32 %s, %s, %s" % (y, y, v(TT + 2 * g, 2)))
    for g in range(ng):
        for p in range(2):
            y = v(Y + 4 * g + 2 * p, 2)
            r3.append("v_pk_fma_f32 %s, %s, %s, %s" % (y, y, v(EE + 4 * g + 2 * (1 - p), 2), y))
    return ex, r1, r2, r3


SHORT = ("v_exp_f32", "v_rcp_f32", "v_sub_f32", "v_add_u32", "v_mov_b32", "v_mul_f32", "v_fmac_f32", "v_add_f32")


def align8(run):
    out, grp = [], []

    def flush():
        if len(grp) % 2:
            for i in range(len(grp) - 1, -1, -1):
                op = grp[i].split()[0]
                if op in SHORT:
                    grp[i] = grp[i].replace(op, op + "_e64", 1)
                    break
            else:
                grp.append("s_nop 0")
        out.extend(grp)
        del grp[:]
    for ins in run:
        op = ins.split()[0]
        if op in SHORT or op in ("s_setprio", "s_nop"):
            grp.append(ins)
        else:
            flush()
            out.append(ins)
    flush()
    return out


def cvts(Dp, n):
    return ["v_cvt_pk_bf16_f32 %s, %s, %s" % (v(PP + i), v(Dp + 2 * i), v(Dp + 2 * i + 1)) for i in range(n)]


def dma(a, slot, wait=None):
    for r in range(2):
        a("s_add_u32 m0, $GW, %d" % (slot * 2048 + r * 1024 - slot * 64))
        a("s_nop 0" if wait is None or r else "s_waitcnt lgkmcnt(%d)" % wait)
        a("buffer_load_dwordx4 @DA+%d, $Q:4, 0 offen offset:%d lds" % (r, slot * 64))


def cq_read(a, slot, n=8):
    for i in range(n):
        a("ds_read_b64_tr_b16 @CQ+%d:2, @Cq offset:%d" % (2 * i, slot * 2048 + (i >> 1) * 512 + (i & 1) * 128))


STUBS = []


def rare_call(a, tag, target):
    a("s_cbranch_scc1 K2_X%s" % tag, "K2_R%s:" % tag)
    STUBS.append("K2_X%s:\ns_call_b64 $RET:2, %s\ns_waitcnt lgkmcnt(0)\ns_branch K2_R%s" % (tag, target, tag))


def logic(a, tag):
    a("""
    s_add_u32 $P2, $P1, 32
    s_min_u32 $E, $P2, $END
    s_sub_u32 $A, $E, $P1
    s_bfm_b64 $MASK:2, $A, 0
    """)
    if tag == "P":
        a("s_call_b64 $RET:2, K2_REBASE")
    else:
        a("s_cmp_gt_u32 $E, $WEND")
        rare_call(a, "REB" + tag, "K2_REBASE")
    a("""
    s_sub_u32 $D8, $P2, $P1
    s_lshl_b32 $D8, $D8, 3
    s_cmp_lt_u32 $P2, $END
    s_cselect_b32 $SEL, $SEL, #(SELW)
    """)


GEOM_A = ["v_sub_f32 @TT+%d, @TT+%d, @GP+%d" % (i, i, i) for i in range(3)]
GEOM_B = ["v_cvt_pk_bf16_f32 @A3, @TT, @TT+1", "v_cvt_pk_bf16_f32 @A3+1, @TT+2, $K"]
GEOM_C = ["v_dot2_f32_bf16 @A3+2, @A3, @A3, 0", "v_dot2_f32_bf16 @A3+2, @A3+1, @A3+1, @A3+2"]
GEOM_D = ["v_cvt_pk_bf16_f32 @A3+2, @A3+2, @A3+2"]
PERMS = ["v_perm_b32 @DA+%d, @TT+%d, @WA+%d, $SEL" % (r, 4 + r, r) for r in range(2)]


def a3_reads(a):
    a("""
    s_mov_b32 exec_lo, 0
    ds_read_b128 @A3:4, @X
    s_not_b64 exec, exec
    ds_read_b32 @A3+3, @Rec offset:4
    s_mov_b64 exec, -1
    """)


def gather_pos(a):
    a("""
    s_mov_b32 exec_hi, 0
    buffer_load_dwordx3 @GP:3, @GP, $POS:4, 0 idxen
    s_mov_b32 exec_hi, -1
    """)


def step(a, half, opt):
    tag = "H" if half else "F"
    useprio = opt.get("prio", 1)
    for t in range(4):
        D, Dn = (D0, D1) if t % 2 == 0 else (D1, D0)
        slot = (t + 1) & 3
        last = half and t == 3
        if t > 0 and useprio:
            a("s_setprio 0")
        w = ([6, 6, 6, None] if half else [6, 7, 4, None])[t]
        a("s_cmp_lg_u32 $SAFE, 0")
        rare_call(a, "SAFE%s%d" % (tag, t), "K2_CLAMP%d" % (t & 1))
        if t == 1:
            a("s_cmp_lg_u32 $FLUSH, 0")
            rare_call(a, "FL" + tag, "K2_FLUSH")
        if t == 3 and not half:
            a("s_cmp_lg_u32 $REB, 0")
            rare_call(a, "B3", "K2_B3LOAD")
        if t == 0 and not half:
            a("ds_read_u16 @GP, @Rec")
        if w is not None:
            a("s_waitcnt vmcnt(%d)" % w)
        if not last:
            cq_read(a, slot, 4 if half else 8)
        nother = 0
        if t == 0:
            a("""
            s_mov_b64 exec, $MASK:2
            ds_write_b64 @S, @A3:2
            s_mov_b64 exec, -1
            """)
            nother = 1
            if not half:
                a("ds_read_u16 @Nn, @Rec offset:2")
                nother = 2
        if t == 1:
            nother = 2 if half else 5
            for i in range(2 if half else 4):
                a("ds_read_b64_tr_b16 @A2+%d:2, @A2a offset:%d" % (2 * i, i * 576))
            if not half:
                a("""
                s_mov_b64 exec, $MASK:2
                ds_write_b64 @S, @B3:2
                s_mov_b64 exec, -1
                """)
                logic(a, tag)
        if t == 2 and not half:
            a("ds_read_b96 @TT:3, @X")
            a("ds_read2_b32 @TT+4:2, @Idx offset0:0 offset1:32")
            nother = 2
        if t == 3 and not half:
            a3_reads(a)
            nother = 2
        if not last:
            if t == 0 and not half:
                a("s_waitcnt lgkmcnt(10)")
                gather_pos(a)
            dma(a, slot, nother)
            if nother:
                a("s_waitcnt lgkmcnt(0)")
        accp = ACC + 16 * ((t + 3) & 3)
        S2a = mfma(accp, A2, PP, accp)
        S2b = mfma(accp, A2 + 4, PP + 4, accp)
        S1 = mfma(Dn, A3, B3 + 4 * slot, CQ)
        ex, r1, r2, r3 = silu_ops(D, 2 if half else 4)
        pre, mid, late, fin = [], [], [], []
        pr = ["s_setprio 1"] if useprio else []
        if not half:
            if t == 1:
                mid = ["v_lshl_add_u32 @X, @Nn, 1, @Xb", "v_add_u32 @S, @Nn, @Sb", "v_add_u32 @Idx, $D8, @Idx"]
            if t == 2:
                mid, late, fin = GEOM_A + PERMS + GEOM_B, GEOM_C, GEOM_D
            if t == 3:
                mid = ["v_add_u32 @Rec, $D8, @Rec"]
            cv = cvts(Dn, 8)
            run = cv[:6] + [S2a] + cv[6:] + ex[:2] + [S1] + pr + ex[2:5] + [S2b] + mid + ex[5:]
            run += late + r1 + fin + r2 + r3
        else:
            if t == 0:
                cv = cvts(Dn, 8)
                run = cv[:6] + [S2a] + cv[6:] + ex[:2] + [S1] + pr + ex[2:] + r1 + [S2b] + r2 + r3
            elif not last:
                cv = cvts(Dn, 4)
                run = cv + [S1] + pr + ex[:3] + [S2a] + ex[3:] + r1 + r2 + r3
            else:
                cv = cvts(Dn, 4)
                run = cv + ex[:2] + [S2a] + pr + ex[2:] + r1 + r2 + r3
        if opt.get("align", 1):
            a(".p2align 3")
            run = align8(run)
        a(*run)


def u_part():
    f, r = [], []
    for t in range(4):
        for g in range(4):
            for c in range(3):
                f.append("%s %s, %s, @WX+%d" % ("v_fmac_f32" if t else "v_mul_f32", v(EE + 4 * g + c), v(ACC + 16 * t + 4 * g + c), t))
    for g in range(4):
        for c in range(3):
            r.append("v_add_f32_dpp %s, %s, %s row_ror:8 row_mask:0xf bank_mask:%s" % (
                v(TT + (g & 1) * 3 + c), v(EE + 4 * g + c), v(EE + 4 * g + c), "0x3" if g < 2 else "0xc"))
    for c in range(3):
        r.append("v_add_f32_dpp @EE+%d, @TT+%d, @TT+%d row_shl:4 row_mask:0xf bank_mask:0x5" % (c, c, c))
    for c in range(3):
        r.append("v_add_f32_dpp @EE+%d, @TT+%d, @TT+%d row_shr:4 row_mask:0xf bank_mask:0xa" % (c, 3 + c, 3 + c))
    for qp in ("[1,0,3,2]", "[2,3,0,1]"):
        for c in range(3):
            r.append("v_add_f32_dpp @EE+%d, @EE+%d, @EE+%d quad_perm:%s row_mask:0xf bank_mask:0xf" % (c, c, c, qp))
    r += """v_cndmask_b32 @EE, @EE, @EE+1, $FM:2
    v_cndmask_b32 @EE, @EE, @EE+2, $FM+2:2
    v_mov_b32 @EE+1, @EE
    s_nop 1
    v_permlane16_swap_b32 @EE, @EE+1
    s_nop 0
    v_add_f32 @EE, @EE, @EE+1
    v_add_f32 @T4, @T4, @EE
    v_cmp_u_f32 vcc, @EE, @EE
    ds_write_b32 @T1, @T4 offset:#(L_U)""".split("\n")
    return f, r


U_PRE = """
    s_lshl_b32 $A, $WBO8, 1
    v_add_u32 @T1, $A, @fU
    ds_read_b128 @WX:4, @WXa offset:#(L_WX)
    ds_read_b32 @T4, @T1 offset:#(L_U)
    s_mov_b32 $FM, 0x22222222
    s_mov_b32 $FM+1, 0x22222222
    s_mov_b32 $FM+2, 0x44444444
    s_mov_b32 $FM+3, 0x44444444
"""


def flush_m(a, tag):
    a("""
    v_cmp_gt_u32 vcc, $RE, @Incl
    s_mul_i32 $A, $WBO8, 34
    v_add_u32 @T2, $A, @fM
    s_lshr_b32 $A, $WBO8, 3
    s_bcnt1_i32_b64 $B, vcc
    s_sub_u32 $B, $B, $A
    v_sub_u32 @T3, $B, @Hh
    """)
    for g in range(4):
        a("v_cmp_le_i32 $FM+%d:2, %d, @T3" % (2 * g, 2 * g))
    for p in range(2):
        for g in range(4):
            a("v_cvt_pk_bf16_f32 @PP+%d, %s, %s" % (2 * g + p, v(ACC + 32 * p + 4 * g + 3), v(ACC + 32 * p + 16 + 4 * g + 3)))
    a("""
    s_lshl_b32 $B, $ATOM, 2
    s_or_b32 $B, $B, $CONTO
    s_cbranch_scc0 K2_FLW%s
    s_cmp_lg_u32 $B, 1
    s_cbranch_scc1 K2_FLX%s
    s_mov_b32 $FM, 0
    s_mov_b32 $CN, $A
    v_mov_b32 @CONT, v3
    v_mov_b32 @CONT+1, v19
    v_mov_b32 @CONT+2, v35
    v_mov_b32 @CONT+3, v51
    K2_FLW%s:
    """ % (tag, tag, tag))
    for g in range(4):
        a("s_mov_b64 exec, $FM+%d:2" % (2 * g))
        for p in range(2):
            a("ds_write_b32 @T2, @PP+%d offset:%d" % (2 * g + p, L_M + 2 * g * RS + 128 * p))
    a("K2_FLU%s:" % tag, "s_mov_b64 exec, -1")
    x = """K2_FLX%s:
    s_cmp_eq_u32 $B, 2
    s_cbranch_scc0 K2_FLA%s
    s_mov_b32 $FM, 0
    s_mov_b32 exec_hi, 0
    ds_pk_add_bf16 @T2, @PP offset:#(L_M)
    ds_pk_add_bf16 @T2, @PP+1 offset:#(L_M+128)
    s_branch K2_FLW%s
    K2_FLA%s:
    """ % (tag, tag, tag, tag)
    for g in range(4):
        x += "s_mov_b64 exec, $FM+%d:2\n" % (2 * g)
        for p in range(2):
            x += "ds_pk_add_bf16 @T2, @PP+%d offset:%d\n" % (2 * g + p, L_M + 2 * g * RS + 128 * p)
    x += "s_branch K2_FLU%s" % tag
    STUBS.append(x)


def gen_k2(a, opt):
    ST = VR["ST"]
    a("""
    main_kernel:
    s_cmp_ge_u32 s2, 256
    s_cbranch_scc1 K2_END
    s_load_dwordx2 s[22:23], s[0:1], 80
    s_load_dwordx2 s[4:5], s[0:1], 0
    s_load_dwordx2 s[20:21], s[0:1], 64
    v_mov_b32 @Tid, v0
    v_lshrrev_b32 v1, 6, v0
    s_mov_b32 $BK, s2
    v_readfirstlane_b32 s3, v1
    """)
    refstamp(a, opt, "k2e", "$BK", "s[22:23]", VR["X"])
    a("""
    s_and_b32 $A, s2, 7
    s_lshl_b32 $A, $A, 5
    s_lshr_b32 s2, s2, 3
    s_add_u32 s2, s2, $A
    s_mov_b32 $O, 0
    s_mov_b32 $QUOTA, 24
    s_mov_b32 $SAFE, 0
    s_mov_b32 $FIRST, 1
    K2_ROUND:
    s_setprio 3
    v_and_b32 @L, 63, @Tid
    v_lshrrev_b32 @T0, 2, @Tid
    v_lshlrev_b32 @T0, 3, @T0
    s_lshl_b32 $A, s2, 10
    s_add_u32 $A, $A, #(WS_T)
    v_add_u32 @T0, $A, @T0
    s_waitcnt lgkmcnt(0)
    """)
    stamp(a, opt, 0, ST, True)
    stamp(a, opt, 1, ST)
    lstamp(a, opt, "start")
    refstamp(a, opt, "k2", "$BK", "s[22:23]", VR["X"])
    a("""
    global_load_dwordx2 @Ta:2, @T0, s[22:23]
    """)
    lstamp(a, opt, "tiss")
    a("""
    s_mov_b32 $Q, s22
    s_mov_b32 $Q+1, s23
    s_mov_b32 $Q+2, #(WS_DBG)
    s_mov_b32 $Q+3, 0x20000
    """)
    NRP = opt.get("recpf", 0)
    if NRP:
        a("""
        s_lshr_b32 $A, $BK, 3
        s_lshl_b32 $A, $A, 3
        s_add_u32 $A, $A, s3
        s_mul_i32 $A, $A, #(CH*8)
        s_and_b32 $B, $BK, 7
        s_mul_i32 $B, $B, 1604
        s_add_u32 $A, $A, $B
        s_add_u32 $A, $A, %d
        v_lshl_add_u32 @T2, @L, 7, $A
        s_bfm_b64 exec, %d, 0
        buffer_load_dword @Pf, @T2, $Q:4, 0 offen
        s_mov_b64 exec, -1
        """ % ((WS_REC + 803 - 64 * (NRP - 1)) & ~3, NRP))
    a("""
    v_lshlrev_b32 @T4, 4, @L
    s_lshl_b32 $A, s3, 10
    s_add_u32 m0, $A, #(L_IMG)
    s_add_u32 $B, $A, #(WS_IMG)
    buffer_load_dwordx4 @T4, $Q:4, $B offen lds
    s_mul_i32 $E, s2, #(NB)
    s_cmp_ge_u32 s3, 3
    s_cbranch_scc1 K2_NOC2
    s_lshl_b32 $D8, $E, 4
    s_add_u32 $D8, $D8, #(WS_POS)
    s_add_u32 $B, $B, 8192
    s_add_u32 $REP, $A, #(L_IMG+8192)
    s_cmp_lt_u32 s3, 2
    s_cselect_b32 m0, $REP, #(L_POSD)
    s_cselect_b32 $B, $B, $D8
    buffer_load_dwordx4 @T4, $Q:4, $B offen lds
    K2_NOC2:
    """)
    lstamp(a, opt, "ciss")
    a("""
    s_mov_b32 $H, s4
    s_mov_b32 $H+1, s5
    s_mov_b32 $H+2, #(N*256)
    s_mov_b32 $H+3, 0x20000
    v_lshrrev_b32 @T3, 4, @L
    v_and_b32 @T1, 3, @L
    v_xor_b32 @T0, @T3, @T1
    v_lshlrev_b32 @T0, 4, @T0
    v_lshrrev_b32 @T2, 2, @L
    v_lshl_add_u32 @T0, @T2, 8, @T0
    s_lshr_b32 $B, s3, 1
    s_lshl_b32 $B, $B, 4
    s_add_u32 $B, $B, $E
    s_lshl_b32 $B, $B, 1
    s_and_b32 $D8, s3, 1
    s_add_u32 $B, $B, $D8
    s_lshl_b32 $B, $B, 7
    s_lshl_b32 $D8, s3, 11
    s_add_u32 m0, $D8, #(L_H)
    v_add_u32 @T0, $B, @T0
    buffer_load_dwordx4 @T0, $H:4, 0 offen lds
    s_add_u32 m0, $D8, #(L_H+1024-64)
    s_lshl_b32 $B, s3, 12
    buffer_load_dwordx4 @T0, $H:4, 0 offen offset:64 lds
    s_add_u32 $WEND, $B, #(WS_WF)
    """)

    def wload(lo, hi):
        for ks in range(lo, hi):
            a("buffer_load_dwordx4 @W1+%d:4, @T4, $Q:4, $WEND offen offset:%d" % (4 * ks, ks * 1024))
    W1PRE = opt.get("w1pre", 1)
    W1MID = opt.get("w1mid", 1)
    wload(0, W1PRE)
    lstamp(a, opt, "hiss")
    a("""
    v_mov_b32 @Z, 0
    v_mov_b32 @Z+1, 0
    v_mov_b32 @Z+2, 0
    v_mov_b32 @Z+3, 0
    s_mul_i32 $WBO8, s3, #(SW)
    v_lshlrev_b32 @T0, 3, @L
    ds_write_b64 @T0, @Z:2
    v_add_u32 @T0, $WBO8, @T4
    v_lshl_add_u32 @Hb1, @L, 2, $WBO8
    ds_write_b128 @T0, @Z:4 offset:#(L_S)
    ds_write_b128 @T0, @Z:4 offset:#(L_S+1024)
    ds_write_b32 @Hb1, @Z offset:#(L_S+2048)
    v_add_u32 @T0, $A, @T4
    s_cmp_eq_u32 $FIRST, 0
    s_cbranch_scc1 K2_NOZU
    ds_write_b128 @T0, @Z:4 offset:#(L_U)
    K2_NOZU:
    """)
    lstamp(a, opt, "zero")
    a("""
    v_lshlrev_b32 @T3, 1, @T3
    s_movk_i32 $B, 0x9c
    v_bfe_u32 @T3, $B, @T3, 2
    v_xor_b32 @T3, @T3, @T2
    v_and_b32 @T3, 3, @T3
    v_and_b32 @Hb1, 15, @L
    v_lshlrev_b32 @Hb1, 6, @Hb1
    v_lshl_add_u32 @Hb1, @T3, 4, @Hb1
    v_add_u32 @Hb1, #(L_H), @Hb1
    v_mul_u32_u24 @Ch, #(CH*16), @T2
    v_lshlrev_b32 @T1, 1, @T1
    v_add_u32 @T1, $O, @T1
    s_mul_i32 $B, s3, #(CH)
    s_add_u32 $B, $B, #(WS_REC//8)
    v_add3_u32 @Ch, @Ch, @T1, $B
    v_add_u32 @T3, #(8*CH), @Ch
    s_cmp_lt_u32 s3, #(NCH-248)
    s_cselect_b32 $P1, 0, 0xf0000000
    s_add_u32 $B, $O, $QUOTA
    """)
    for i in range(4):
        a("v_pk_mov_b32 @A2+%d:2, @Z:2, @Z:2" % (2 * i))
        a("v_pk_mov_b32 @RADDR+%d:2, @Z:2, @Z:2" % (2 * i))
    for i in range(8):
        a("v_bfrev_b32 @RANK+%d, -4.0" % i if False else "v_mov_b32 @RANK+%d, 0x8000" % i)
    NPF = opt.get("qpf", 24)
    if NPF:
        a("""
        s_lshr_b32 $D8, $BK, 3
        s_lshl_b32 $D8, $D8, 3
        s_add_u32 $D8, $D8, s3
        s_mul_i32 $D8, $D8, %d
        s_and_b32 $REP, $BK, 7
        s_add_u32 $REP, $REP, 1
        s_mul_i32 $REP, $REP, #(1568*256)
        s_add_u32 $D8, $D8, $REP
        s_sub_u32 $REP, $D8, #(NQ*256)
        s_cselect_b32 $P2, $D8, $REP
        v_lshlrev_b32 @X, 7, @L
        """ % (NPF * 128))
    a("""
    s_mov_b32 $L2E, #(f32(-LOG2E))
    s_mov_b32 $L2E+1, #(f32(-LOG2E))
    s_add_u32 $POS, s22, #(WS_POS)
    s_addc_u32 $POS+1, s23, 0
    s_or_b32 $POS+1, $POS+1, 0x100000
    s_mov_b32 $POS+2, #(N)
    s_mov_b32 $POS+3, 0x20000
    s_mov_b32 $K, #(f32(2.0**-KEXP))
    s_mov_b32 $K+1, #(f32(2.0**-KEXP))
    s_mov_b32 $OUT, s20
    s_mov_b32 $OUT+1, s21
    s_add_u32 $OUT+2, $E, #(NB)
    s_min_u32 $OUT+2, $OUT+2, #(N)
    s_lshl_b32 $OUT+2, $OUT+2, 8
    s_mov_b32 $OUT+3, 0x20000
    s_xor_b32 $ATOM, $FIRST, 1
    """)
    lstamp(a, opt, "preT")
    a("""
    s_mov_b32 exec_lo, 0
    s_mov_b32 exec_hi, $P1
    s_waitcnt vmcnt(%d)
    v_mov_b32 @Tb, 0
    s_mov_b64 exec, -1
    v_and_b32 @Ra, 0xffff, @Ta
    v_and_b32 @Ra+1, 0xffff, @Tb
    v_lshrrev_b32 @Ta, 16, @Ta
    v_lshrrev_b32 @Tb, 16, @Tb
    v_min_u32 @T0, $B, @Ta
    v_min_u32 @T2, $B, @Tb
    v_sub_u32 @T0, @T0, @T1
    v_sub_u32 @T2, @T2, @T1
    v_add_lshl_u32 @Ra, @Ra, @Ch, 3
    v_add_lshl_u32 @Ra+1, @Ra+1, @T3, 3
    """ % (3 + W1PRE + (1 if NRP else 0)))
    stamp(a, opt, 2, ST)
    lstamp(a, opt, "T")
    slots = [(L, i) for L in range(3) for i in range(2)]
    rem = ("@T0", "@T2")
    for q, (L, i) in enumerate(slots[:4]):
        a("v_cmp_lt_i32 $M+%d:2, %d, %s" % (4 * q, 8 * L, rem[i]))
    for q, (L, i) in enumerate(slots[:4]):
        a("s_mov_b64 exec, $M+%d:2" % (4 * q))
        a("global_load_dwordx4 @REC0+%d:4, @Ra+%d, s[22:23] offset:%d" % (4 * q, i, 64 * L))
    a("""
    s_mov_b64 exec, -1
    v_max_i32 @S, @T0, @T2
    v_cmp_lt_i32 $M+16:2, 16, @S
    """)
    wload(W1PRE, W1PRE + W1MID)
    a("""
    s_cmp_lg_u64 $M+16:2, 0
    s_cbranch_scc1 K2_L20
    K2_L20R:
    """)
    lstamp(a, opt, "r1iss")
    a("""
    s_waitcnt vmcnt(%d) lgkmcnt(0)
    s_barrier
    """ % (4 + W1PRE + W1MID))
    lstamp(a, opt, "barA")
    for k in range(12):
        a("ds_read_b128 %s, @Hb1 offset:%d" % (v(ACC + 4 * k, 4), (k >> 2) * 4096 + (k & 3) * 1024))
    wload(W1PRE + W1MID, 4)
    NLATE = 4 - W1PRE
    for q, (L, i) in enumerate(slots[:4]):
        a("v_cmp_lt_i32 $M+%d:2, %d, %s" % (4 * q + 2, 8 * L + 1, rem[i]))
    a("""
    v_max_u32 @Ch, @Ta, @Tb
    v_cmp_lt_u32 vcc, $B, @Ch
    v_mov_b32 @T3, 1
    s_waitcnt lgkmcnt(4)
    """)
    for k in range(12, 16):
        a("ds_read_b128 %s, @Hb1 offset:%d" % (v(ACC + 4 * k, 4), (k >> 2) * 4096 + (k & 3) * 1024))
    for g, r in enumerate(TABREG):
        a("ds_read_b128 %s, @T4 offset:%d" % (v(r, 4), L_P + g * 1024))
    stamp(a, opt, 3, ST)
    lstamp(a, opt, "hbiss")
    for q in range(8):
        if q % 2 == 0:
            a("s_waitcnt vmcnt(%d)%s" % (NLATE + 3 - q // 2, " lgkmcnt(7)" if q == 0 else ""))
        if q == 0:
            stamp(a, opt, 4, ST)
            lstamp(a, opt, "R1b")
        a("s_mov_b64 exec, $M+%d:2" % (2 * q))
        a("v_lshrrev_b32 @RADDR+%d, 17, @REC0+%d" % (q, 2 * q))
        a("ds_add_rtn_u32 @RANK+%d, @RADDR+%d, @T3" % (q, q))
    M16 = "v_mfma_f32_16x16x32_bf16"
    pm = []
    for ks in range(4):
        for rg in range(4):
            pm.append("%s @EE+%d:4, @W1+%d:4, %s, %s" % (M16, 4 * rg, 4 * ks, v(ACC + 16 * rg + 4 * ks, 4), "0" if ks == 0 else "@EE+%d:4" % (4 * rg)))
    a("""
    s_mov_b64 exec, -1
    s_lshl_b32 $GW, s3, 13
    s_lshl_b32 $B, s3, 5
    s_waitcnt lgkmcnt(8)
    v_add_u32 @WA, $GW, @WA
    v_add_u32 @WA+1, $GW, @WA+1
    v_add_u32 @Pw, $B, @Pw
    s_add_u32 $GW, $GW, #(L_G)
    s_or_b64 $MASK:2, vcc, $M+16:2
    s_cbranch_scc1 K2_L2A
    K2_L2AR:
    """)
    lstamp(a, opt, "hist")
    a("""
    s_waitcnt lgkmcnt(0)
    s_barrier
    """)
    lstamp(a, opt, "barB")
    a("ds_read_b32 @T1, @Us")
    if NPF:
        a("""
        %s
        buffer_load_dword @Pf, @X, $Q:4, $P2 offen
        s_mov_b64 exec, -1
        """ % ("s_bfm_b64 exec, %d, 0" % NPF if NPF < 64 else ""))
    a("s_waitcnt vmcnt(%d)" % (1 if NPF else 0))
    a(*pm[:4])
    a("s_waitcnt lgkmcnt(0)", "v_mov_b32 @Incl, @T1")
    stamp(a, opt, 5, ST)
    lstamp(a, opt, "cnt")
    scan64(a, VR["Incl"], pm[4:])
    lstamp(a, opt, "scan")
    a("""
    v_sub_u32 @Ch, @Incl, @T1
    v_readlane_b32 $TOTAL, @Incl, 63
    ds_write_b32 @Us, @Ch offset:#(L_EXC)
    """)
    for q in range(8):
        a("ds_read_b32 @RADDR+%d, @RADDR+%d offset:#(L_EXC)" % (q, q))
    a("""
    s_cmp_gt_u32 $TOTAL, #(CAP)
    s_cbranch_scc1 K2_OVERFLOW
    """)
    for i in range(8):
        a("v_pk_mul_f32 @EE+%d:2, @EE+%d:2, $L2E:2" % (2 * i, 2 * i))
    for q in range(8):
        a("s_waitcnt lgkmcnt(7)")
        a("v_add_lshl_u32 @RADDR+%d, @RADDR+%d, @RANK+%d, 3" % (q, q, q))
        a("ds_write_b64 @RADDR+%d, @REC0+%d:2 offset:#(L_REC)" % (q, 2 * q))
    lstamp(a, opt, "scat")
    for i in range(8):
        a("v_cvt_pk_bf16_f32 @EE+%d, @EE+%d, @EE+%d" % (i, 2 * i, 2 * i + 1))
    for rg in range(4):
        a("ds_write_b64 @Pw, @EE+%d:2 offset:%d" % (2 * rg, L_P + rg * 16 * RS))
    a("""
    v_add_lshl_u32 @T0, @L, $TOTAL, 3
    ds_write_b64 @T0, @Z:2 offset:#(L_REC)
    s_add_u32 $A, $TOTAL, 15
    s_bfe_u32 $B, $A, 0x30004
    s_lshr_b32 $A, $A, 7
    s_mul_i32 $P1, s3, $A
    s_min_u32 $D8, s3, $B
    s_add_u32 $P1, $P1, $D8
    s_cmp_lt_u32 s3, $B
    s_addc_u32 $END, $P1, $A
    s_lshl_b32 $B, $P1, 7
    s_lshl_b32 $A, $A, 4
    v_subrev_u32 @T1, 1, @T1
    v_cmp_le_u32 vcc, $A, @T1
    v_add_u32 @Idx, $B, @Idx
    v_add_u32 @Rec, $B, @Rec
    s_cmp_lt_u32 $P1, $END
    s_cselect_b32 $SEL, #(SELQ-SELW), 0
    s_add_u32 $SEL, $SEL, #(SELW)
    s_and_b32 vcc_hi, vcc_hi, 0x1ffff
    s_or_b64 $MASK:2, vcc, $M+16:2
    s_cbranch_scc1 K2_L2B
    K2_L2BR:
    """)
    lstamp(a, opt, "preC")
    a("""
    s_waitcnt lgkmcnt(0)
    s_barrier
    """)
    lstamp(a, opt, "barC")
    refstamp(a, opt, "barC", "$BK", "s[22:23]", VR["X"])
    k2_tail(a, opt, False)


def k2_tail(a, opt, fused):
    ST = VR["ST"]

    def zero(r):
        if not fused:
            a(mfma(r, VR["Z"], VR["Z"], None))
    a("""
    ds_read2_b32 @TT+4:2, @Idx offset0:0 offset1:32
    ds_read_u16 @GP, @Rec
    ds_read_u16 @Nn, @Rec offset:2
    s_lshl_b32 $P1, $P1, 4
    s_lshl_b32 $END, $END, 4
    s_min_u32 $END, $END, $TOTAL
    v_cmp_ge_u32 vcc, $P1, @Incl
    """)
    zero(ACC)
    a("""
    s_add_u32 $P2, $P1, 32
    s_min_u32 $D8, $P2, $END
    s_bcnt1_i32_b64 $B, vcc
    s_min_u32 $B, $B, 48
    s_add_u32 $A, $B, 7
    v_readlane_b32 $WEND, @Incl, $A
    v_readlane_b32 $CONTC, @Ch, $B
    s_lshl_b32 $WB8, $B, 3
    s_waitcnt lgkmcnt(1)
    """)
    stamp(a, opt, 6, ST)
    lstamp(a, opt, "idx")
    a(*PERMS)
    gather_pos(a)
    ND1 = opt.get("nd1", 2)
    for slot in range(ND1):
        dma(a, slot)
    lstamp(a, opt, "dma01")
    zero(ACC + 16)
    a("""
    s_mov_b32 exec_lo, 0
    s_lshl_b32 $A, $WB8, 1
    v_subrev_u32 @Xb, $A, @Xb
    s_mul_i32 $A, $WB8, 34
    v_add_u32 @B3a, $A, @B3a
    s_mov_b32 exec_lo, -1
    s_cmp_gt_u32 $D8, $WEND
    s_cselect_b32 $REP, 1, 0
    s_cselect_b32 $P2, $P1, $P2
    s_cselect_b32 $A, 0, 256
    s_waitcnt lgkmcnt(0)
    v_lshl_add_u32 @X, @Nn, 1, @Xb
    v_add_u32 @Idx, $A, @Idx
    ds_read_b96 @TT:3, @X
    ds_read2_b32 @TT+4:2, @Idx offset0:0 offset1:32
    """)
    for t in range(4):
        for jj in range(2):
            a("ds_read_b64_tr_b16 @B3+%d:2, @B3a offset:%d" % (4 * t + 2 * jj, jj * 4 * RS + t * 64))
    zero(ACC + 32)
    a("""
    s_min_u32 $B, $D8, $WEND
    s_sub_u32 $B, $B, $P1
    s_bfm_b64 $MASK:2, $B, 0
    s_mov_b32 $D8, $A
    s_cmp_lt_u32 $CONTC, $P1
    s_cselect_b32 $CONTC, 1, 0
    s_sub_u32 $A, $WBO8, $WB8
    v_add_u32 @Sb, $A, @Sb
    v_add_u32 @S, @Nn, @Sb
    """)
    if not fused:
        a("v_add_u32 @A2a, $WBO8, @A2a", "v_add_u32 @Cq, $GW, @Cq")
    a("""
    s_mov_b32 $CN, -1
    s_mov_b32 $FLUSH, 0
    s_mov_b32 $REB, 0
    s_mov_b32 $WBO8, 0
    """)
    zero(ACC + 48)
    lstamp(a, opt, "logic")
    if not fused:
        a("""
        s_lshr_b32 $RE, s3, 2
        s_lshl_b32 $A, $RE, 5
        s_add_u32 $A, $A, $E
        s_lshl_b32 $A, $A, 2
        s_and_b32 $B, s3, 3
        s_add_u32 $A, $A, $B
        s_lshl_b32 $A, $A, 6
        v_add_u32 @Out, $A, @Out
        s_mul_i32 $A, $RE, #(32*RS)
        v_add_u32 @Mr, $A, @Mr
        s_lshl_b32 $A, $RE, 13
        v_add_u32 @Hop, $A, @Hop
        s_lshl_b32 $RE, $B, 10
        s_add_u32 $A, $A, $RE
        v_add_u32 @HRa, $A, @HRa
        """)
        zero(D1)
        a("""
        s_lshl_b32 $A, $B, 13
        v_add_u32 @Wa, $A, @Wa
        s_lshl_b32 $A, $B, 8
        s_add_u32 $A, $A, #(L_POSD)
        v_add_u32 @Us, $A, @Us
        s_lshl_b32 $A, s3, 10
        v_add_u32 @fU, $A, @fU
        v_add_u32 @stW, $GW, @stW
        v_add_u32 @stR, $GW, @stR
        """)
    a("""
    s_cmp_ge_u32 $P1, $END
    s_cbranch_scc1 K2_EMPTY
    s_cmp_lt_u32 $P2, $END
    s_cselect_b32 $SEL, $SEL, #(SELW)
    """)
    stamp(a, opt, 7, ST)
    lstamp(a, opt, "preg")
    a("s_waitcnt vmcnt(%d) lgkmcnt(0)" % (2 * ND1))
    stamp(a, opt, 8, ST)
    lstamp(a, opt, "gath")
    a(*(GEOM_A + GEOM_B + GEOM_C + ["s_waitcnt vmcnt(%d)" % (2 * ND1 - 2)]))
    cq_read(a, 0)
    a(*GEOM_D)
    a3_reads(a)
    for slot in range(ND1, 4):
        dma(a, slot)
    a("v_add_u32 @Rec, $D8, @Rec")
    a(*PERMS)
    a("s_waitcnt lgkmcnt(0)")
    a(mfma(D0, A3, B3, CQ))
    dma(a, 0)
    stamp(a, opt, 9, ST)
    lstamp(a, opt, "loop")
    if opt.get("stamps"):
        a("s_mov_b32 s19, 16")
    a("""
    s_setprio 0
    s_sub_u32 $A, $END, $P1
    s_mov_b32 $P1, $P2
    s_cmp_lt_u32 $P1, $END
    s_cselect_b32 $A, 32, $A
    s_cmp_le_u32 $A, 16
    s_cbranch_scc1 K2_HALF
    """)
    a(".p2align 3", "K2_LOOP:")
    step(a, False, opt)
    a("s_setprio 0")
    if opt.get("stamps"):
        a("s_memtime s[100:101]", "s_waitcnt lgkmcnt(0)", "s_mov_b32 m0, s19", "v_writelane_b32 @ST, s100, m0", "s_add_u32 s19, s19, 1")
    a("""
    s_sub_i32 $A, $END, $P1
    s_mov_b32 $P1, $P2
    s_cmp_lt_u32 $P1, $END
    s_cselect_b32 $A, 32, $A
    s_cmp_gt_i32 $A, 16
    s_cbranch_scc1 K2_LOOP
    s_cmp_le_i32 $A, 0
    s_cbranch_scc1 K2_TAILF
    K2_HALF:
    """)
    step(a, True, opt)
    a(*cvts(D1, 4))
    a("s_setprio 0", "s_branch K2_FIN")
    a("K2_TAILF:")
    cv = cvts(D1, 8)
    a(*(cv[4:] + cv[:4]))
    a(mfma(ACC + 48, A2 + 4, PP + 4, ACC + 48), "s_nop 0")
    a("K2_FIN:")
    a(mfma(ACC + 48, A2, PP, ACC + 48))
    stamp(a, opt, 10, ST)
    lstamp(a, opt, "fin")
    refstamp(a, opt, "fin", "$BK", "s[22:23]", VR["X"])
    a("""
    s_mov_b32 $WBO8, $WB8
    s_mov_b32 $CONTO, $CONTC
    s_mov_b32 $RE, $END
    """)
    flush_m(a, "F")
    a("K2_JOIN:")
    stamp(a, opt, 11, ST)
    lstamp(a, opt, "join")
    a(U_PRE)
    a("""
    v_xor_b32 @T0, 32, @Hop
    v_xor_b32 @T2, 16, @HRa
    s_waitcnt lgkmcnt(4)
    """)
    for ks in range(8):
        a("ds_read_b128 @HB+%d:4, %s offset:%d" % (4 * ks, "@T0" if ks & 1 else "@Hop", (ks >> 1) * 1024))
    a("""
    ds_read_b128 @HR:4, @HRa
    ds_read_b128 @HR+4:4, @T2
    s_mul_i32 $A, $CN, #(RS)
    s_add_u32 $A, $A, #(L_M)
    v_add_u32 @T3, $A, @fM
    v_xor_b32 @T0, 32, @Wa
    s_waitcnt vmcnt(0) lgkmcnt(10)
    s_barrier
    """)
    stamp(a, opt, 12, ST)
    lstamp(a, opt, "barD")
    uf, ur = u_part()
    a("ds_read2_b32 @TT:2, @T3 offset0:0 offset1:32", "s_waitcnt lgkmcnt(6)")
    for ks in range(8):
        a("ds_read_b128 @WH1+%d:4, %s offset:%d" % (4 * ks, "@T0" if ks & 1 else "@Wa", (ks >> 1) * 2048))
    a(*uf[:12])
    a("""
    s_cmp_lt_i32 $CN, 0
    s_cbranch_scc1 K2_NOFIX
    s_waitcnt lgkmcnt(8)
    v_lshlrev_b32 @TT+2, 16, @TT
    v_and_b32 @TT+3, 0xffff0000, @TT
    v_lshlrev_b32 @TT+4, 16, @TT+1
    v_and_b32 @TT+5, 0xffff0000, @TT+1
    v_add_f32 @TT+2, @TT+2, @CONT
    v_add_f32 @TT+3, @TT+3, @CONT+1
    v_add_f32 @TT+4, @TT+4, @CONT+2
    v_add_f32 @TT+5, @TT+5, @CONT+3
    v_cvt_pk_bf16_f32 @TT, @TT+2, @TT+3
    v_cvt_pk_bf16_f32 @TT+1, @TT+4, @TT+5
    s_mov_b32 exec_hi, 0
    ds_write2_b32 @T3, @TT, @TT+1 offset0:0 offset1:32
    s_mov_b32 exec_hi, -1
    K2_NOFIX:
    s_waitcnt lgkmcnt(1)
    """)
    for ks in range(8):
        a("ds_read_b128 @WH2+%d:4, %s offset:%d" % (4 * ks, "@T0" if ks & 1 else "@Wa", 32768 + (ks >> 1) * 2048))
    rest = uf[12:] + ur
    per = opt.get("uper", 7)
    for ks in range(8):
        if ks == 7:
            a("s_waitcnt lgkmcnt(8)")
        a(mfma(VR["H1"], VR["WH1"] + 4 * ks, VR["HB"] + 4 * ks, None if ks == 0 else VR["H1"]))
        if ks < 7:
            a(*rest[per * ks:per * ks + per])
    a(*rest[per * 7:])
    a("""
    v_mov_b32 @T0, 0
    s_cbranch_vccnz K2_NAN
    K2_NANR:
    """)
    lstamp(a, opt, "preE")
    a("""
    s_waitcnt lgkmcnt(0)
    s_barrier
    """)
    lstamp(a, opt, "barE")
    for ks in range(8):
        a("ds_read_b128 @MB+%d:4, @Mr offset:%d" % (4 * ks, L_M + ks * 32))
    a("ds_read_b64 @GP:2, @T0 offset:#(L_FLAG)")
    for i in range(8):
        a("v_pk_mul_f32 @H1+%d:2, @H1+%d:2, $L2E:2" % (2 * i, 2 * i))
    assert L_U == L_POSD + 1024
    a("""
    s_cmp_lt_u32 s3, 4
    s_cbranch_scc1 K2_NOPOS
    """)
    for i in range(4):
        a("ds_read2st64_b32 @TT+%d:2, @Us offset0:%d offset1:%d" % (2 * i, 8 * i + 4, 8 * i + 8))
    a("""
    ds_read_b32 @PP, @Us
    v_bfe_u32 @T1, @Tid, 2, 6
    s_mul_i32 $B, s2, #(NB)
    v_add_u32 @T1, $B, @T1
    s_lshr_b32 $A, $OUT+2, 8
    v_cmp_gt_u32 vcc, $A, @T1
    v_mul_u32_u24 @T1, 6, @T1
    v_and_b32 @T2, 3, @Tid
    v_lshl_add_u32 @T1, @T2, 1, @T1
    v_add_u32 @T1, #(N*256), @T1
    s_mov_b32 $A, 0x77777777
    s_waitcnt lgkmcnt(0)
    v_add_f32 @TT, @TT, @TT+1
    v_add_f32 @TT+2, @TT+2, @TT+3
    v_add_f32 @TT+4, @TT+4, @TT+5
    v_add_f32 @TT+6, @TT+6, @TT+7
    v_add_f32 @TT, @TT, @TT+2
    v_add_f32 @TT+4, @TT+4, @TT+6
    v_add_f32 @TT, @TT, @TT+4
    v_add_f32 @TT, @TT, @PP
    v_cvt_pk_bf16_f32 @TT, @TT, @TT
    s_and_b32 exec_lo, vcc_lo, $A
    s_and_b32 exec_hi, vcc_hi, $A
    s_cbranch_execz K2_NOPOS2
    global_store_short @T1, @TT, s[20:21]
    K2_NOPOS2:
    s_mov_b64 exec, -1
    s_setprio 1
    K2_NOPOS:
    """)
    hu = []
    for i in range(8):
        hu += ["v_lshlrev_b32 @HU+%d, 16, @HR+%d" % (2 * i, i), "v_and_b32 @HU+%d, 0xffff0000, @HR+%d" % (2 * i + 1, i)]
    for ks in range(8):
        a("s_waitcnt lgkmcnt(%d)" % (8 - ks))
        a(mfma(VR["H1"], VR["WH2"] + 4 * ks, VR["MB"] + 4 * ks, VR["H1"]))
        a(*hu[2 * ks:2 * ks + 2])
    lstamp(a, opt, "g2")
    a("""
    s_setprio 0
    s_waitcnt lgkmcnt(0)
    v_readfirstlane_b32 $A, @GP
    v_readfirstlane_b32 $E, @GP+1
    v_add_u32 @T0, 4096, @Out
    s_andn2_b32 $E, $E, $SAFE
    s_or_b32 $A, $A, $E
    s_cbranch_scc1 K2_AGAIN
    s_mov_b32 $A, #(f32(-LN2))
    s_mov_b32 $B, #(f32(-LN2))
    .p2align 3
    """)
    assert SR["A"] % 2 == 0 and SR["B"] == SR["A"] + 1
    for i in range(16):
        a("v_exp_f32 @EE+%d, @H1+%d" % (i, i))
    for i in range(16):
        a("v_add_f32 @EE+%d, 1.0, @EE+%d" % (i, i))
    for i in range(16):
        a("v_rcp_f32 @EE+%d, @EE+%d" % (i, i))
    for i in range(8):
        a("v_pk_mul_f32 @EE+%d:2, @EE+%d:2, @H1+%d:2" % (2 * i, 2 * i, 2 * i))
    for i in range(8):
        a("v_pk_fma_f32 @EE+%d:2, @EE+%d:2, $A:2, @HU+%d:2" % (2 * i, 2 * i, 2 * i))
    a(*cvts(EE, 8))
    lstamp(a, opt, "silu")
    ost = opt.get("out_store", "").replace("+", " ")
    a("""
    ds_write_b128 @stW, @PP:4
    ds_write_b128 @stW, @PP+4:4 offset:16
    ds_read_b128 @EE:4, @stR
    ds_read_b128 @EE+4:4, @stR offset:1280
    s_waitcnt lgkmcnt(1)
    buffer_store_dwordx4 @EE:4, @Out, $OUT:4, 0 offen %s
    s_waitcnt lgkmcnt(0)
    buffer_store_dwordx4 @EE+4:4, @T0, $OUT:4, 0 offen %s
    """ % (ost, ost))
    stamp(a, opt, 13, ST)
    lstamp(a, opt, "store")
    if opt.get("stamps"):
        a("v_writelane_b32 @ST, $SAFE, 40", "v_writelane_b32 @ST, $O, 41", "v_writelane_b32 @ST, $TOTAL, 42",
          "v_writelane_b32 @ST, s19, 43", "v_writelane_b32 @ST, $ATOM, 46")
    stamp_store(a, opt, ST, VR["T0"], VR["Tid"], "s[22:23]", s(SR["BK"]), 0)
    if opt.get("ls"):
        a("s_waitcnt vmcnt(0)")
        lstamp(a, opt, "end")
        a("s_waitcnt lgkmcnt(0)")
        for k in range(7):
            a("v_writelane_b32 @ST, s%d, %d" % (6 + 2 * k, k))
        a("""
        s_lshl_b32 s100, $BK, 11
        s_add_u32 s100, s100, #(WS_DBG)
        v_lshl_add_u32 @T0, @Tid, 2, s100
        global_store_dword @T0, @ST, s[22:23]
        """)
    a("K2_END:", "s_endpgm")
    a("K2_FLUSH:")
    flush_m(a, "M")
    a("s_waitcnt lgkmcnt(0)")
    a(U_PRE, "s_waitcnt lgkmcnt(0)")
    a(*(uf + ur))
    a("""
    v_mov_b32 @T0, 0
    v_mov_b32 @T1, 1
    s_cbranch_vccz K2_FL2
    ds_write_b32 @T0, @T1 offset:#(L_FLAG+4)
    K2_FL2:
    """)
    for i in range(64):
        a("v_mov_b32 %s, 0" % v(ACC + i))
    a("""
    s_mov_b32 $FLUSH, 0
    s_setpc_b64 $RET:2
    K2_NAN:
    v_mov_b32 @T1, 1
    ds_write_b32 @T0, @T1 offset:#(L_FLAG+4)
    s_branch K2_NANR
    """)
    for stub in STUBS:
        a(stub)
    del STUBS[:]
    a("K2_EMPTY:")
    for slot in range(ND1, 4):
        dma(a, slot)
    a("""
    s_waitcnt lgkmcnt(0)
    s_branch K2_JOIN
    K2_L20:
    v_cmp_lt_i32 $M+18:2, 16, @T0
    v_cmp_lt_i32 $M+20:2, 16, @T2
    v_mov_b32 @RADDR+8, 0
    v_mov_b32 @RADDR+9, 0
    v_mov_b32 @RADDR+10, 0
    v_mov_b32 @RADDR+11, 0
    v_mov_b32 @RANK+8, 0x8000
    v_mov_b32 @RANK+9, 0x8000
    v_mov_b32 @RANK+10, 0x8000
    v_mov_b32 @RANK+11, 0x8000
    s_mov_b64 exec, $M+18:2
    global_load_dwordx4 @REC0+16:4, @Ra, s[22:23] offset:128 sc1
    s_mov_b64 exec, $M+20:2
    global_load_dwordx4 @REC0+20:4, @Ra+1, s[22:23] offset:128 sc1
    s_mov_b64 exec, -1
    s_branch K2_L20R
    K2_L2A:
    s_cbranch_vccz K2_L2A1
    ds_write_b32 @Z, @T3 offset:#(L_FLAG)
    K2_L2A1:
    s_cmp_eq_u64 $M+16:2, 0
    s_cbranch_scc1 K2_L2AR
    s_mov_b64 exec, $M+20:2
    s_waitcnt vmcnt(0)
    v_lshrrev_b32 @RADDR+10, 17, @REC0+20
    ds_add_rtn_u32 @RANK+10, @RADDR+10, @T3
    s_mov_b64 exec, $M+18:2
    v_lshrrev_b32 @RADDR+8, 17, @REC0+16
    ds_add_rtn_u32 @RANK+8, @RADDR+8, @T3
    s_mov_b64 exec, -1
    v_cmp_lt_i32 $M+18:2, 17, @T0
    v_cmp_lt_i32 $M+20:2, 17, @T2
    s_nop 1
    s_mov_b64 exec, $M+18:2
    v_lshrrev_b32 @RADDR+9, 17, @REC0+18
    ds_add_rtn_u32 @RANK+9, @RADDR+9, @T3
    s_mov_b64 exec, $M+20:2
    v_lshrrev_b32 @RADDR+11, 17, @REC0+22
    ds_add_rtn_u32 @RANK+11, @RADDR+11, @T3
    s_mov_b64 exec, -1
    s_waitcnt lgkmcnt(0)
    s_branch K2_L2AR
    K2_L2B:
    s_waitcnt lgkmcnt(0)
    s_cmp_eq_u64 vcc, 0
    s_cbranch_scc1 K2_L2B1
    s_mov_b32 $ATOM, 1
    s_cmp_eq_u32 $FIRST, 0
    s_cbranch_scc1 K2_L2B1
    v_lshlrev_b32 @T0, 4, @Tid
    ds_write_b128 @T0, @Z:4 offset:#(L_M)
    v_cmp_gt_u32 vcc, #((56*RS-8192)//16), @Tid
    s_nop 1
    s_and_b64 exec, vcc, vcc
    ds_write_b128 @T0, @Z:4 offset:#(L_M+8192)
    s_mov_b64 exec, -1
    K2_L2B1:
    s_cmp_eq_u64 $M+16:2, 0
    s_cbranch_scc1 K2_L2BR
    """)
    for q in range(8, 12):
        a("ds_read_b32 @RADDR+%d, @RADDR+%d offset:#(L_EXC)" % (q, q))
    a("s_waitcnt lgkmcnt(0)")
    for q in range(8, 12):
        a("v_add_lshl_u32 @RADDR+%d, @RADDR+%d, @RANK+%d, 3" % (q, q, q))
        a("ds_write_b64 @RADDR+%d, @REC0+%d:2 offset:#(L_REC)" % (q, 2 * q))
    a("""
    s_branch K2_L2BR
    K2_AGAIN:
    s_add_u32 $O, $O, $QUOTA
    s_mov_b32 $FIRST, 0
    s_cmp_eq_u32 $E, 0
    s_cbranch_scc1 K2_AGAIN2
    s_mov_b32 $SAFE, 1
    s_mov_b32 $O, 0
    s_mov_b32 $FIRST, 1
    K2_AGAIN2:
    s_nop 15
    s_waitcnt vmcnt(0) lgkmcnt(0)
    s_barrier
    """)
    if fused:
        a("v_and_b32 @L, 63, @Tid", T_ISSUE)
    a("""
    s_branch K2_ROUND
    K2_OVERFLOW:
    s_mov_b32 $QUOTA, 7
    s_branch K2_AGAIN2
    K2_REBASE:
    s_cmp_eq_u32 $REP, 0
    s_cselect_b32 $A, $P1, $WEND
    v_cmp_ge_u32 vcc, $A, @Incl
    s_nop 1
    s_bcnt1_i32_b64 $B, vcc
    s_add_u32 $D8, $B, 7
    v_readlane_b32 $WEND, @Incl, $D8
    s_lshl_b32 $D8, $B, 3
    s_cmp_eq_u32 $D8, $WB8
    s_cbranch_scc1 K2_RB2
    s_mov_b32 $WBO8, $WB8
    s_mov_b32 $WB8, $D8
    s_mov_b32 $FLUSH, 1
    s_mov_b32 $REB, 1
    s_mov_b32 $RE, $A
    s_mov_b32 $CONTO, $CONTC
    s_sub_u32 $D8, $B, 1
    v_readlane_b32 $CONTC, @Incl, $D8
    s_nop 1
    s_cmp_lt_u32 $CONTC, $A
    s_cselect_b32 $CONTC, 2, 0
    s_sub_u32 $B, $WBO8, $WB8
    v_add_u32 @Sb, $B, @Sb
    s_mov_b32 exec_lo, 0
    s_lshl_b32 $D8, $B, 1
    v_add_u32 @Xb, $D8, @Xb
    s_mul_i32 $D8, $B, -34
    v_add_u32 @B3a, $D8, @B3a
    s_mov_b32 exec_lo, -1
    K2_RB2:
    s_min_u32 $B, $E, $WEND
    s_sub_u32 $B, $B, $A
    s_sub_u32 $A, $A, $P1
    s_bfm_b64 $MASK:2, $B, $A
    s_cmp_gt_u32 $E, $WEND
    s_cselect_b32 $REP, 1, 0
    s_cselect_b32 $P2, $P1, $P2
    s_setpc_b64 $RET:2
    K2_B3LOAD:
    """)
    for t in range(4):
        for jj in range(2):
            a("ds_read_b64_tr_b16 @B3+%d:2, @B3a offset:%d" % (4 * t + 2 * jj, jj * 4 * RS + t * 64))
    a("s_mov_b32 $REB, 0", "s_setpc_b64 $RET:2")
    a("K2_LAST:")
    for par, D in ((0, D0), (1, D1)):
        a("K2_CLAMP%d:" % par, "s_nop 11")
        for i in range(16):
            a("v_min_f32 %s, #(f32(126.0)), %s" % (v(D + i), v(D + i)))
        a("s_setpc_b64 $RET:2")


WS_F2, WS_NONCE = WS_WF, WS_WF + 0x8000
T_ISSUE = """
    v_lshrrev_b32 @Tad, 2, @L
    s_lshl_b32 $A, s3, 5
    v_add_u32 @Tad, $A, @Tad
    v_mul_u32_u24 @Tad, #(TSTRIDE), @Tad
    s_lshr_b32 $A, s2, 2
    s_lshl_b32 $A, $A, 4
    s_add_u32 $A, $A, #(WS_T)
    v_add_u32 @Tad, $A, @Tad
    v_add_u32 @Tad+1, #(16*TSTRIDE), @Tad
    global_load_dwordx4 @Tg:4, @Tad, s[22:23] sc1
    global_load_dwordx4 @Tg+4:4, @Tad+1, s[22:23] sc1
"""


def pstamp(a, opt, name):
    names = opt.get("ls", "").split("+") if opt.get("ls") else []
    if name in names:
        k = 72 + 2 * names.index(name)
        a("s_memtime s[%d:%d]" % (k, k + 1))


def gen_fused(a, opt):
    ST = VR["ST"]
    ld = opt.get("k1_ld", "").replace("+", " ")
    hld = opt.get("k1_hld", "").replace("+", " ")
    a("""
    %s_kernel:
    s_cmp_ge_u32 s2, 256
    s_cbranch_scc1 K2_END
    s_load_dwordx16 s[4:19], s[0:1], 0
    s_load_dwordx2 s[22:23], s[0:1], 80
    s_load_dwordx2 s[20:21], s[0:1], 64
    """ % NAME)
    pstamp(a, opt, "p_entry")
    a("""
    v_mov_b32 @Tid, v0
    v_lshrrev_b32 v1, 6, v0
    s_mov_b32 $BK, s2
    v_readfirstlane_b32 s3, v1
    """)
    refstamp(a, opt, "k1", "$BK", "s[22:23]", VR["X"])
    a("""
    s_and_b32 $A, s2, 7
    s_lshl_b32 $A, $A, 5
    s_lshr_b32 s2, s2, 3
    s_add_u32 s2, s2, $A
    s_mul_i32 $E, s2, #(NB)
    v_and_b32 @L, 63, v0
    v_mov_b32 @Z, 0
    v_mov_b32 @Z+1, 0
    v_lshlrev_b32 v3, 2, v0
    ds_write_b32 v3, @Z offset:#(L_REC)
    v_cmp_gt_u32 vcc, 400, v0
    s_min_u32 $A, $BK, #(NCH-1)
    s_mul_i32 $A, $A, #(CH*4)
    v_lshl_add_u32 v4, v0, 4, $A
    v_lshrrev_b32 v5, 1, v4
    s_cmp_lt_u32 $BK, #(NCH)
    s_cselect_b64 $MASK:2, vcc, 0
    v_lshrrev_b32 v44, 4, @L
    v_and_b32 v45, 3, @L
    v_lshrrev_b32 v46, 2, @L
    v_xor_b32 @WA, v44, v45
    v_lshlrev_b32 @WA, 4, @WA
    v_lshl_add_u32 @WA, v46, 8, @WA
    s_lshr_b32 $B, s3, 1
    s_lshl_b32 $B, $B, 4
    s_add_u32 $B, $B, $E
    s_lshl_b32 $B, $B, 1
    s_and_b32 $D8, s3, 1
    s_add_u32 $B, $B, $D8
    s_lshl_b32 $B, $B, 7
    v_add_u32 v6, $B, @WA
    s_lshl_b32 $D8, s3, 11
    s_add_u32 m0, $D8, #(L_H)
    s_mov_b32 $H+2, #(N*256)
    s_mov_b32 $H+3, 0x20000
    v_mov_b32 v7, #(WS_NONCE)
    s_cmp_eq_u32 s3, 7
    s_waitcnt lgkmcnt(0)
    s_mov_b32 $H, s4
    s_mov_b32 $H+1, s5
    s_cbranch_scc1 F_X0
    """)
    pstamp(a, opt, "p_karg")
    hdma = """
    buffer_load_dwordx4 v6, $H:4, 0 offen %s lds
    s_add_u32 m0, $D8, #(L_H+1024-64)
    global_load_dwordx2 v[18:19], v7, s[22:23]
    buffer_load_dwordx4 v6, $H:4, 0 offen offset:64 %s lds
    """ % (hld, hld)
    wsetup = """
    v_lshlrev_b32 v3, 3, v0
    ds_write_b64 v3, @Z:2 offset:#(L_IMG)
    s_mov_b32 $T, s14
    s_mov_b32 $T+1, s15
    s_mov_b32 $T+2, #(258*256)
    s_mov_b32 $T+3, 0x20000
    v_lshlrev_b32 v47, 2, v44
    v_and_b32 v48, 15, @L
    v_xor_b32 v47, v47, v48
    v_lshlrev_b32 v47, 4, v47
    v_lshl_add_u32 v47, v44, 8, v47
    s_lshl_b32 $P1, s3, 12
    s_add_u32 $P2, $P1, 32768
    s_add_u32 m0, $P1, #(L_G)
    v_lshlrev_b32 v3, 4, @L
    """
    w2dma = ["buffer_load_dwordx4 v47, $T:4, $P2 offen offset:%d lds" % (i * 1024) for i in range(4)]
    w1dma = ["s_add_u32 m0, $P1, #(L_G+32768)", "v_and_b32 v50, 255, v0", "v_and_b32 v51, 127, v0"]
    w1dma += ["buffer_load_dwordx4 v47, $T:4, $P1 offen offset:%d lds" % (i * 1024) for i in range(4)]
    w1dma += ["v_lshlrev_b32 v50, 1, v50", "v_add_u32 v50, 65536, v50", "v_lshlrev_b32 v51, 1, v51",
              "global_load_ushort v52, v50, s[14:15]", "global_load_ushort v53, v51, s[16:17]"]

    def scan1():
        a("""
        ds_read_b128 v[36:39], v3 offset:#(L_REC)
        s_waitcnt lgkmcnt(0)
        v_add_u32 v40, v36, v37
        v_add3_u32 v40, v40, v38, v39
        v_mov_b32 v49, v40
        """)
        scan64(a, 49)
        a("""
        v_sub_u32 v40, v49, v40
        v_add_u32 v41, v40, v36
        v_add_u32 v42, v41, v37
        v_add_u32 v43, v42, v38
        """)
    a("""
    s_mov_b64 exec, $MASK:2
    global_load_dwordx4 v[8:11], v4, s[12:13] %s
    global_load_dwordx4 v[12:15], v4, s[10:11] %s
    global_load_dwordx2 v[16:17], v5, s[8:9] %s
    s_mov_b64 exec, -1
    """ % (ld, ld, ld))
    a(hdma, wsetup)
    a("""
    s_mov_b32 $A, -49
    s_mov_b32 $WB8, 0x01000100
    s_mov_b32 $WBO8, 0x03020302
    v_mov_b32 v2, 1
    s_mov_b64 exec, $MASK:2
    s_barrier
    s_waitcnt vmcnt(5)
    """)
    pstamp(a, opt, "p_dst")
    for k in range(4):
        a("v_mul_u32_u24 %s, 21400, %s" % (v(28 + k), v(8 + k)))
        a("v_lshrrev_b32 %s, 20, %s" % (v(28 + k), v(28 + k)))
        a("v_mad_i32_i24 %s, %s, $A, %s" % (v(8 + k), v(28 + k), v(8 + k)))
        a("v_lshlrev_b32 %s, 2, %s" % (v(28 + k), v(28 + k)))
        a("ds_add_rtn_u32 %s, %s, v2 offset:#(L_REC)" % (v(32 + k), v(28 + k)))
    a("s_mov_b64 exec, -1")
    W2E = opt.get("w2e", 2)
    a(*w2dma[:W2E])
    a("s_waitcnt lgkmcnt(0)", "s_barrier")
    pstamp(a, opt, "p_b2")
    scan1()
    a("""
    ds_write_b128 v3, v[40:43] offset:#(L_REC+1024)
    s_mov_b64 exec, $MASK:2
    """)
    for k in range(4):
        a("ds_read_b32 %s, %s offset:#(L_REC+1024)" % (v(28 + k), v(28 + k)))
    a("s_waitcnt vmcnt(%d)" % (3 + W2E))
    for k in range(4):
        a("v_lshl_or_b32 %s, %s, 19, %s" % (v(20 + 2 * k), v(8 + k), v(12 + k)))
        a("v_perm_b32 %s, %s, %s, %s" % (v(21 + 2 * k), v(16 + k // 2), v(16 + k // 2), "$WBO8" if k & 1 else "$WB8"))
    for k in range(4):
        a("s_waitcnt lgkmcnt(3)")
        a("v_add_lshl_u32 %s, %s, %s, 3" % (v(28 + k), v(28 + k), v(32 + k)))
        a("ds_write_b64 %s, %s offset:#(L_REC+2048)" % (v(28 + k), v(20 + 2 * k, 2)))
    a("s_mov_b64 exec, -1")
    a(*w2dma[W2E:])
    a("""
    v_lshlrev_b32 v3, 4, v0
    s_mul_i32 $A, $BK, #(CH*8)
    s_add_u32 $A, $A, #(WS_REC)
    v_add_u32 v4, $A, v3
    v_add_u32 v5, 6400, v4
    s_mov_b64 exec, $MASK:2
    s_waitcnt lgkmcnt(0)
    s_barrier
    ds_read_b128 v[12:15], v3 offset:#(L_REC+2048)
    ds_read_b128 v[8:11], v3 offset:#(L_REC+2048+6400)
    s_waitcnt lgkmcnt(1)
    global_store_dwordx4 v4, v[12:15], s[22:23] sc1
    s_waitcnt lgkmcnt(0)
    global_store_dwordx4 v5, v[8:11], s[22:23] sc1
    s_mov_b64 exec, -1
    F_J:
    """)
    pstamp(a, opt, "p_rec")
    a(*w1dma)
    a("""
    v_bfe_u32 v54, @L, 2, 2
    v_lshrrev_b32 @Hh, 5, @L
    v_bfe_u32 v55, @L, 4, 1
    s_and_b32 $B, s3, 3
    v_xor_b32 v56, $B, v54
    v_lshlrev_b32 v56, 6, v56
    v_lshl_add_u32 v56, v54, 8, v56
    v_lshl_add_u32 v56, @Hh, 11, v56
    v_and_b32 v57, 1, @L
    v_lshl_add_u32 v56, v57, 5, v56
    v_lshl_add_u32 v56, v55, 4, v56
    v_bfe_u32 v57, @L, 1, 1
    v_lshl_add_u32 v56, v57, 3, v56
    v_add_u32 v56, #(L_G), v56
    v_xor_b32 v58, v54, @Hh
    v_lshlrev_b32 v58, 4, v58
    v_lshl_add_u32 @Hop, v48, 6, v58
    v_lshl_add_u32 @Hop, v55, 12, @Hop
    s_lshr_b32 $REP, s3, 2
    s_lshl_b32 $A, $REP, 13
    s_add_u32 $A, $A, #(L_H)
    v_add_u32 @Hop, $A, @Hop
    v_xor_b32 v59, 32, @Hop
    v_and_b32 v60, 31, @L
    s_mul_i32 $WBO8, s3, #(SW)
    s_add_u32 $A, $WBO8, #(L_S)
    v_bfe_u32 v57, @L, 1, 2
    v_lshlrev_b32 v61, 1, @Hh
    v_xor_b32 v61, v61, v57
    v_lshlrev_b32 v61, 4, v61
    v_lshl_add_u32 v61, v60, 6, v61
    v_add_u32 v61, $A, v61
    v_xor_b32 v62, 16, v61
    v_bfe_u32 v57, @L, 3, 2
    v_xor_b32 v63, v45, v57
    v_lshlrev_b32 v63, 4, v63
    v_lshl_add_u32 v63, v46, 6, v63
    v_add_u32 v63, $A, v63
    v_lshlrev_b32 @Out, 8, v46
    v_lshl_add_u32 @Out, v45, 4, @Out
    s_lshl_b32 $A, $REP, 5
    s_add_u32 $A, $A, $E
    s_lshl_b32 $A, $A, 2
    s_add_u32 $A, $A, $B
    s_lshl_b32 $A, $A, 6
    v_add_u32 @Out, $A, @Out
    v_add_u32 @T0, 4096, @Out
    s_mov_b32 $Q, s22
    s_mov_b32 $Q+1, s23
    s_add_u32 $Q+2, $E, #(NB)
    s_min_u32 $Q+2, $Q+2, #(N)
    s_lshl_b32 $Q+2, $Q+2, 8
    s_mov_b32 $Q+3, 0x20000
    s_mov_b32 $L2E, #(f32(-LOG2E))
    s_mov_b32 $L2E+1, #(f32(-LOG2E))
    s_waitcnt vmcnt(0)
    v_readfirstlane_b32 $TAG, v18
    v_readfirstlane_b32 $TAG+1, v19
    s_barrier
    """)
    pstamp(a, opt, "p_b3b")
    HBq, WAq, WAp, DP = 64, 128, 0, 112

    def wrd(dst, ks, off):
        a("ds_read_b64_tr_b16 %s, v56 offset:%d" % (v(dst + 4 * ks, 2), off + ks * 4096))
        a("ds_read_b64_tr_b16 %s, v56 offset:%d" % (v(dst + 4 * ks + 2, 2), off + ks * 4096 + 1024))

    def rd(ks):
        wrd(WAq, ks, 0)
        a("ds_read_b128 %s, %s offset:%d" % (v(HBq + 4 * ks, 4), "v59" if ks & 1 else "@Hop", (ks >> 1) * 1024))
    for ks in range(4):
        rd(ks)
    a("""
    s_add_u32 $TAG, $TAG, 1
    s_addc_u32 $TAG+1, $TAG+1, 0
    s_cmp_lg_u32 s3, 7
    s_cbranch_scc1 F_NOT
    v_mov_b32 v42, $TAG
    v_mov_b32 v43, $TAG+1
    global_store_dwordx4 v39, v[40:43], s[22:23] sc1
    F_NOT:
    """)
    for ks in range(8):
        if ks + 4 < 8:
            rd(ks + 4)
        a("s_waitcnt lgkmcnt(%d)" % (3 * min(4, 7 - ks)))
        a(mfma(EE, WAq + 4 * ks, HBq + 4 * ks, None if ks == 0 else EE))
    for ks in range(5):
        wrd(WAp, ks, 32768)
    a("s_nop 1")
    for i in range(8):
        a("v_pk_mul_f32 @EE+%d:2, @EE+%d:2, $L2E:2" % (2 * i, 2 * i))
    for i in range(8):
        a("v_cvt_pk_bf16_f32 @EE+%d, @EE+%d, @EE+%d" % (i, 2 * i, 2 * i + 1))
    a("""
    ds_write_b128 v61, @EE:4
    ds_write_b128 v62, @EE+4:4
    ds_read_b128 @EE+8:4, v63
    ds_read_b128 @EE+12:4, v63 offset:1024
    """)
    if opt.get("tearly", 0):
        a(T_ISSUE)
    a("""
    s_waitcnt lgkmcnt(1)
    buffer_store_dwordx4 @EE+8:4, @Out, $Q:4, 0 offen sc1
    s_waitcnt lgkmcnt(0)
    buffer_store_dwordx4 @EE+12:4, @T0, $Q:4, 0 offen sc1
    """)
    pstamp(a, opt, "p_q")
    refstamp(a, opt, "gemmend", "$BK", "s[22:23]", VR["X"])
    for ks in range(5, 8):
        wrd(WAp, ks, 32768)
    img = """v_lshlrev_b32 v52, 16, v52
    v_mul_f32 v52, $L2E, v52
    v_cvt_pk_bf16_f32 v36, v52, v52
    v_and_b32 v37, 0xffff0000, v36
    v_sub_f32 v52, v52, v37
    v_cvt_pk_bf16_f32 v37, v52, v52
    v_lshlrev_b32 v53, 16, v53
    v_mul_f32 v53, #(f32(-LN2*2.0**-KEXP)), v53
    v_bfe_u32 v38, @Tid, 7, 1
    v_mul_u32_u24 v38, #(2*RS), v38
    v_add_u32 v38, v38, v51
    v_lshlrev_b32 @WXa, 4, v60
    v_bfe_u32 v50, @Tid, 5, 2
    v_lshl_add_u32 v50, v50, 2, @WXa
    v_and_b32 v34, 7, @L
    v_mul_u32_u24 v34, 18, v34
    v_mov_b32 v35, 0x3f80
    s_lshl_b32 $A, $REP, 5
    v_add_u32 @Mr, $A, v60
    v_mul_u32_u24 @Mr, #(RS), @Mr
    v_lshl_add_u32 v33, @Hh, 5, @Mr
    s_lshl_b32 $A, $B, 6
    v_add_u32 v33, $A, v33
    v_lshl_add_u32 @Mr, @Hh, 4, @Mr""".split("\n")
    for ks in range(8):
        if ks == 5:
            a("s_waitcnt lgkmcnt(0)")
        a(mfma(DP, WAp + 4 * ks, HBq + 4 * ks, None if ks == 0 else DP))
        a(*img[3 * ks:3 * ks + 3])
    if not opt.get("tearly", 0):
        a(T_ISSUE)
    a("""
    ds_write_b16 v38, v36 offset:#(L_WZ+4*RS)
    ds_write_b16 v38, v37 offset:#(L_WZ+5*RS)
    ds_write_b32 v50, v53 offset:#(L_WX)
    ds_write_b16 v34, v35 offset:#(L_LUTC)
    s_mov_b32 $OUT, s20
    s_mov_b32 $OUT+1, s21
    s_mov_b32 $OUT+2, $Q+2
    s_mov_b32 $OUT+3, 0x20000
    s_mov_b32 $Q+2, #(WS_DBG)
    """)
    for i in range(8):
        a("v_pk_mul_f32 %s, %s, $L2E:2" % (v(DP + 2 * i, 2), v(DP + 2 * i, 2)))
    for i in range(8):
        a("v_cvt_pk_bf16_f32 %s, %s, %s" % (v(DP + i), v(DP + 2 * i), v(DP + 2 * i + 1)))
    a("""
    ds_write_b128 v33, %s offset:#(L_P)
    ds_write_b128 v33, %s offset:#(L_P+16)
    """ % (v(DP, 4), v(DP + 4, 4)))
    a("""
    s_lshl_b32 $GW, s3, 13
    s_add_u32 $A, $GW, #(NQ*256)
    s_add_u32 $GW, $GW, #(L_G)
    v_lshl_add_u32 @WA, v45, 28, @WA
    v_add_u32 @WA, $A, @WA
    v_add_u32 @WA+1, 4096, @WA
    v_lshlrev_b32 v32, 3, v45
    v_lshl_add_u32 v32, v55, 5, v32
    v_lshl_add_u32 @A2a, @Hh, 2, v54
    v_mul_u32_u24 @A2a, 72, @A2a
    s_add_u32 $A, $WBO8, #(L_S)
    v_add3_u32 @A2a, @A2a, v32, $A
    v_lshl_add_u32 @Cq, @Hh, 8, v32
    v_bfe_u32 v57, @L, 3, 1
    v_lshl_add_u32 @Cq, v57, 6, @Cq
    v_add_u32 @Cq, $GW, @Cq
    s_mov_b32 exec_lo, 0x0f0f0f0f
    s_mov_b32 exec_hi, 0x0f0f0f0f
    v_mov_b32 @Cq, 0x40000
    s_mov_b64 exec, -1
    v_lshl_add_u32 @fU, v54, 1, @Hh
    v_lshl_add_u32 @fU, @fU, 2, v45
    s_lshl_b32 $A, s3, 10
    v_lshl_add_u32 @fU, @fU, 2, $A
    v_lshl_add_u32 @Wa, v60, 6, v58
    s_lshl_b32 $A, $B, 13
    s_add_u32 $A, $A, #(L_G)
    v_add_u32 @Wa, $A, @Wa
    v_mul_u32_u24 @stW, 80, v60
    v_lshl_add_u32 @stW, @Hh, 5, @stW
    v_add_u32 @stW, $GW, @stW
    v_mul_u32_u24 @stR, 80, v46
    v_lshl_add_u32 @stR, v45, 4, @stR
    v_add_u32 @stR, $GW, @stR
    v_and_b32 @Us, 255, @Tid
    v_lshlrev_b32 @Us, 2, @Us
    v_add_u32 @Us, #(L_POSD), @Us
    s_add_u32 $POS, s22, #(WS_POS)
    s_addc_u32 $POS+1, s23, 0
    s_or_b32 $POS+1, $POS+1, 0x100000
    s_mov_b32 $POS+2, #(N)
    s_mov_b32 $POS+3, 0x20000
    s_mov_b32 $K, #(f32(2.0**-KEXP))
    s_mov_b32 $K+1, #(f32(2.0**-KEXP))
    s_mov_b32 $O, 0
    s_mov_b32 $QUOTA, 24
    s_mov_b32 $SAFE, 0
    s_mov_b32 $FIRST, 1
    """)
    if opt.get("ls"):
        a("s_waitcnt lgkmcnt(0)")
        for k, nm in enumerate(opt["ls"].split("+")):
            if nm.startswith("p_"):
                a("s_mov_b32 s%d, s%d" % (6 + 2 * k, 72 + 2 * k))
    a("""
    K2_ROUND:
    s_setprio 3
    v_mov_b32 @Z, 0
    v_mov_b32 @Z+1, 0
    v_mov_b32 @Z+2, 0
    v_mov_b32 @Z+3, 0
    v_and_b32 @T4, 31, @L
    v_lshrrev_b32 @Hh, 5, @L
    v_lshrrev_b32 @T2, 2, @L
    v_and_b32 @T1, 3, @L
    """)
    a(mfma(ACC, VR["Z"], VR["Z"], None))
    a("""
    s_mul_i32 $WBO8, s3, #(SW)
    v_lshlrev_b32 @T0, 3, @L
    ds_write_b64 @T0, @Z:2
    v_lshl_add_u32 @T0, @L, 4, $WBO8
    v_lshl_add_u32 @T3, @L, 2, $WBO8
    ds_write_b128 @T0, @Z:4 offset:#(L_S)
    ds_write_b128 @T0, @Z:4 offset:#(L_S+1024)
    ds_write_b32 @T3, @Z offset:#(L_S+2048)
    """)
    a(mfma(ACC + 16, VR["Z"], VR["Z"], None))
    a("""
    v_lshlrev_b32 @T0, 4, @Tid
    s_cmp_eq_u32 $FIRST, 0
    s_cbranch_scc1 K2_NOZU
    ds_write_b128 @T0, @Z:4 offset:#(L_U)
    K2_NOZU:
    v_mul_u32_u24 @Sb, 72, @T4
    s_add_u32 $A, $WBO8, #(L_S)
    v_add_u32 @Sb, $A, @Sb
    v_and_b32 @T0, 3, @T2
    v_mul_u32_u24 @B3a, #(RS), @T0
    v_lshl_add_u32 @B3a, @T1, 3, @B3a
    v_bfe_u32 @T3, @L, 4, 1
    v_lshl_add_u32 @B3a, @T3, 5, @B3a
    v_mul_u32_u24 @X, #(L_P-L_WZ), @Hh
    v_add_u32 @B3a, @X, @B3a
    v_add_u32 @B3a, #(L_WZ), @B3a
    """)
    a(mfma(ACC + 32, VR["Z"], VR["Z"], None))
    a("""
    v_mul_u32_u24 @Xb, #(L_POSD-L_LUTC), @Hh
    v_sub_u32 @Xb, #(L_POSD), @Xb
    v_lshlrev_b32 @Idx, 3, @T2
    v_add_u32 @Idx, #(L_REC), @Idx
    v_lshlrev_b32 @Rec, 3, @T4
    v_add_u32 @Rec, #(L_REC), @Rec
    v_mul_u32_u24 @fM, #(RS), @Hh
    v_lshl_add_u32 @fM, @T4, 2, @fM
    v_lshlrev_b32 @WXa, 4, @T4
    v_xor_b32 @Hop, @T0, @Hh
    v_lshlrev_b32 @Hop, 4, @Hop
    v_and_b32 @X, 15, @L
    v_lshl_add_u32 @Hop, @X, 6, @Hop
    v_lshl_add_u32 @Hop, @T3, 12, @Hop
    s_lshr_b32 $A, s3, 2
    s_lshl_b32 $A, $A, 13
    s_add_u32 $A, $A, #(L_H)
    v_add_u32 @Hop, $A, @Hop
    """)
    a(mfma(ACC + 48, VR["Z"], VR["Z"], None))
    a("""
    v_mul_u32_u24 @HRa, 48, @Hh
    v_xor_b32 @HRa, @HRa, @Hop
    s_and_b32 $A, s3, 3
    s_lshl_b32 $A, $A, 10
    v_add_u32 @HRa, $A, @HRa
    v_lshlrev_b32 @L4, 2, @L
    s_lshl_b32 $A, s3, 5
    v_add_u32 @Ch, $A, @T2
    v_add_u32 @F2a, $A, @T4
    v_lshlrev_b32 @F2a, 5, @F2a
    v_add_u32 @F2a, #(WS_F2), @F2a
    v_mul_u32_u24 @Ch, #(CH), @Ch
    v_lshlrev_b32 @T1, 1, @T1
    v_add_u32 @T1, $O, @T1
    v_add_u32 @Ch, @Ch, @T1
    v_add_u32 @Ch, #(WS_REC//8), @Ch
    v_add_u32 @T3, #(16*CH), @Ch
    """)
    a(mfma(D1, VR["Z"], VR["Z"], None))
    for i in range(8):
        a("v_mov_b32 @RANK+%d, 0x8000" % i)
        a("v_mov_b32 @RADDR+%d, 0" % i)
        a("v_mov_b32 @A2+%d, 0" % i)
    a("""
    s_add_u32 $B, $O, $QUOTA
    s_xor_b32 $ATOM, $FIRST, 1
    s_and_b32 $A, s2, 3
    s_mul_i32 $A, $A, 11
    s_mov_b32 $D8, 0
    s_mov_b32 $WBO8, 0
    """)
    lstamp(a, opt, "preT")
    a("""
    K2_TP:
    s_waitcnt vmcnt(0)
    v_cmp_ne_u64 vcc, $TAG:2, @Tg+2:2
    v_cmp_ne_u64 $MASK:2, $TAG:2, @Tg+6:2
    s_or_b64 $M:2, vcc, $MASK:2
    s_cbranch_scc1 K2_TRETRY
    K2_TOK:
    v_lshrrev_b64 @Tg:2, $A, @Tg:2
    v_lshrrev_b64 @Tg+4:2, $A, @Tg+4:2
    v_and_b32 @Ra, 0x7ff, @Tg
    v_and_b32 @Ra+1, 0x7ff, @Tg+4
    v_bfe_u32 @Ta, @Tg, 11, 11
    v_bfe_u32 @Tb, @Tg+4, 11, 11
    v_sub_u32 @Ta, @Ta, @Ra
    v_sub_u32 @Tb, @Tb, @Ra+1
    v_min_u32 @T0, $B, @Ta
    v_min_u32 @T2, $B, @Tb
    v_sub_u32 @T0, @T0, @T1
    v_sub_u32 @T2, @T2, @T1
    v_add_lshl_u32 @Ra, @Ra, @Ch, 3
    v_add_lshl_u32 @Ra+1, @Ra+1, @T3, 3
    """)
    lstamp(a, opt, "T")
    slots = [(L, i) for L in range(3) for i in range(2)]
    rem = ("@T0", "@T2")
    for q, (L, i) in enumerate(slots[:4]):
        a("v_cmp_lt_i32 $M+%d:2, %d, %s" % (4 * q, 8 * L, rem[i]))
    for q, (L, i) in enumerate(slots[:4]):
        a("s_mov_b64 exec, $M+%d:2" % (4 * q))
        a("global_load_dwordx4 @REC0+%d:4, @Ra+%d, s[22:23] offset:%d %s" % (4 * q, i, 64 * L, opt.get("r1f", "sc1")))
    a("""
    s_mov_b64 exec, -1
    v_max_i32 @S, @T0, @T2
    v_cmp_lt_i32 $M+16:2, 16, @S
    v_max_u32 @Ch, @Ta, @Tb
    v_cmp_lt_u32 vcc, $B, @Ch
    v_mov_b32 @T3, 1
    s_cmp_lg_u64 $M+16:2, 0
    s_cbranch_scc1 K2_L20
    K2_L20R:
    """)
    lstamp(a, opt, "r1iss")
    a("""
    s_waitcnt lgkmcnt(0)
    s_barrier
    s_cmp_lg_u32 s3, 7
    s_cbranch_scc1 K2_NOF2
    s_lshl_b32 $A, $BK, 5
    s_add_u32 $A, $A, #(WS_F2)
    v_mov_b32 @X, $A
    v_mov_b32 @Tg, $TAG
    v_mov_b32 @Tg+1, $TAG+1
    s_mov_b32 $A, #(WS_NONCE)
    v_writelane_b32 @X, $A, 1
    s_cmp_eq_u32 $BK, 0
    s_cselect_b64 exec, 3, 1
    global_store_dwordx2 @X, @Tg:2, s[22:23] sc1
    s_mov_b64 exec, -1
    s_waitcnt vmcnt(1)
    K2_NOF2:
    """)
    lstamp(a, opt, "barA")
    for q, (L, i) in enumerate(slots[:4]):
        a("v_cmp_lt_i32 $M+%d:2, %d, %s" % (4 * q + 2, 8 * L + 1, rem[i]))
    a("s_cmp_eq_u32 s3, 7")
    for q in range(8):
        if q % 2 == 0:
            if q == 6:
                a("s_cbranch_scc1 K2_NW6", "s_waitcnt vmcnt(0)", "K2_NW6:")
            else:
                a("s_waitcnt vmcnt(%d)" % (3 - q // 2))
        if q == 0:
            lstamp(a, opt, "R1b")
        a("s_mov_b64 exec, $M+%d:2" % (2 * q))
        a("v_lshrrev_b32 @RADDR+%d, 17, @REC0+%d" % (q, 2 * q))
        a("ds_add_rtn_u32 @RANK+%d, @RADDR+%d, @T3" % (q, q))
    a("""
    s_mov_b64 exec, -1
    s_or_b64 $MASK:2, vcc, $M+16:2
    s_cbranch_scc1 K2_L2A
    K2_L2AR:
    """)
    lstamp(a, opt, "hist")
    a("""
    s_waitcnt lgkmcnt(0)
    s_barrier
    """)
    lstamp(a, opt, "barB")
    a("""
    ds_read_b32 @T1, @L4
    s_mov_b32 exec_hi, 0
    global_load_dwordx2 @Tg+2:2, @F2a, s[22:23] sc1
    s_mov_b32 exec_hi, -1
    s_waitcnt lgkmcnt(0)
    v_mov_b32 @Incl, @T1
    """)
    lstamp(a, opt, "cnt")
    scan64(a, VR["Incl"])
    lstamp(a, opt, "scan")
    a("""
    v_sub_u32 @Ch, @Incl, @T1
    v_readlane_b32 $TOTAL, @Incl, 63
    ds_write_b32 @L4, @Ch offset:#(L_EXC)
    """)
    for q in range(8):
        a("ds_read_b32 @RADDR+%d, @RADDR+%d offset:#(L_EXC)" % (q, q))
    a("""
    s_cmp_gt_u32 $TOTAL, #(CAP)
    s_cbranch_scc1 K2_OVERFLOW
    s_add_u32 $A, $TOTAL, 15
    s_bfe_u32 $B, $A, 0x30004
    s_lshr_b32 $A, $A, 7
    s_mul_i32 $P1, s3, $A
    s_min_u32 $D8, s3, $B
    s_add_u32 $P1, $P1, $D8
    s_cmp_lt_u32 s3, $B
    s_addc_u32 $END, $P1, $A
    s_lshl_b32 $B, $P1, 7
    s_lshl_b32 $A, $A, 4
    """)
    for q in range(8):
        a("s_waitcnt lgkmcnt(7)")
        a("v_add_lshl_u32 @RADDR+%d, @RADDR+%d, @RANK+%d, 3" % (q, q, q))
        a("ds_write_b64 @RADDR+%d, @REC0+%d:2 offset:#(L_REC)" % (q, 2 * q))
    lstamp(a, opt, "scat")
    a("""
    v_add_lshl_u32 @T0, @L, $TOTAL, 3
    ds_write_b64 @T0, @Z:2 offset:#(L_REC)
    v_subrev_u32 @T1, 1, @T1
    v_cmp_le_u32 vcc, $A, @T1
    v_add_u32 @Idx, $B, @Idx
    v_add_u32 @Rec, $B, @Rec
    s_cmp_lt_u32 $P1, $END
    s_cselect_b32 $SEL, #(SELQ-SELW), 0
    s_add_u32 $SEL, $SEL, #(SELW)
    s_and_b32 vcc_hi, vcc_hi, 0x1ffff
    s_or_b64 $MASK:2, vcc, $M+16:2
    s_cbranch_scc1 K2_L2B
    K2_L2BR:
    s_mov_b32 $D8, 0
    K2_FP:
    s_waitcnt vmcnt(0)
    v_cmp_ne_u64 vcc, $TAG:2, @Tg+2:2
    s_cmp_lg_u32 vcc_lo, 0
    s_cbranch_scc1 K2_FRETRY
    K2_FOK:
    """)
    lstamp(a, opt, "preC")
    a("""
    s_waitcnt lgkmcnt(0)
    s_barrier
    """)
    lstamp(a, opt, "barC")
    refstamp(a, opt, "barC", "$BK", "s[22:23]", VR["X"])
    STUBS.append("""K2_TRETRY:
    s_add_u32 $D8, $D8, 1
    s_cmp_gt_u32 $D8, 0x20000
    s_cbranch_scc1 K2_TGIVE
    s_sleep %d
    s_mov_b64 exec, vcc
    global_load_dwordx4 @Tg:4, @Tad, s[22:23] sc1
    s_mov_b64 exec, $MASK:2
    global_load_dwordx4 @Tg+4:4, @Tad+1, s[22:23] sc1
    s_mov_b64 exec, -1
    s_branch K2_TP
    K2_TGIVE:
    v_mov_b32 @Tg, 0
    v_mov_b32 @Tg+1, 0
    v_mov_b32 @Tg+4, 0
    v_mov_b32 @Tg+5, 0
    s_branch K2_TOK
    K2_FRETRY:
    s_add_u32 $D8, $D8, 1
    s_cmp_gt_u32 $D8, 0x20000
    s_cbranch_scc1 K2_FOK
    s_sleep %d
    s_mov_b32 exec_lo, vcc_lo
    s_mov_b32 exec_hi, 0
    global_load_dwordx2 @Tg+2:2, @F2a, s[22:23] sc1
    s_mov_b64 exec, -1
    s_branch K2_FP""" % (opt.get("slp", 2), opt.get("slp", 2)))
    x = Asm()
    x("""
    F_X0:
    v_add_u32 v20, $E, @L
    v_cmp_gt_u32 vcc, #(N), v20
    s_lshr_b32 $A, $BK, 3
    s_lshl_b32 $A, $A, 11
    v_lshl_add_u32 v21, @L, 7, $A
    s_mov_b64 exec, 0xffff
    global_load_dword v22, v21, s[14:15]
    s_and_b32 $M+22, vcc_lo, -1
    s_and_b32 $M+23, vcc_hi, 0x1ffff
    s_mov_b64 exec, $M+22:2
    v_mul_u32_u24 v21, 6, v20
    global_load_ushort v8, v21, s[6:7]
    global_load_ushort v9, v21, s[6:7] offset:2
    global_load_ushort v10, v21, s[6:7] offset:4
    s_mov_b64 exec, -1
    """)
    x(hdma, wsetup)
    x("""
    s_barrier
    s_cmp_ge_u32 $BK, 64
    s_cbranch_scc1 F_X2
    s_bfe_u32 $A, $BK, 0x20003
    s_lshl_b32 $A, $A, 5
    s_and_b32 $B, $BK, 1
    s_lshl_b32 $B, $B, 4
    s_add_u32 $A, $A, $B
    s_bfe_u32 $B, $BK, 0x20001
    s_lshl_b32 $B, $B, 2
    s_add_u32 $A, $A, $B
    v_add_lshl_u32 v5, v45, $A, 1
    s_cmp_ge_u32 $BK, 32
    s_cbranch_scc1 F_X1
    v_lshl_add_u32 v5, v46, 11, v5
    """)
    for j in range(8):
        x("global_load_ushort %s, v5, s[18:19] offset:%d" % (v(24 + j), j * 256))
    x("""
    s_branch F_X2
    F_X1:
    v_and_b32 v6, 7, v46
    v_lshl_add_u32 v5, v6, 10, v5
    v_lshrrev_b32 v6, 3, v46
    v_lshl_add_u32 v5, v6, 14, v5
    v_add_u32 v5, 32768, v5
    v_add_u32 v6, 8192, v5
    """)
    for j in range(8):
        x("global_load_ushort %s, %s, s[18:19] offset:%d" % (v(24 + j), v(5 + (j & 1)), (j >> 1) * 256))
    x("F_X2:")
    x(*w2dma)
    x("s_waitcnt lgkmcnt(0)", "s_barrier")
    a_save = a.l
    a.l = x.l
    scan1()
    a.l = a_save
    x("""
    v_lshl_or_b32 v40, v41, 11, v40
    v_lshl_or_b32 v40, v42, 22, v40
    v_lshrrev_b32 v41, 10, v42
    v_lshl_or_b32 v41, v43, 1, v41
    v_lshl_or_b32 v41, v49, 12, v41
    s_mul_i32 $A, $BK, #(TSTRIDE)
    s_add_u32 $A, $A, #(WS_T)
    v_add_u32 v39, $A, v3
    s_barrier
    s_waitcnt vmcnt(4)
    v_lshlrev_b32 v8, 16, v8
    v_lshlrev_b32 v9, 16, v9
    v_lshlrev_b32 v10, 16, v10
    v_mov_b32 v11, 0
    v_lshlrev_b32 v20, 4, v20
    v_add_u32 v20, #(WS_POS), v20
    s_mov_b64 exec, $M+22:2
    global_store_dwordx4 v20, v[8:11], s[22:23] sc1
    ds_write_b128 v3, v[8:11] offset:#(L_POSD)
    s_mov_b64 exec, -1
    s_cmp_ge_u32 $BK, 64
    s_cbranch_scc1 F_J
    v_lshl_or_b32 v24, v25, 16, v24
    v_lshl_or_b32 v25, v27, 16, v26
    v_lshl_or_b32 v26, v29, 16, v28
    v_lshl_or_b32 v27, v31, 16, v30
    v_lshlrev_b32 v7, 4, v46
    v_lshl_add_u32 v7, v45, 8, v7
    s_lshl_b32 $A, $BK, 10
    s_add_u32 $A, $A, #(WS_Q+NQ*256)
    v_add_u32 v7, $A, v7
    global_store_dwordx4 v7, v[24:27], s[22:23] sc1
    s_branch F_J
    """)
    k2_tail(a, opt, True)
    a.l += x.l


def kd(name, vgpr, sgpr):
    return """.p2align 6
.amdhsa_kernel %s
  .amdhsa_next_free_vgpr %d
  .amdhsa_next_free_sgpr %d
  .amdhsa_accum_offset %d
  .amdhsa_group_segment_fixed_size 0
  .amdhsa_kernarg_size 88
  .amdhsa_user_sgpr_count 2
  .amdhsa_user_sgpr_kernarg_segment_ptr 1
  .amdhsa_system_sgpr_workgroup_id_x 1
  .amdhsa_float_denorm_mode_32 3
.end_amdhsa_kernel
""" % (name, vgpr, sgpr, (vgpr + 3) // 4 * 4)


def generate(opt):
    ref = open("cdna_kernels/%s.s.ref" % NAME).read().split("\n")
    head = []
    for ln in ref:
        if ln.startswith("; Override launch") or "@launch" in ln or ln.startswith("; grid=ceil"):
            continue
        if not ln.startswith(";"):
            break
        head.append(ln)
    out = "\n".join(head) + "\n"
    l1 = "; @launch kernel=prep_kernel grid=(%d,1,1) block=(512,1,1) lds=%d\n" % (K1_GRID, K1_LDS)
    l2 = "; @launch kernel=main_kernel grid=(256,1,1) block=(512,1,1) lds=%d\n" % K2_LDS
    l0 = "; @launch kernel=null_kernel grid=(256,1,1) block=(64,1,1) lds=0\n"
    if opt.get("fused", 1):
        kn = NAME + "_kernel"
        if opt.get("seq"):
            out += "; @launch kernel=%s grid=(256,1,1) block=(512,1,1) lds=%d\n" % (kn, K2_LDS)
            out += "; @launch kernel=diag_kernel grid=(1,1,1) block=(64,1,1) lds=0\n"
        else:
            out += "; @launch grid=(256,1,1) block=(512,1,1) lds=%d\n" % K2_LDS
        out += '.amdgcn_target "amdgcn-amd-amdhsa--gfx950"\n.text\n'
        ks = [(kn, gen_fused)] + ([("diag_kernel", gen_diag)] if opt.get("seq") else [])
        for name, g in ks:
            a = Asm()
            g(a, opt)
            out += ".globl %s\n.p2align 8\n.type %s,@function\n" % (name, name) + a.text()
        out += '.section .rodata,"a"\n' + kd(kn, 256, 102)
        if opt.get("seq"):
            out += kd("diag_kernel", 8, 16)
        return out
    for c in str(opt.get("seq", "12")):
        out += {"0": l0, "1": l1, "2": l2, "3": "; @launch kernel=diag_kernel grid=(1,1,1) block=(64,1,1) lds=0\n"}[c]
    out += '.amdgcn_target "amdgcn-amd-amdhsa--gfx950"\n.text\n'
    kernels = [("prep_kernel", gen_k1), ("main_kernel", gen_k2)]
    if "0" in str(opt.get("seq", "12")):
        kernels.append(("null_kernel", lambda a, o: a("null_kernel:", "s_endpgm")))
    if "3" in str(opt.get("seq", "12")):
        kernels.append(("diag_kernel", gen_diag))
    for name, g in kernels:
        a = Asm()
        g(a, opt)
        out += ".globl %s\n.p2align 8\n.type %s,@function\n" % (name, name) + a.text()
    out += '.section .rodata,"a"\n'
    out += kd("prep_kernel", 104 if opt.get("stamps") else 96, 102 if opt.get("stamps") or opt.get("ref") else 40)
    out += kd("main_kernel", 256, 102)
    if "0" in str(opt.get("seq", "12")):
        out += kd("null_kernel", 8, 8)
    if "3" in str(opt.get("seq", "12")):
        out += kd("diag_kernel", 8, 16)
    return out


if __name__ == "__main__":
    opt = {}
    path = "cdna_kernels/%s.s" % NAME
    for arg in sys.argv[1:]:
        if "=" in arg:
            k, val = arg.split("=", 1)
            if k != "seq":
                try:
                    val = int(val)
                except ValueError:
                    pass
            opt[k] = val
        else:
            path = arg
    open(path, "w").write(generate(opt))
    print("wrote", path, "K2_LDS", K2_LDS, "L_G", L_G, "L_H", L_H, "L_REC", L_REC, "L_S", L_S)
```

```python
import sys, struct, re

NAME = "gather_scatter__cheap_equivariant_egnn__graph"
N, E, NB = 12500, 400000, 49
NCH, CH = 250, 1600
NQ = 12544
WS_Q, WS_REC, WS_T, WS_POS, WS_WF, WS_DBG = 0, 0x400000, 0x800000, 0x900000, 0xA00000, 0xC00000
TSTRIDE = 1152
LOG2E = 1.4426950408889634
LN2 = 0.6931471805599453
KEXP = 30


def f32(x):
    return struct.unpack("<I", struct.pack("<f", x))[0]


def v(a, n=1):
    return "v%d" % a if n == 1 else "v[%d:%d]" % (a, a + n - 1)


def s(a, n=1):
    return "s%d" % a if n == 1 else "s[%d:%d]" % (a, a + n - 1)


RS = 272
L_CNT, L_FLAG, L_EXC = 0, 256, 512
L_IMG = 768
L_LUTC = L_IMG + 768
L_WZ = L_LUTC + 128
L_WX = L_WZ + 8 * RS
L_P = L_IMG + 4096
L_POSD = L_P + 64 * RS
L_U = L_POSD + 1024
L_M = L_U + 8192
CAP = 1792
L_REC = L_M + 56 * RS
L_S = L_REC + (CAP + 64) * 8
SW = 32 * 72
L_H = (L_S + 8 * SW + 1023) // 1024 * 1024
L_G = L_H + 16384
K2_LDS = L_G + 65536
K1_LDS = 49152 + 8 * 2560
WS_IMG = WS_WF + 0x10000

VR = dict(ACC=0, D0=64, D1=80, EE=96, TT=112, PP=120, CQ=128, B3=144, A3=160, A2=164,
          W1=172, L=188, Ch=189, Ta=190, Tb=191, Pf=192, Hb1=193, Ra=194, Z=196, Tg=172, Tad=180, L4=182, F2a=183, Fg=184, Pfa=186,
          fM=204, Hh=205, Hop=206, HRa=207, Hb=208, Pw=209, WXa=210,
          CONT=220, Sb=224, A2a=225, Cq=226, B3a=227, WA=228, Xb=230, Idx=231, Rec=232, fU=233, Mr=234, Wa=235,
          stW=236, stR=237, Out=238, Us=239, DA=240, GP=242, ST=245, X=246, S=247, Nn=248, Incl=249, Tid=250,
          T0=251, T1=252, T2=253, T3=254, T4=255,
          REC0=112, RADDR=136, RANK=148, HB=64,
          MB=0, HU=32, WH2=128, WH1=172, H1=204, G2=96, HR=160, WX=120)
TABREG = [208, 224, 228, 232, 236, 204]
SR = dict(Q=24, POS=28, T=32, H=36, OUT=40, K=44, L2E=46, SEL=48,
          O=49, QUOTA=50, SAFE=51, FIRST=52, TOTAL=53, END=54, P1=55, P2=56, WB8=57, WBO8=58, WEND=59,
          MASK=60, FLUSH=62, REB=63, GW=64, REP=65, D8=66, E=67, A=68, B=69, RET=70, M=72,
          ATOM=96, FM=72, CONTC=80, CONTO=81, RE=82, RUN1=83, CN=84, ONE=86, BK=97, TAG=98, WH=4)
SELQ, SELW = 0x0c050403, 0x0c020100
globals().update({k: x for k, x in VR.items() if k in ("ACC", "D0", "D1", "EE", "TT", "PP", "CQ", "B3", "A3", "A2")})

TOK = re.compile(r"([@$])([A-Za-z][A-Za-z0-9]*)(?:\+(\d+))?(?::(\d+))?")
EXP = re.compile(r"#\(([^()]*(?:\([^()]*\)[^()]*)*)\)")


def sub(line):
    def r(m):
        base = (VR if m.group(1) == "@" else SR)[m.group(2)] + int(m.group(3) or 0)
        return (v if m.group(1) == "@" else s)(base, int(m.group(4) or 1))

    def e(m):
        x = eval(m.group(1), globals())
        return str(x) if x < 65536 else hex(x)
    return TOK.sub(r, EXP.sub(e, line))


class Asm:
    def __init__(self):
        self.l = []

    def __call__(self, *lines):
        for x in lines:
            for y in x.strip("\n").split("\n"):
                y = y.strip()
                if not y:
                    continue
                y = sub(y)
                self.l.append(y if y.endswith(":") else "    " + y)

    def text(self):
        return "\n".join(self.l) + "\n"


MF = "v_mfma_f32_32x32x16_bf16"


def mfma(d, a, b, c):
    return "%s %s, %s, %s, %s" % (MF, v(d, 16), v(a, 4), v(b, 4), "0" if c is None else v(c, 16))


def stamp(a, opt, idx, reg, real=False):
    if not opt.get("stamps"):
        return
    a("s_waitcnt lgkmcnt(0)", "%s s[100:101]" % ("s_memrealtime" if real else "s_memtime"), "s_waitcnt lgkmcnt(0)",
      "v_writelane_b32 %s, s100, %d" % (v(reg), idx))


def lstamp(a, opt, name):
    names = opt.get("ls", "").split("+") if opt.get("ls") else []
    if name in names:
        k = 6 + 2 * names.index(name)
        a("%s s[%d:%d]" % ("s_memrealtime" if opt.get("lsreal") else "s_memtime", k, k + 1))


def refstamp(a, opt, name, wgreg, base, vt, wait=True):
    if opt.get("ref") != name:
        return
    a("""
    s_memrealtime s[100:101]
    s_cmp_lg_u32 %s, %d
    s_cbranch_scc1 REF_SKIP
    s_waitcnt lgkmcnt(0)
    v_mov_b32 %s, s100
    v_mov_b32 %s, #(WS_DBG)
    global_store_dword %s, %s, %s
    s_waitcnt vmcnt(0)
    REF_SKIP:
    """ % (wgreg, opt.get("refwg", 0), v(vt), v(vt + 1), v(vt + 1), v(vt), base))


def gen_diag(a, opt):
    a("""
    diag_kernel:
    s_memrealtime s[8:9]
    s_cmp_ge_u32 s2, 1
    s_cbranch_scc1 DG_END
    s_load_dwordx2 s[4:5], s[0:1], 80
    v_mov_b32 v1, #(WS_DBG)
    s_waitcnt lgkmcnt(0)
    global_load_dword v2, v1, s[4:5]
    s_waitcnt vmcnt(0)
    v_readfirstlane_b32 s6, v2
    %s
    s_mov_b32 s7, 0
    DG_LOOP:
    s_memrealtime s[10:11]
    s_add_u32 s7, s7, 1
    s_waitcnt lgkmcnt(0)
    s_cmp_gt_u32 s7, 20000
    s_cbranch_scc1 DG_END
    s_sub_u32 s10, s10, s6
    s_cmp_lt_u32 s10, 6000
    s_cbranch_scc1 DG_LOOP
    DG_END:
    s_endpgm
    """ % ("s_mov_b32 s6, s8" if opt.get("ref") == "diag" else ""))


def stamp_store(a, opt, reg, tmp, tid, base, wg, extra):
    if not opt.get("stamps"):
        return
    a("s_waitcnt vmcnt(0)",
      "s_getreg_b32 s100, hwreg(HW_REG_HW_ID)", "v_writelane_b32 %s, s100, 44" % v(reg),
      "s_getreg_b32 s100, hwreg(HW_REG_XCC_ID)", "v_writelane_b32 %s, s100, 45" % v(reg))
    stamp(a, opt, 14, reg)
    stamp(a, opt, 15, reg, True)
    a("""
    s_mov_b64 exec, -1
    s_lshl_b32 s100, %s, 11
    s_add_u32 s100, s100, %d
    v_lshl_add_u32 %s, %s, 2, s100
    global_store_dword %s, %s, %s
    """ % (wg, WS_DBG + extra, v(tmp), v(tid), v(tmp), v(reg), base))


def scan64(a, r, fill=None):
    steps = ["row_shr:%d row_mask:0xf" % sh for sh in (1, 2, 4, 8)] + ["row_bcast:15 row_mask:0xa", "row_bcast:31 row_mask:0xc"]
    for i, st in enumerate(steps):
        a(*(fill[2 * i:2 * i + 2] if fill else ["s_nop 1"]))
        a("v_add_u32_dpp %s, %s, %s %s bank_mask:0xf" % (v(r), v(r), v(r), st))


K1_GRID = 456


def gen_k1(a, opt):
    st = opt.get("k1_store", "").replace("+", " ")
    STV = 100

    def fin(who=None):
        stamp(a, opt, 13, STV)
        if who:
            refstamp(a, opt, who, "s2", "s[20:21]", 90)
        stamp_store(a, opt, STV, 101, 0, "s[20:21]", "s38", 0x100000)
        a("s_endpgm")
    a("""
    prep_kernel:
    s_cmp_ge_u32 s2, #(K1_GRID)
    s_cbranch_scc1 K1_END
    s_load_dwordx16 s[4:19], s[0:1], 0
    s_load_dwordx2 s[20:21], s[0:1], 80
    v_lshrrev_b32 v1, 6, v0
    v_and_b32 v2, 63, v0
    v_readfirstlane_b32 s3, v1
    """)
    refstamp(a, opt, "k1", "s2", "s[20:21]", 90)
    if opt.get("ref") == "k1w":
        a("s_waitcnt lgkmcnt(0)")
    refstamp(a, opt, "k1w", "s2", "s[20:21]", 90)
    if opt.get("stamps"):
        a("s_mov_b32 s38, s2")
        stamp(a, opt, 0, STV, True)
        stamp(a, opt, 1, STV)
    if opt.get("gemm_first"):
        a("""
        s_cmp_lt_u32 s2, 200
        s_cbranch_scc1 K1_GEMM
        s_sub_u32 s2, s2, 200
        """)
    else:
        a("""
        s_cmp_ge_u32 s2, 256
        s_cbranch_scc1 K1_GEMM
        """)
    a("""
    s_cmp_ge_u32 s2, #(NCH)
    s_cbranch_scc1 K1_IMG
    s_cmp_eq_u32 s3, 7
    s_cbranch_scc1 K1_EXTRA
    """)
    a("""
    v_lshlrev_b32 v3, 2, v0
    v_mov_b32 v4, 0
    ds_write_b32 v3, v4
    v_cmp_gt_u32 vcc, 400, v0
    s_mul_i32 s24, s2, #(CH*4)
    v_lshl_add_u32 v4, v0, 4, s24
    v_lshrrev_b32 v5, 1, v4
    s_mov_b64 s[22:23], vcc
    s_waitcnt lgkmcnt(0)
    s_mov_b64 exec, s[22:23]
    """)
    ld = opt.get("k1_ld", "").replace("+", " ")
    late = opt.get("k1_late", 0)
    l2 = ["global_load_dwordx4 v[12:15], v4, s[10:11] " + ld, "global_load_dwordx2 v[16:17], v5, s[8:9] " + ld]
    a("global_load_dwordx4 v[8:11], v4, s[12:13] " + ld)
    if not late:
        a(*l2)
    a("""
    s_mov_b32 s25, -49
    s_mov_b32 s26, 0x01000100
    s_mov_b32 s27, 0x03020302
    v_mov_b32 v6, 1
    s_barrier
    s_waitcnt vmcnt(%d)
    """ % (0 if late else 2))
    if late:
        a(*l2)
    stamp(a, opt, 2, STV)
    for k in range(4):
        a("v_mul_u32_u24 %s, 21400, %s" % (v(28 + k), v(8 + k)))
        a("v_lshrrev_b32 %s, 20, %s" % (v(28 + k), v(28 + k)))
        a("v_mad_i32_i24 %s, %s, s25, %s" % (v(8 + k), v(28 + k), v(8 + k)))
        a("v_lshlrev_b32 %s, 2, %s" % (v(28 + k), v(28 + k)))
        a("ds_add_rtn_u32 %s, %s, v6" % (v(32 + k), v(28 + k)))
    a("""
    s_mov_b64 exec, -1
    v_lshlrev_b32 v3, 4, v2
    s_waitcnt lgkmcnt(0)
    s_barrier
    ds_read_b128 v[36:39], v3
    s_waitcnt lgkmcnt(0)
    """)
    stamp(a, opt, 3, STV)
    a("""
    v_add_u32 v40, v36, v37
    v_add3_u32 v40, v40, v38, v39
    v_mov_b32 v41, v40
    """)
    scan64(a, 41)
    a("""
    v_sub_u32 v40, v41, v40
    v_add_u32 v41, v40, v36
    v_add_u32 v42, v41, v37
    v_add_u32 v43, v42, v38
    ds_write_b128 v3, v[40:43] offset:1024
    s_mov_b64 exec, s[22:23]
    """)
    for k in range(4):
        a("ds_read_b32 %s, %s offset:1024" % (v(28 + k), v(28 + k)))
    a("s_waitcnt vmcnt(0)")
    for k in range(4):
        a("v_lshl_or_b32 %s, %s, 19, %s" % (v(20 + 2 * k), v(8 + k), v(12 + k)))
        a("v_perm_b32 %s, %s, %s, %s" % (v(21 + 2 * k), v(16 + k // 2), v(16 + k // 2), s(26 + (k & 1))))
    for k in range(4):
        a("s_waitcnt lgkmcnt(3)")
        a("v_add_lshl_u32 %s, %s, %s, 3" % (v(28 + k), v(28 + k), v(32 + k)))
        a("ds_write_b64 %s, %s offset:2048" % (v(28 + k), v(20 + 2 * k, 2)))
    a("""
    s_cmp_lg_u32 s3, 6
    s_cbranch_scc1 K1_NOT
    s_mov_b64 exec, -1
    v_lshl_or_b32 v36, v36, 16, v40
    v_lshl_or_b32 v37, v37, 16, v41
    v_lshl_or_b32 v38, v38, 16, v42
    v_lshl_or_b32 v39, v39, 16, v43
    s_and_b32 s24, s2, 7
    s_lshl_b32 s24, s24, 5
    s_lshr_b32 s28, s2, 3
    s_add_u32 s24, s24, s28
    s_lshl_b32 s24, s24, 2
    s_add_u32 s24, s24, #(WS_T)
    v_lshl_add_u32 v3, v2, 12, s24
    global_store_dword v3, v36, s[20:21]
    global_store_dword v3, v37, s[20:21] offset:1024
    global_store_dword v3, v38, s[20:21] offset:2048
    global_store_dword v3, v39, s[20:21] offset:3072
    s_mov_b64 exec, s[22:23]
    K1_NOT:
    v_lshlrev_b32 v3, 4, v0
    s_mul_i32 s24, s2, #(CH*8)
    s_add_u32 s24, s24, #(WS_REC)
    v_add_u32 v4, s24, v3
    v_add_u32 v5, 6400, v4
    s_waitcnt lgkmcnt(0)
    s_barrier
    ds_read_b128 v[12:15], v3 offset:2048
    ds_read_b128 v[16:19], v3 offset:#(2048+6400)
    s_waitcnt lgkmcnt(1)
    global_store_dwordx4 v4, v[12:15], s[20:21] %s
    s_waitcnt lgkmcnt(0)
    global_store_dwordx4 v5, v[16:19], s[20:21] %s
    """ % (st, st))
    fin("sortend")
    a("""
    K1_EXTRA:
    s_mul_i32 s24, s2, 50
    v_add_u32 v3, s24, v2
    v_mul_u32_u24 v4, 6, v3
    v_lshlrev_b32 v3, 4, v3
    v_add_u32 v3, #(WS_POS), v3
    s_waitcnt lgkmcnt(0)
    s_bfm_b64 exec, 50, 0
    global_load_ushort v8, v4, s[6:7]
    global_load_ushort v9, v4, s[6:7] offset:2
    global_load_ushort v10, v4, s[6:7] offset:4
    s_mov_b64 exec, -1
    """)
    if opt.get("codepf"):
        a("""
        s_getpc_b64 s[28:29]
        K1_PC:
        s_add_u32 s28, s28, main_kernel-K1_PC
        s_addc_u32 s29, s29, 0
        s_lshr_b32 s24, s2, 3
        s_and_b32 s24, s24, 1
        s_lshl_b32 s24, s24, 13
        v_lshl_add_u32 v20, v2, 7, s24
        v_min_u32 v20, K2_LAST-main_kernel, v20
        v_mov_b32 v23, s29
        v_add_co_u32 v22, vcc, s28, v20
        s_nop 1
        v_addc_co_u32 v23, vcc, 0, v23, vcc
        global_load_dword v24, v[22:23], off
        """)
    if opt.get("tlbw"):
        a("""
        s_load_dwordx2 s[28:29], s[0:1], 64
        s_lshr_b32 s24, s2, 3
        v_lshl_add_u32 v20, v2, 5, s24
        v_mul_u32_u24 v21, #(11*4096), v20
        v_mul_u32_u24 v22, 12792, v20
        s_mov_b64 exec, 0xff
        global_load_dword v23, v21, s[20:21]
        s_waitcnt lgkmcnt(0)
        global_load_dword v24, v22, s[28:29]
        s_mov_b64 exec, -1
        """)
    a("""
    s_barrier
    s_cmp_ge_u32 s2, 96
    s_cbranch_scc1 K1_XPOS
    s_cmp_ge_u32 s2, 32
    s_cbranch_scc1 K1_XWH
    v_and_b32 v5, 15, v2
    s_lshr_b32 s24, s2, 2
    s_lshl_b32 s24, s24, 4
    v_add_lshl_u32 v5, v5, s24, 1
    v_lshrrev_b32 v6, 4, v2
    v_lshlrev_b32 v6, 1, v6
    s_movk_i32 s26, 0x9c
    v_bfe_u32 v6, s26, v6, 2
    s_and_b32 s25, s2, 3
    s_lshl_b32 s25, s25, 13
    v_lshl_add_u32 v5, v6, 11, v5
    v_add_u32 v5, s25, v5
    """)
    for j in range(8):
        a("global_load_ushort %s, v5, s[14:15] offset:%d" % (v(12 + j), j * 256))
    a("""
    s_lshl_b32 s24, s2, 10
    s_add_u32 s24, s24, #(WS_WF)
    v_lshl_add_u32 v7, v2, 4, s24
    s_branch K1_XWST
    K1_XWH:
    s_sub_u32 s24, s2, 32
    s_bfe_u32 s25, s24, 0x20003
    s_lshl_b32 s25, s25, 5
    s_and_b32 s26, s24, 1
    s_lshl_b32 s26, s26, 4
    s_add_u32 s25, s25, s26
    s_bfe_u32 s26, s24, 0x20001
    s_lshl_b32 s26, s26, 2
    s_add_u32 s25, s25, s26
    v_and_b32 v6, 3, v2
    v_add_lshl_u32 v5, v6, s25, 1
    v_lshrrev_b32 v4, 2, v2
    v_lshlrev_b32 v7, 4, v4
    v_lshl_add_u32 v7, v6, 8, v7
    s_lshl_b32 s24, s24, 10
    s_add_u32 s24, s24, #(WS_Q+NQ*256)
    v_add_u32 v7, s24, v7
    s_cmp_ge_u32 s2, 64
    s_cbranch_scc1 K1_XW2
    v_lshl_add_u32 v5, v4, 11, v5
    """)
    for j in range(8):
        a("global_load_ushort %s, v5, s[18:19] offset:%d" % (v(12 + j), j * 256))
    a("""
    s_branch K1_XWST
    K1_XW2:
    v_and_b32 v6, 7, v4
    v_lshl_add_u32 v5, v6, 10, v5
    v_lshrrev_b32 v6, 3, v4
    v_lshl_add_u32 v5, v6, 14, v5
    v_add_u32 v5, 32768, v5
    v_add_u32 v6, 8192, v5
    """)
    for j in range(8):
        a("global_load_ushort %s, %s, s[18:19] offset:%d" % (v(12 + j), v(5 + (j & 1)), (j >> 1) * 256))
    a("""
    K1_XWST:
    s_barrier
    s_waitcnt vmcnt(0)
    v_lshl_or_b32 v12, v13, 16, v12
    v_lshl_or_b32 v13, v15, 16, v14
    v_lshl_or_b32 v14, v17, 16, v16
    v_lshl_or_b32 v15, v19, 16, v18
    global_store_dwordx4 v7, v[12:15], s[20:21] %s
    s_branch K1_XP2
    K1_XPOS:
    s_barrier
    s_waitcnt vmcnt(0)
    K1_XP2:
    s_bfm_b64 exec, 50, 0
    v_lshlrev_b32 v8, 16, v8
    v_lshlrev_b32 v9, 16, v9
    v_lshlrev_b32 v10, 16, v10
    v_mov_b32 v11, 0
    global_store_dwordx4 v3, v[8:11], s[20:21] %s
    s_barrier
    """ % (st, st))
    fin()
    a("""
    K1_IMG:
    s_cmp_lg_u32 s2, #(NCH)
    s_cbranch_scc1 K1_TAB
    v_and_b32 v3, 255, v0
    v_lshlrev_b32 v4, 1, v3
    v_add_u32 v4, 65536, v4
    v_and_b32 v5, 127, v0
    v_lshlrev_b32 v6, 1, v5
    s_waitcnt lgkmcnt(0)
    global_load_ushort v8, v4, s[14:15]
    global_load_ushort v9, v6, s[16:17]
    v_lshlrev_b32 v4, 3, v0
    v_mov_b32 v10, 0
    v_mov_b32 v11, 0
    ds_write_b64 v4, v[10:11]
    v_bfe_u32 v7, v0, 7, 1
    v_mul_u32_u24 v7, #(2*RS), v7
    v_add_u32 v7, v7, v6
    v_and_b32 v12, 31, v0
    v_lshlrev_b32 v12, 4, v12
    v_bfe_u32 v13, v0, 5, 2
    v_lshl_add_u32 v12, v13, 2, v12
    v_and_b32 v13, 7, v0
    v_mul_u32_u24 v13, 18, v13
    v_mov_b32 v14, 0x3f80
    s_waitcnt lgkmcnt(0)
    s_barrier
    ds_write_b16 v13, v14 offset:#(L_LUTC-L_IMG)
    s_waitcnt vmcnt(0)
    v_lshlrev_b32 v8, 16, v8
    v_mul_f32 v8, #(f32(-LOG2E)), v8
    v_cvt_pk_bf16_f32 v10, v8, v8
    v_and_b32 v11, 0xffff0000, v10
    v_sub_f32 v8, v8, v11
    v_cvt_pk_bf16_f32 v11, v8, v8
    v_lshlrev_b32 v9, 16, v9
    v_mul_f32 v9, #(f32(-LN2*2.0**-KEXP)), v9
    ds_write_b16 v7, v10 offset:#(L_WZ+4*RS-L_IMG)
    ds_write_b16 v7, v11 offset:#(L_WZ+5*RS-L_IMG)
    ds_write_b32 v12, v9 offset:#(L_WX-L_IMG)
    s_waitcnt lgkmcnt(0)
    s_barrier
    ds_read_b64 v[10:11], v4
    v_add_u32 v4, #(WS_IMG), v4
    s_waitcnt lgkmcnt(0)
    global_store_dwordx2 v4, v[10:11], s[20:21]
    s_endpgm
    K1_TAB:
    s_cmp_lg_u32 s2, #(NCH+1)
    s_cbranch_scc1 K1_END
    s_cmp_lg_u32 s3, 0
    s_cbranch_scc1 K1_END
    v_and_b32 v3, 31, v2
    v_lshrrev_b32 v4, 5, v2
    v_bfe_u32 v5, v2, 2, 2
    v_and_b32 v6, 3, v2
    v_bfe_u32 v7, v2, 4, 1
    v_lshrrev_b32 v8, 4, v2
    v_and_b32 v9, 15, v2
    v_lshrrev_b32 v10, 2, v2
    v_lshlrev_b32 v11, 3, v6
    v_lshl_add_u32 v11, v7, 5, v11
    v_xor_b32 v12, v5, v4
    v_lshlrev_b32 v12, 4, v12
    v_lshlrev_b32 v16, 1, v8
    s_movk_i32 s24, 0x9c
    v_bfe_u32 v16, s24, v16, 2
    v_xor_b32 v16, v16, v5
    v_lshlrev_b32 v16, 4, v16
    v_lshl_add_u32 v16, v9, 6, v16
    v_add_u32 v16, #(L_H), v16
    v_mul_u32_u24 v17, #(RS), v9
    v_lshl_add_u32 v17, v8, 3, v17
    v_lshlrev_b32 v18, 4, v3
    v_mov_b32 v19, 0
    v_mul_u32_u24 v20, 72, v3
    v_add_u32 v20, #(L_S), v20
    v_lshl_add_u32 v21, v4, 2, v5
    v_mul_u32_u24 v21, 72, v21
    v_add_u32 v21, v21, v11
    v_add_u32 v21, #(L_S), v21
    v_lshl_add_u32 v22, v4, 8, v11
    v_bfe_u32 v13, v2, 3, 1
    v_lshl_add_u32 v22, v13, 6, v22
    s_mov_b32 exec_lo, 0x0f0f0f0f
    s_mov_b32 exec_hi, 0x0f0f0f0f
    v_mov_b32 v22, 0x40000
    s_mov_b64 exec, -1
    v_mul_u32_u24 v23, #(RS), v5
    v_mul_u32_u24 v13, #(L_P-L_WZ), v4
    v_add3_u32 v23, v23, v11, v13
    v_add_u32 v23, #(L_WZ), v23
    v_xor_b32 v24, v6, v8
    v_lshlrev_b32 v24, 4, v24
    v_lshl_add_u32 v24, v10, 8, v24
    v_lshl_add_u32 v24, v6, 28, v24
    v_add_u32 v24, #(NQ*256), v24
    v_add_u32 v25, 4096, v24
    v_mul_u32_u24 v26, #(L_POSD-L_LUTC), v4
    v_sub_u32 v26, #(L_POSD), v26
    v_lshlrev_b32 v27, 3, v10
    v_add_u32 v27, #(L_REC), v27
    v_lshlrev_b32 v28, 3, v3
    v_add_u32 v28, #(L_REC), v28
    v_lshl_add_u32 v29, v5, 1, v4
    v_lshl_add_u32 v29, v29, 2, v6
    v_lshlrev_b32 v29, 2, v29
    v_mul_u32_u24 v30, #(RS), v3
    v_lshl_add_u32 v30, v4, 4, v30
    v_lshl_add_u32 v31, v3, 6, v12
    v_add_u32 v31, #(L_G), v31
    v_mul_u32_u24 v32, 80, v3
    v_lshl_add_u32 v32, v4, 5, v32
    v_mul_u32_u24 v33, 80, v10
    v_lshl_add_u32 v33, v6, 4, v33
    v_lshlrev_b32 v34, 8, v10
    v_lshl_add_u32 v34, v6, 4, v34
    v_lshlrev_b32 v35, 2, v2
    v_mul_u32_u24 v36, #(RS), v4
    v_lshl_add_u32 v36, v3, 2, v36
    v_mov_b32 v37, v4
    v_lshl_add_u32 v38, v9, 6, v12
    v_lshl_add_u32 v38, v7, 12, v38
    v_add_u32 v38, #(L_H), v38
    v_mul_u32_u24 v39, 48, v4
    v_xor_b32 v39, v39, v38
    v_lshlrev_b32 v13, 4, v2
    v_add_u32 v13, #(WS_IMG+4096), v13
    v_add_u32 v14, 4096, v13
    s_waitcnt lgkmcnt(0)
    global_store_dwordx4 v13, v[16:19], s[20:21]
    global_store_dwordx4 v13, v[20:23], s[20:21] offset:1024
    global_store_dwordx4 v13, v[24:27], s[20:21] offset:2048
    global_store_dwordx4 v13, v[28:31], s[20:21] offset:3072
    global_store_dwordx4 v14, v[32:35], s[20:21]
    global_store_dwordx4 v14, v[36:39], s[20:21] offset:1024
    s_endpgm
    """)
    a("K1_GEMM:")
    if not opt.get("gemm_first"):
        a("s_sub_u32 s2, s2, 256")
    a("""
    s_and_b32 s22, s2, 7
    s_lshr_b32 s39, s2, 3
    s_mul_i32 s2, s22, 49
    s_lshl_b32 s22, s39, 1
    s_add_u32 s2, s2, s22
    v_lshrrev_b32 v3, 4, v2
    v_lshlrev_b32 v4, 2, v3
    v_and_b32 v5, 15, v2
    v_xor_b32 v4, v4, v5
    v_lshlrev_b32 v4, 4, v4
    v_lshl_add_u32 v4, v3, 8, v4
    s_lshl_b32 s22, s3, 12
    s_add_u32 s23, s22, 32768
    v_and_b32 v5, 3, v2
    v_xor_b32 v5, v5, v3
    v_lshlrev_b32 v5, 4, v5
    v_lshrrev_b32 v6, 2, v2
    v_lshl_add_u32 v5, v6, 8, v5
    s_lshr_b32 s24, s3, 1
    s_lshl_b32 s25, s2, 1
    s_add_u32 s25, s25, s24
    s_lshl_b32 s25, s25, 12
    s_and_b32 s26, s3, 1
    s_lshl_b32 s27, s26, 7
    s_add_u32 s25, s25, s27
    s_lshr_b32 s27, s3, 2
    s_lshl_b32 s27, s27, 13
    s_lshl_b32 s26, s26, 12
    s_add_u32 s27, s27, s26
    s_and_b32 s24, s24, 1
    s_lshl_b32 s24, s24, 10
    s_add_u32 s27, s27, s24
    s_add_u32 s27, s27, 32768
    s_waitcnt lgkmcnt(0)
    s_mov_b32 s28, s4
    s_mov_b32 s29, s5
    s_mov_b32 s30, #(N*256)
    s_mov_b32 s31, 0x20000
    s_mov_b32 s32, s14
    s_mov_b32 s33, s15
    s_mov_b32 s34, #(258*256)
    s_mov_b32 s35, 0x20000
    s_mov_b32 m0, s27
    v_add_u32 v5, s25, v5
    buffer_load_dwordx4 v5, s[28:31], 0 offen %s lds
    s_add_u32 m0, s27, #(2048-64)
    s_nop 0
    buffer_load_dwordx4 v5, s[28:31], 0 offen offset:64 %s lds
    s_mov_b32 m0, s22
    s_nop 0
    """ % ((opt.get("k1_hld", "").replace("+", " "),) * 2))
    if opt.get("k1x", 0) & 1:
        for i in range(opt.get("k1xn", 4)):
            a("buffer_load_dwordx4 v4, s[32:35], s22 offen offset:%d lds" % (i * 1024))
    for i in range(4):
        a("buffer_load_dwordx4 v4, s[32:35], s23 offen offset:%d lds" % (i * 1024))
    a("""
    s_and_b32 s24, s3, 3
    s_lshr_b32 s26, s3, 2
    v_bfe_u32 v6, v2, 2, 2
    v_xor_b32 v7, s24, v6
    v_lshlrev_b32 v7, 6, v7
    v_lshl_add_u32 v7, v6, 8, v7
    v_lshrrev_b32 v8, 5, v2
    v_lshl_add_u32 v7, v8, 11, v7
    v_and_b32 v9, 1, v2
    v_lshl_add_u32 v7, v9, 5, v7
    v_bfe_u32 v9, v2, 4, 1
    v_lshl_add_u32 v7, v9, 4, v7
    v_bfe_u32 v10, v2, 1, 1
    v_lshl_add_u32 v7, v10, 3, v7
    v_xor_b32 v6, v6, v8
    v_lshlrev_b32 v6, 4, v6
    v_and_b32 v10, 15, v2
    v_lshl_add_u32 v6, v10, 6, v6
    v_lshl_add_u32 v6, v9, 10, v6
    s_lshl_b32 s27, s26, 13
    s_add_u32 s27, s27, 32768
    v_add_u32 v6, s27, v6
    v_xor_b32 v11, 32, v6
    s_mul_i32 s27, s3, 2560
    s_add_u32 s27, s27, 49152
    v_and_b32 v10, 31, v2
    v_mul_u32_u24 v12, 80, v10
    v_lshl_add_u32 v12, v8, 5, v12
    v_add_u32 v12, s27, v12
    v_lshrrev_b32 v10, 2, v2
    v_mul_u32_u24 v13, 80, v10
    v_and_b32 v9, 3, v2
    v_lshl_add_u32 v13, v9, 4, v13
    v_add_u32 v13, s27, v13
    v_lshlrev_b32 v14, 8, v10
    v_lshl_add_u32 v14, v9, 4, v14
    s_add_u32 s25, s2, s26
    s_lshl_b32 s25, s25, 13
    s_lshl_b32 s24, s24, 6
    s_add_u32 s25, s25, s24
    v_add_u32 v14, s25, v14
    v_add_u32 v15, 4096, v14
    s_mov_b32 s36, #(f32(-LOG2E))
    s_mov_b32 s37, s36
    s_lshl_b32 s39, s39, 1
    s_add_u32 s39, s39, s26
    s_waitcnt vmcnt(0)
    s_barrier
    s_cmp_ge_u32 s39, 49
    s_cbranch_scc1 K1_GEND
    """)
    stamp(a, opt, 2, STV)
    A0, B0, DD = 32, 64, 16

    def rd(ks):
        a("ds_read_b64_tr_b16 %s, v7 offset:%d" % (v(A0 + 4 * ks, 2), ks * 4096))
        a("ds_read_b64_tr_b16 %s, v7 offset:%d" % (v(A0 + 4 * ks + 2, 2), ks * 4096 + 1024))
        a("ds_read_b128 %s, %s offset:%d" % (v(B0 + 4 * ks, 4), "v11" if ks & 1 else "v6", (ks >> 1) * 2048))
    for rep in range(2 if opt.get('k1x', 0) & 2 else 1):
        for ks in range(4):
            rd(ks)
        for ks in range(8):
            if ks + 4 < 8:
                rd(ks + 4)
            a("s_waitcnt lgkmcnt(%d)" % (3 * min(4, 7 - ks)))
            a(mfma(DD, A0 + 4 * ks, B0 + 4 * ks, None if ks == 0 else DD))
        a("s_nop 11")
        for i in range(8):
            a("v_pk_mul_f32 %s, %s, s[36:37]" % (v(DD + 2 * i, 2), v(DD + 2 * i, 2)))
        for i in range(8):
            a("v_cvt_pk_bf16_f32 %s, %s, %s" % (v(A0 + i), v(DD + 2 * i), v(DD + 2 * i + 1)))
        a("""
        ds_write_b128 v12, v[32:35]
        ds_write_b128 v12, v[36:39] offset:16
        ds_read_b128 v[40:43], v13
        ds_read_b128 v[44:47], v13 offset:1280
        s_waitcnt lgkmcnt(1)
        global_store_dwordx4 v14, v[40:43], s[20:21] %s
        s_waitcnt lgkmcnt(0)
        global_store_dwordx4 v15, v[44:47], s[20:21] %s
        """ % (st, st))
        if opt.get("k1x", 0) & 2:
            a("v_add_u32 v14, 0x2000000, v14", "v_add_u32 v15, 0x2000000, v15", "s_nop 1")
    a("""
    K1_GEND:
    """)
    fin("gemmend")
    a("K1_END:", "s_endpgm")


def silu_ops(Y, ng):
    ex = ["v_exp_f32 %s, %s" % (v(EE + i), v(Y + i)) for i in range(4 * ng)]
    r1, r2, r3 = [], [], []
    for g in range(ng):
        r1.append("v_pk_fma_f32 %s, %s, $K:2, $K:2" % (v(TT + 2 * g, 2), v(EE + 4 * g, 2)))
    for g in range(ng):
        r1.append("v_pk_fma_f32 %s, %s, %s, %s" % (v(TT + 2 * g, 2), v(TT + 2 * g, 2), v(EE + 4 * g + 2, 2), v(TT + 2 * g, 2)))
    for i in range(2 * ng):
        r2.append("v_rcp_f32 %s, %s" % (v(TT + i), v(TT + i)))
    for g in range(ng):
        for p in range(2):
            y = v(Y + 4 * g + 2 * p, 2)
            r3.append("v_pk_mul_f32 %s, %s, %s" % (y, y, v(TT + 2 * g, 2)))
    for g in range(ng):
        for p in range(2):
            y = v(Y + 4 * g + 2 * p, 2)
            r3.append("v_pk_fma_f32 %s, %s, %s, %s" % (y, y, v(EE + 4 * g + 2 * (1 - p), 2), y))
    return ex, r1, r2, r3


SHORT = ("v_exp_f32", "v_rcp_f32", "v_sub_f32", "v_add_u32", "v_mov_b32", "v_mul_f32", "v_fmac_f32", "v_add_f32")


def align8(run):
    out, grp = [], []

    def flush():
        if len(grp) % 2:
            for i in range(len(grp) - 1, -1, -1):
                op = grp[i].split()[0]
                if op in SHORT:
                    grp[i] = grp[i].replace(op, op + "_e64", 1)
                    break
            else:
                grp.append("s_nop 0")
        out.extend(grp)
        del grp[:]
    for ins in run:
        op = ins.split()[0]
        if op in SHORT or op in ("s_setprio", "s_nop"):
            grp.append(ins)
        else:
            flush()
            out.append(ins)
    flush()
    return out


def cvts(Dp, n):
    return ["v_cvt_pk_bf16_f32 %s, %s, %s" % (v(PP + i), v(Dp + 2 * i), v(Dp + 2 * i + 1)) for i in range(n)]


def dma(a, slot, wait=None):
    for r in range(2):
        a("s_add_u32 m0, $GW, %d" % (slot * 2048 + r * 1024 - slot * 64))
        a("s_nop 0" if wait is None or r else "s_waitcnt lgkmcnt(%d)" % wait)
        a("buffer_load_dwordx4 @DA+%d, $Q:4, 0 offen offset:%d lds" % (r, slot * 64))


def cq_read(a, slot, n=8):
    for i in range(n):
        a("ds_read_b64_tr_b16 @CQ+%d:2, @Cq offset:%d" % (2 * i, slot * 2048 + (i >> 1) * 512 + (i & 1) * 128))


STUBS = []


def rare_call(a, tag, target):
    a("s_cbranch_scc1 K2_X%s" % tag, "K2_R%s:" % tag)
    STUBS.append("K2_X%s:\ns_call_b64 $RET:2, %s\ns_waitcnt lgkmcnt(0)\ns_branch K2_R%s" % (tag, target, tag))


def logic(a, tag):
    a("""
    s_add_u32 $P2, $P1, 32
    s_min_u32 $E, $P2, $END
    s_sub_u32 $A, $E, $P1
    s_bfm_b64 $MASK:2, $A, 0
    """)
    if tag == "P":
        a("s_call_b64 $RET:2, K2_REBASE")
    else:
        a("s_cmp_gt_u32 $E, $WEND")
        rare_call(a, "REB" + tag, "K2_REBASE")
    a("""
    s_sub_u32 $D8, $P2, $P1
    s_lshl_b32 $D8, $D8, 3
    s_cmp_lt_u32 $P2, $END
    s_cselect_b32 $SEL, $SEL, #(SELW)
    """)


GEOM_A = ["v_sub_f32 @TT+%d, @TT+%d, @GP+%d" % (i, i, i) for i in range(3)]
GEOM_B = ["v_cvt_pk_bf16_f32 @A3, @TT, @TT+1", "v_cvt_pk_bf16_f32 @A3+1, @TT+2, $K"]
GEOM_C = ["v_dot2_f32_bf16 @A3+2, @A3, @A3, 0", "v_dot2_f32_bf16 @A3+2, @A3+1, @A3+1, @A3+2"]
GEOM_D = ["v_cvt_pk_bf16_f32 @A3+2, @A3+2, @A3+2"]
PERMS = ["v_perm_b32 @DA+%d, @TT+%d, @WA+%d, $SEL" % (r, 4 + r, r) for r in range(2)]


def a3_reads(a):
    a("""
    s_mov_b32 exec_lo, 0
    ds_read_b128 @A3:4, @X
    s_not_b64 exec, exec
    ds_read_b32 @A3+3, @Rec offset:4
    s_mov_b64 exec, -1
    """)


def gather_pos(a):
    a("""
    s_mov_b32 exec_hi, 0
    buffer_load_dwordx3 @GP:3, @GP, $POS:4, 0 idxen
    s_mov_b32 exec_hi, -1
    """)


SRDSW = """
    s_cmp_lt_u32 $P2, $END
    s_cselect_b64 $Q:2, $Q:2, $WH:2
    s_cselect_b32 $Q+2, $Q+2, 65536
"""


def step(a, half, opt):
    tag = "H" if half else "F"
    useprio = opt.get("prio", 1)
    for t in range(4):
        D, Dn = (D0, D1) if t % 2 == 0 else (D1, D0)
        slot = (t + 1) & 3
        last = half and t == 3
        if t > 0 and useprio:
            a("s_setprio 0")
        w = ([6, 6, 6, None] if half else [6, 7, 4, None])[t]
        a("s_cmp_lg_u32 $SAFE, 0")
        rare_call(a, "SAFE%s%d" % (tag, t), "K2_CLAMP%d" % (t & 1))
        if t == 1:
            a("s_cmp_lg_u32 $FLUSH, 0")
            rare_call(a, "FL" + tag, "K2_FLUSH")
        if t == 3 and not half:
            a("s_cmp_lg_u32 $REB, 0")
            rare_call(a, "B3", "K2_B3LOAD")
        if t == 0 and not half:
            a("ds_read_u16 @GP, @Rec")
        if w is not None:
            a("s_waitcnt vmcnt(%d)" % w)
        if not last:
            cq_read(a, slot, 4 if half else 8)
        nother = 0
        if t == 0:
            a("""
            s_mov_b64 exec, $MASK:2
            ds_write_b64 @S, @A3:2
            s_mov_b64 exec, -1
            """)
            nother = 1
            if not half:
                a("ds_read_u16 @Nn, @Rec offset:2")
                nother = 2
        if t == 1:
            nother = 2 if half else 5
            for i in range(2 if half else 4):
                a("ds_read_b64_tr_b16 @A2+%d:2, @A2a offset:%d" % (2 * i, i * 576))
            if not half:
                a("""
                s_mov_b64 exec, $MASK:2
                ds_write_b64 @S, @B3:2
                s_mov_b64 exec, -1
                """)
                logic(a, tag)
        if t == 2 and not half:
            a("ds_read_b96 @TT:3, @X")
            a("ds_read2_b32 @TT+4:2, @Idx offset0:0 offset1:32")
            nother = 2
        if t == 3 and not half:
            a3_reads(a)
            nother = 2
            if opt.get("fused", 1):
                a(SRDSW)
        if not last:
            if t == 0 and not half:
                a("s_waitcnt lgkmcnt(10)")
                gather_pos(a)
            dma(a, slot, nother)
            if nother:
                a("s_waitcnt lgkmcnt(0)")
        accp = ACC + 16 * ((t + 3) & 3)
        S2a = mfma(accp, A2, PP, accp)
        S2b = mfma(accp, A2 + 4, PP + 4, accp)
        S1 = mfma(Dn, A3, B3 + 4 * slot, CQ)
        ex, r1, r2, r3 = silu_ops(D, 2 if half else 4)
        pre, mid, late, fin = [], [], [], []
        pr = ["s_setprio 1"] if useprio else []
        if not half:
            if t == 1:
                mid = ["v_lshl_add_u32 @X, @Nn, 1, @Xb", "v_add_u32 @S, @Nn, @Sb", "v_add_u32 @Idx, $D8, @Idx"]
            if t == 2:
                mid, late, fin = GEOM_A + PERMS + GEOM_B, GEOM_C, GEOM_D
            if t == 3:
                mid = ["v_add_u32 @Rec, $D8, @Rec"]
            cv = cvts(Dn, 8)
            run = cv[:6] + [S2a] + cv[6:] + ex[:2] + [S1] + pr + ex[2:5] + [S2b] + mid + ex[5:]
            run += late + r1 + fin + r2 + r3
        else:
            if t == 0:
                cv = cvts(Dn, 8)
                run = cv[:6] + [S2a] + cv[6:] + ex[:2] + [S1] + pr + ex[2:] + r1 + [S2b] + r2 + r3
            elif not last:
                cv = cvts(Dn, 4)
                run = cv + [S1] + pr + ex[:3] + [S2a] + ex[3:] + r1 + r2 + r3
            else:
                cv = cvts(Dn, 4)
                run = cv + ex[:2] + [S2a] + pr + ex[2:] + r1 + r2 + r3
        if opt.get("align", 1):
            a(".p2align 3")
            run = align8(run)
        a(*run)


def u_part():
    f, r = [], []
    for t in range(4):
        for g in range(4):
            for c in range(3):
                f.append("%s %s, %s, @WX+%d" % ("v_fmac_f32" if t else "v_mul_f32", v(EE + 4 * g + c), v(ACC + 16 * t + 4 * g + c), t))
    for g in range(4):
        for c in range(3):
            r.append("v_add_f32_dpp %s, %s, %s row_ror:8 row_mask:0xf bank_mask:%s" % (
                v(TT + (g & 1) * 3 + c), v(EE + 4 * g + c), v(EE + 4 * g + c), "0x3" if g < 2 else "0xc"))
    for c in range(3):
        r.append("v_add_f32_dpp @EE+%d, @TT+%d, @TT+%d row_shl:4 row_mask:0xf bank_mask:0x5" % (c, c, c))
    for c in range(3):
        r.append("v_add_f32_dpp @EE+%d, @TT+%d, @TT+%d row_shr:4 row_mask:0xf bank_mask:0xa" % (c, 3 + c, 3 + c))
    for qp in ("[1,0,3,2]", "[2,3,0,1]"):
        for c in range(3):
            r.append("v_add_f32_dpp @EE+%d, @EE+%d, @EE+%d quad_perm:%s row_mask:0xf bank_mask:0xf" % (c, c, c, qp))
    r += """v_cndmask_b32 @EE, @EE, @EE+1, $FM:2
    v_cndmask_b32 @EE, @EE, @EE+2, $FM+2:2
    v_mov_b32 @EE+1, @EE
    s_nop 1
    v_permlane16_swap_b32 @EE, @EE+1
    s_nop 0
    v_add_f32 @EE, @EE, @EE+1
    v_add_f32 @T4, @T4, @EE
    v_cmp_u_f32 vcc, @EE, @EE
    ds_write_b32 @T1, @T4 offset:#(L_U)""".split("\n")
    return f, r


U_PRE = """
    s_lshl_b32 $A, $WBO8, 1
    v_add_u32 @T1, $A, @fU
    ds_read_b128 @WX:4, @WXa offset:#(L_WX)
    ds_read_b32 @T4, @T1 offset:#(L_U)
    s_mov_b32 $FM, 0x22222222
    s_mov_b32 $FM+1, 0x22222222
    s_mov_b32 $FM+2, 0x44444444
    s_mov_b32 $FM+3, 0x44444444
"""


def flush_m(a, tag):
    a("""
    v_cmp_gt_u32 vcc, $RE, @Incl
    s_mul_i32 $A, $WBO8, 34
    v_add_u32 @T2, $A, @fM
    s_lshr_b32 $A, $WBO8, 3
    s_bcnt1_i32_b64 $B, vcc
    s_sub_u32 $B, $B, $A
    v_sub_u32 @T3, $B, @Hh
    """)
    for g in range(4):
        a("v_cmp_le_i32 $FM+%d:2, %d, @T3" % (2 * g, 2 * g))
    for p in range(2):
        for g in range(4):
            a("v_cvt_pk_bf16_f32 @PP+%d, %s, %s" % (2 * g + p, v(ACC + 32 * p + 4 * g + 3), v(ACC + 32 * p + 16 + 4 * g + 3)))
    a("""
    s_lshl_b32 $B, $ATOM, 2
    s_or_b32 $B, $B, $CONTO
    s_cbranch_scc0 K2_FLW%s
    s_cmp_lg_u32 $B, 1
    s_cbranch_scc1 K2_FLX%s
    s_mov_b32 $FM, 0
    s_mov_b32 $CN, $A
    v_mov_b32 @CONT, v3
    v_mov_b32 @CONT+1, v19
    v_mov_b32 @CONT+2, v35
    v_mov_b32 @CONT+3, v51
    K2_FLW%s:
    """ % (tag, tag, tag))
    for g in range(4):
        a("s_mov_b64 exec, $FM+%d:2" % (2 * g))
        for p in range(2):
            a("ds_write_b32 @T2, @PP+%d offset:%d" % (2 * g + p, L_M + 2 * g * RS + 128 * p))
    a("K2_FLU%s:" % tag, "s_mov_b64 exec, -1")
    x = """K2_FLX%s:
    s_cmp_eq_u32 $B, 2
    s_cbranch_scc0 K2_FLA%s
    s_mov_b32 $FM, 0
    s_mov_b32 exec_hi, 0
    ds_pk_add_bf16 @T2, @PP offset:#(L_M)
    ds_pk_add_bf16 @T2, @PP+1 offset:#(L_M+128)
    s_branch K2_FLW%s
    K2_FLA%s:
    """ % (tag, tag, tag, tag)
    for g in range(4):
        x += "s_mov_b64 exec, $FM+%d:2\n" % (2 * g)
        for p in range(2):
            x += "ds_pk_add_bf16 @T2, @PP+%d offset:%d\n" % (2 * g + p, L_M + 2 * g * RS + 128 * p)
    x += "s_branch K2_FLU%s" % tag
    STUBS.append(x)


def gen_k2(a, opt):
    ST = VR["ST"]
    a("""
    main_kernel:
    s_cmp_ge_u32 s2, 256
    s_cbranch_scc1 K2_END
    s_load_dwordx2 s[22:23], s[0:1], 80
    s_load_dwordx2 s[4:5], s[0:1], 0
    s_load_dwordx2 s[20:21], s[0:1], 64
    v_mov_b32 @Tid, v0
    v_lshrrev_b32 v1, 6, v0
    s_mov_b32 $BK, s2
    v_readfirstlane_b32 s3, v1
    """)
    refstamp(a, opt, "k2e", "$BK", "s[22:23]", VR["X"])
    a("""
    s_and_b32 $A, s2, 7
    s_lshl_b32 $A, $A, 5
    s_lshr_b32 s2, s2, 3
    s_add_u32 s2, s2, $A
    s_mov_b32 $O, 0
    s_mov_b32 $QUOTA, 24
    s_mov_b32 $SAFE, 0
    s_mov_b32 $FIRST, 1
    K2_ROUND:
    s_setprio 3
    v_and_b32 @L, 63, @Tid
    v_lshrrev_b32 @T0, 2, @Tid
    v_lshlrev_b32 @T0, 3, @T0
    s_lshl_b32 $A, s2, 10
    s_add_u32 $A, $A, #(WS_T)
    v_add_u32 @T0, $A, @T0
    s_waitcnt lgkmcnt(0)
    """)
    stamp(a, opt, 0, ST, True)
    stamp(a, opt, 1, ST)
    lstamp(a, opt, "start")
    refstamp(a, opt, "k2", "$BK", "s[22:23]", VR["X"])
    a("""
    global_load_dwordx2 @Ta:2, @T0, s[22:23]
    """)
    lstamp(a, opt, "tiss")
    a("""
    s_mov_b32 $Q, s22
    s_mov_b32 $Q+1, s23
    s_mov_b32 $Q+2, #(WS_DBG)
    s_mov_b32 $Q+3, 0x20000
    """)
    NRP = opt.get("recpf", 0)
    if NRP:
        a("""
        s_lshr_b32 $A, $BK, 3
        s_lshl_b32 $A, $A, 3
        s_add_u32 $A, $A, s3
        s_mul_i32 $A, $A, #(CH*8)
        s_and_b32 $B, $BK, 7
        s_mul_i32 $B, $B, 1604
        s_add_u32 $A, $A, $B
        s_add_u32 $A, $A, %d
        v_lshl_add_u32 @T2, @L, 7, $A
        s_bfm_b64 exec, %d, 0
        buffer_load_dword @Pf, @T2, $Q:4, 0 offen
        s_mov_b64 exec, -1
        """ % ((WS_REC + 803 - 64 * (NRP - 1)) & ~3, NRP))
    a("""
    v_lshlrev_b32 @T4, 4, @L
    s_lshl_b32 $A, s3, 10
    s_add_u32 m0, $A, #(L_IMG)
    s_add_u32 $B, $A, #(WS_IMG)
    buffer_load_dwordx4 @T4, $Q:4, $B offen lds
    s_mul_i32 $E, s2, #(NB)
    s_cmp_ge_u32 s3, 3
    s_cbranch_scc1 K2_NOC2
    s_lshl_b32 $D8, $E, 4
    s_add_u32 $D8, $D8, #(WS_POS)
    s_add_u32 $B, $B, 8192
    s_add_u32 $REP, $A, #(L_IMG+8192)
    s_cmp_lt_u32 s3, 2
    s_cselect_b32 m0, $REP, #(L_POSD)
    s_cselect_b32 $B, $B, $D8
    buffer_load_dwordx4 @T4, $Q:4, $B offen lds
    K2_NOC2:
    """)
    lstamp(a, opt, "ciss")
    a("""
    s_mov_b32 $H, s4
    s_mov_b32 $H+1, s5
    s_mov_b32 $H+2, #(N*256)
    s_mov_b32 $H+3, 0x20000
    v_lshrrev_b32 @T3, 4, @L
    v_and_b32 @T1, 3, @L
    v_xor_b32 @T0, @T3, @T1
    v_lshlrev_b32 @T0, 4, @T0
    v_lshrrev_b32 @T2, 2, @L
    v_lshl_add_u32 @T0, @T2, 8, @T0
    s_lshr_b32 $B, s3, 1
    s_lshl_b32 $B, $B, 4
    s_add_u32 $B, $B, $E
    s_lshl_b32 $B, $B, 1
    s_and_b32 $D8, s3, 1
    s_add_u32 $B, $B, $D8
    s_lshl_b32 $B, $B, 7
    s_lshl_b32 $D8, s3, 11
    s_add_u32 m0, $D8, #(L_H)
    v_add_u32 @T0, $B, @T0
    buffer_load_dwordx4 @T0, $H:4, 0 offen lds
    s_add_u32 m0, $D8, #(L_H+1024-64)
    s_lshl_b32 $B, s3, 12
    buffer_load_dwordx4 @T0, $H:4, 0 offen offset:64 lds
    s_add_u32 $WEND, $B, #(WS_WF)
    """)

    def wload(lo, hi):
        for ks in range(lo, hi):
            a("buffer_load_dwordx4 @W1+%d:4, @T4, $Q:4, $WEND offen offset:%d" % (4 * ks, ks * 1024))
    W1PRE = opt.get("w1pre", 1)
    W1MID = opt.get("w1mid", 1)
    wload(0, W1PRE)
    lstamp(a, opt, "hiss")
    a("""
    v_mov_b32 @Z, 0
    v_mov_b32 @Z+1, 0
    v_mov_b32 @Z+2, 0
    v_mov_b32 @Z+3, 0
    s_mul_i32 $WBO8, s3, #(SW)
    v_lshlrev_b32 @T0, 3, @L
    ds_write_b64 @T0, @Z:2
    v_add_u32 @T0, $WBO8, @T4
    v_lshl_add_u32 @Hb1, @L, 2, $WBO8
    ds_write_b128 @T0, @Z:4 offset:#(L_S)
    ds_write_b128 @T0, @Z:4 offset:#(L_S+1024)
    ds_write_b32 @Hb1, @Z offset:#(L_S+2048)
    v_add_u32 @T0, $A, @T4
    s_cmp_eq_u32 $FIRST, 0
    s_cbranch_scc1 K2_NOZU
    ds_write_b128 @T0, @Z:4 offset:#(L_U)
    K2_NOZU:
    """)
    lstamp(a, opt, "zero")
    a("""
    v_lshlrev_b32 @T3, 1, @T3
    s_movk_i32 $B, 0x9c
    v_bfe_u32 @T3, $B, @T3, 2
    v_xor_b32 @T3, @T3, @T2
    v_and_b32 @T3, 3, @T3
    v_and_b32 @Hb1, 15, @L
    v_lshlrev_b32 @Hb1, 6, @Hb1
    v_lshl_add_u32 @Hb1, @T3, 4, @Hb1
    v_add_u32 @Hb1, #(L_H), @Hb1
    v_mul_u32_u24 @Ch, #(CH*16), @T2
    v_lshlrev_b32 @T1, 1, @T1
    v_add_u32 @T1, $O, @T1
    s_mul_i32 $B, s3, #(CH)
    s_add_u32 $B, $B, #(WS_REC//8)
    v_add3_u32 @Ch, @Ch, @T1, $B
    v_add_u32 @T3, #(8*CH), @Ch
    s_cmp_lt_u32 s3, #(NCH-248)
    s_cselect_b32 $P1, 0, 0xf0000000
    s_add_u32 $B, $O, $QUOTA
    """)
    for i in range(4):
        a("v_pk_mov_b32 @A2+%d:2, @Z:2, @Z:2" % (2 * i))
        a("v_pk_mov_b32 @RADDR+%d:2, @Z:2, @Z:2" % (2 * i))
    for i in range(8):
        a("v_bfrev_b32 @RANK+%d, -4.0" % i if False else "v_mov_b32 @RANK+%d, 0x8000" % i)
    NPF = opt.get("qpf", 24)
    if NPF:
        a("""
        s_lshr_b32 $D8, $BK, 3
        s_lshl_b32 $D8, $D8, 3
        s_add_u32 $D8, $D8, s3
        s_mul_i32 $D8, $D8, %d
        s_and_b32 $REP, $BK, 7
        s_add_u32 $REP, $REP, 1
        s_mul_i32 $REP, $REP, #(1568*256)
        s_add_u32 $D8, $D8, $REP
        s_sub_u32 $REP, $D8, #(NQ*256)
        s_cselect_b32 $P2, $D8, $REP
        v_lshlrev_b32 @X, 7, @L
        """ % (NPF * 128))
    a("""
    s_mov_b32 $L2E, #(f32(-LOG2E))
    s_mov_b32 $L2E+1, #(f32(-LOG2E))
    s_add_u32 $POS, s22, #(WS_POS)
    s_addc_u32 $POS+1, s23, 0
    s_or_b32 $POS+1, $POS+1, 0x100000
    s_mov_b32 $POS+2, #(N)
    s_mov_b32 $POS+3, 0x20000
    s_mov_b32 $K, #(f32(2.0**-KEXP))
    s_mov_b32 $K+1, #(f32(2.0**-KEXP))
    s_mov_b32 $OUT, s20
    s_mov_b32 $OUT+1, s21
    s_add_u32 $OUT+2, $E, #(NB)
    s_min_u32 $OUT+2, $OUT+2, #(N)
    s_lshl_b32 $OUT+2, $OUT+2, 8
    s_mov_b32 $OUT+3, 0x20000
    s_xor_b32 $ATOM, $FIRST, 1
    """)
    lstamp(a, opt, "preT")
    a("""
    s_mov_b32 exec_lo, 0
    s_mov_b32 exec_hi, $P1
    s_waitcnt vmcnt(%d)
    v_mov_b32 @Tb, 0
    s_mov_b64 exec, -1
    v_and_b32 @Ra, 0xffff, @Ta
    v_and_b32 @Ra+1, 0xffff, @Tb
    v_lshrrev_b32 @Ta, 16, @Ta
    v_lshrrev_b32 @Tb, 16, @Tb
    v_min_u32 @T0, $B, @Ta
    v_min_u32 @T2, $B, @Tb
    v_sub_u32 @T0, @T0, @T1
    v_sub_u32 @T2, @T2, @T1
    v_add_lshl_u32 @Ra, @Ra, @Ch, 3
    v_add_lshl_u32 @Ra+1, @Ra+1, @T3, 3
    """ % (3 + W1PRE + (1 if NRP else 0)))
    stamp(a, opt, 2, ST)
    lstamp(a, opt, "T")
    slots = [(L, i) for L in range(3) for i in range(2)]
    rem = ("@T0", "@T2")
    for q, (L, i) in enumerate(slots[:4]):
        a("v_cmp_lt_i32 $M+%d:2, %d, %s" % (4 * q, 8 * L, rem[i]))
    for q, (L, i) in enumerate(slots[:4]):
        a("s_mov_b64 exec, $M+%d:2" % (4 * q))
        a("global_load_dwordx4 @REC0+%d:4, @Ra+%d, s[22:23] offset:%d" % (4 * q, i, 64 * L))
    a("""
    s_mov_b64 exec, -1
    v_max_i32 @S, @T0, @T2
    v_cmp_lt_i32 $M+16:2, 16, @S
    """)
    wload(W1PRE, W1PRE + W1MID)
    a("""
    s_cmp_lg_u64 $M+16:2, 0
    s_cbranch_scc1 K2_L20
    K2_L20R:
    """)
    lstamp(a, opt, "r1iss")
    a("""
    s_waitcnt vmcnt(%d) lgkmcnt(0)
    s_barrier
    """ % (4 + W1PRE + W1MID))
    lstamp(a, opt, "barA")
    for k in range(12):
        a("ds_read_b128 %s, @Hb1 offset:%d" % (v(ACC + 4 * k, 4), (k >> 2) * 4096 + (k & 3) * 1024))
    wload(W1PRE + W1MID, 4)
    NLATE = 4 - W1PRE
    for q, (L, i) in enumerate(slots[:4]):
        a("v_cmp_lt_i32 $M+%d:2, %d, %s" % (4 * q + 2, 8 * L + 1, rem[i]))
    a("""
    v_max_u32 @Ch, @Ta, @Tb
    v_cmp_lt_u32 vcc, $B, @Ch
    v_mov_b32 @T3, 1
    s_waitcnt lgkmcnt(4)
    """)
    for k in range(12, 16):
        a("ds_read_b128 %s, @Hb1 offset:%d" % (v(ACC + 4 * k, 4), (k >> 2) * 4096 + (k & 3) * 1024))
    for g, r in enumerate(TABREG):
        a("ds_read_b128 %s, @T4 offset:%d" % (v(r, 4), L_P + g * 1024))
    stamp(a, opt, 3, ST)
    lstamp(a, opt, "hbiss")
    for q in range(8):
        if q % 2 == 0:
            a("s_waitcnt vmcnt(%d)%s" % (NLATE + 3 - q // 2, " lgkmcnt(7)" if q == 0 else ""))
        if q == 0:
            stamp(a, opt, 4, ST)
            lstamp(a, opt, "R1b")
        a("s_mov_b64 exec, $M+%d:2" % (2 * q))
        a("v_lshrrev_b32 @RADDR+%d, 17, @REC0+%d" % (q, 2 * q))
        a("ds_add_rtn_u32 @RANK+%d, @RADDR+%d, @T3" % (q, q))
    M16 = "v_mfma_f32_16x16x32_bf16"
    pm = []
    for ks in range(4):
        for rg in range(4):
            pm.append("%s @EE+%d:4, @W1+%d:4, %s, %s" % (M16, 4 * rg, 4 * ks, v(ACC + 16 * rg + 4 * ks, 4), "0" if ks == 0 else "@EE+%d:4" % (4 * rg)))
    a("""
    s_mov_b64 exec, -1
    s_lshl_b32 $GW, s3, 13
    s_lshl_b32 $B, s3, 5
    s_waitcnt lgkmcnt(8)
    v_add_u32 @WA, $GW, @WA
    v_add_u32 @WA+1, $GW, @WA+1
    v_add_u32 @Pw, $B, @Pw
    s_add_u32 $GW, $GW, #(L_G)
    s_or_b64 $MASK:2, vcc, $M+16:2
    s_cbranch_scc1 K2_L2A
    K2_L2AR:
    """)
    lstamp(a, opt, "hist")
    a("""
    s_waitcnt lgkmcnt(0)
    s_barrier
    """)
    lstamp(a, opt, "barB")
    a("ds_read_b32 @T1, @Us")
    if NPF:
        a("""
        %s
        buffer_load_dword @Pf, @X, $Q:4, $P2 offen
        s_mov_b64 exec, -1
        """ % ("s_bfm_b64 exec, %d, 0" % NPF if NPF < 64 else ""))
    a("s_waitcnt vmcnt(%d)" % (1 if NPF else 0))
    a(*pm[:4])
    a("s_waitcnt lgkmcnt(0)", "v_mov_b32 @Incl, @T1")
    stamp(a, opt, 5, ST)
    lstamp(a, opt, "cnt")
    scan64(a, VR["Incl"], pm[4:])
    lstamp(a, opt, "scan")
    a("""
    v_sub_u32 @Ch, @Incl, @T1
    v_readlane_b32 $TOTAL, @Incl, 63
    ds_write_b32 @Us, @Ch offset:#(L_EXC)
    """)
    for q in range(8):
        a("ds_read_b32 @RADDR+%d, @RADDR+%d offset:#(L_EXC)" % (q, q))
    a("""
    s_cmp_gt_u32 $TOTAL, #(CAP)
    s_cbranch_scc1 K2_OVERFLOW
    """)
    for i in range(8):
        a("v_pk_mul_f32 @EE+%d:2, @EE+%d:2, $L2E:2" % (2 * i, 2 * i))
    for q in range(8):
        a("s_waitcnt lgkmcnt(7)")
        a("v_add_lshl_u32 @RADDR+%d, @RADDR+%d, @RANK+%d, 3" % (q, q, q))
        a("ds_write_b64 @RADDR+%d, @REC0+%d:2 offset:#(L_REC)" % (q, 2 * q))
    lstamp(a, opt, "scat")
    for i in range(8):
        a("v_cvt_pk_bf16_f32 @EE+%d, @EE+%d, @EE+%d" % (i, 2 * i, 2 * i + 1))
    for rg in range(4):
        a("ds_write_b64 @Pw, @EE+%d:2 offset:%d" % (2 * rg, L_P + rg * 16 * RS))
    a("""
    v_add_lshl_u32 @T0, @L, $TOTAL, 3
    ds_write_b64 @T0, @Z:2 offset:#(L_REC)
    s_add_u32 $A, $TOTAL, 15
    s_bfe_u32 $B, $A, 0x30004
    s_lshr_b32 $A, $A, 7
    s_mul_i32 $P1, s3, $A
    s_min_u32 $D8, s3, $B
    s_add_u32 $P1, $P1, $D8
    s_cmp_lt_u32 s3, $B
    s_addc_u32 $END, $P1, $A
    s_lshl_b32 $B, $P1, 7
    s_lshl_b32 $A, $A, 4
    v_subrev_u32 @T1, 1, @T1
    v_cmp_le_u32 vcc, $A, @T1
    v_add_u32 @Idx, $B, @Idx
    v_add_u32 @Rec, $B, @Rec
    s_cmp_lt_u32 $P1, $END
    s_cselect_b32 $SEL, #(SELQ-SELW), 0
    s_add_u32 $SEL, $SEL, #(SELW)
    s_and_b32 vcc_hi, vcc_hi, 0x1ffff
    s_or_b64 $MASK:2, vcc, $M+16:2
    s_cbranch_scc1 K2_L2B
    K2_L2BR:
    """)
    lstamp(a, opt, "preC")
    a("""
    s_waitcnt lgkmcnt(0)
    s_barrier
    """)
    lstamp(a, opt, "barC")
    refstamp(a, opt, "barC", "$BK", "s[22:23]", VR["X"])
    k2_tail(a, opt, False)


def k2_tail(a, opt, fused):
    ST = VR["ST"]

    def zero(r):
        if not fused:
            a(mfma(r, VR["Z"], VR["Z"], None))
    a("""
    ds_read2_b32 @TT+4:2, @Idx offset0:0 offset1:32
    ds_read_u16 @GP, @Rec
    ds_read_u16 @Nn, @Rec offset:2
    s_lshl_b32 $P1, $P1, 4
    s_lshl_b32 $END, $END, 4
    s_min_u32 $END, $END, $TOTAL
    v_cmp_ge_u32 vcc, $P1, @Incl
    """)
    zero(ACC)
    a("""
    s_add_u32 $P2, $P1, 32
    s_min_u32 $D8, $P2, $END
    s_bcnt1_i32_b64 $B, vcc
    s_min_u32 $B, $B, 48
    s_add_u32 $A, $B, 7
    v_readlane_b32 $WEND, @Incl, $A
    v_readlane_b32 $CONTC, @Ch, $B
    s_lshl_b32 $WB8, $B, 3
    s_waitcnt lgkmcnt(1)
    """)
    stamp(a, opt, 6, ST)
    lstamp(a, opt, "idx")
    a(*PERMS)
    gather_pos(a)
    ND1 = opt.get("nd1", 2)
    for slot in range(ND1):
        dma(a, slot)
    lstamp(a, opt, "dma01")
    zero(ACC + 16)
    a("""
    s_mov_b32 exec_lo, 0
    s_lshl_b32 $A, $WB8, 1
    v_subrev_u32 @Xb, $A, @Xb
    s_mul_i32 $A, $WB8, 34
    v_add_u32 @B3a, $A, @B3a
    s_mov_b32 exec_lo, -1
    s_cmp_gt_u32 $D8, $WEND
    s_cselect_b32 $REP, 1, 0
    s_cselect_b32 $P2, $P1, $P2
    s_cselect_b32 $A, 0, 256
    s_waitcnt lgkmcnt(0)
    v_lshl_add_u32 @X, @Nn, 1, @Xb
    v_add_u32 @Idx, $A, @Idx
    ds_read_b96 @TT:3, @X
    ds_read2_b32 @TT+4:2, @Idx offset0:0 offset1:32
    """)
    for t in range(4):
        for jj in range(2):
            a("ds_read_b64_tr_b16 @B3+%d:2, @B3a offset:%d" % (4 * t + 2 * jj, jj * 4 * RS + t * 64))
    zero(ACC + 32)
    a("""
    s_min_u32 $B, $D8, $WEND
    s_sub_u32 $B, $B, $P1
    s_bfm_b64 $MASK:2, $B, 0
    s_mov_b32 $D8, $A
    s_cmp_lt_u32 $CONTC, $P1
    s_cselect_b32 $CONTC, 1, 0
    s_sub_u32 $A, $WBO8, $WB8
    v_add_u32 @Sb, $A, @Sb
    v_add_u32 @S, @Nn, @Sb
    """)
    if not fused:
        a("v_add_u32 @A2a, $WBO8, @A2a", "v_add_u32 @Cq, $GW, @Cq")
    a("""
    s_mov_b32 $CN, -1
    s_mov_b32 $FLUSH, 0
    s_mov_b32 $REB, 0
    s_mov_b32 $WBO8, 0
    """)
    zero(ACC + 48)
    lstamp(a, opt, "logic")
    if not fused:
        a("""
        s_lshr_b32 $RE, s3, 2
        s_lshl_b32 $A, $RE, 5
        s_add_u32 $A, $A, $E
        s_lshl_b32 $A, $A, 2
        s_and_b32 $B, s3, 3
        s_add_u32 $A, $A, $B
        s_lshl_b32 $A, $A, 6
        v_add_u32 @Out, $A, @Out
        s_mul_i32 $A, $RE, #(32*RS)
        v_add_u32 @Mr, $A, @Mr
        s_lshl_b32 $A, $RE, 13
        v_add_u32 @Hop, $A, @Hop
        s_lshl_b32 $RE, $B, 10
        s_add_u32 $A, $A, $RE
        v_add_u32 @HRa, $A, @HRa
        """)
        zero(D1)
        a("""
        s_lshl_b32 $A, $B, 13
        v_add_u32 @Wa, $A, @Wa
        s_lshl_b32 $A, $B, 8
        s_add_u32 $A, $A, #(L_POSD)
        v_add_u32 @Us, $A, @Us
        s_lshl_b32 $A, s3, 10
        v_add_u32 @fU, $A, @fU
        v_add_u32 @stW, $GW, @stW
        v_add_u32 @stR, $GW, @stR
        """)
    a("""
    s_cmp_ge_u32 $P1, $END
    s_cbranch_scc1 K2_EMPTY
    s_cmp_lt_u32 $P2, $END
    s_cselect_b32 $SEL, $SEL, #(SELW)
    """)
    stamp(a, opt, 7, ST)
    lstamp(a, opt, "preg")
    a("s_waitcnt vmcnt(%d) lgkmcnt(0)" % (2 * ND1))
    stamp(a, opt, 8, ST)
    lstamp(a, opt, "gath")
    a(*(GEOM_A + GEOM_B + GEOM_C + ["s_waitcnt vmcnt(%d)" % (2 * ND1 - 2)]))
    cq_read(a, 0)
    a(*GEOM_D)
    a3_reads(a)
    for slot in range(ND1, 4):
        dma(a, slot)
    a("v_add_u32 @Rec, $D8, @Rec")
    a(*PERMS)
    if fused:
        a(SRDSW)
    a("s_waitcnt lgkmcnt(0)")
    a(mfma(D0, A3, B3, CQ))
    dma(a, 0)
    stamp(a, opt, 9, ST)
    lstamp(a, opt, "loop")
    if opt.get("stamps"):
        a("s_mov_b32 s19, 16")
    a("""
    s_setprio 0
    s_sub_u32 $A, $END, $P1
    s_mov_b32 $P1, $P2
    s_cmp_lt_u32 $P1, $END
    s_cselect_b32 $A, 32, $A
    s_cmp_le_u32 $A, 16
    s_cbranch_scc1 K2_HALF
    """)
    a(".p2align 3", "K2_LOOP:")
    step(a, False, opt)
    a("s_setprio 0")
    if opt.get("stamps"):
        a("s_memtime s[100:101]", "s_waitcnt lgkmcnt(0)", "s_mov_b32 m0, s19", "v_writelane_b32 @ST, s100, m0", "s_add_u32 s19, s19, 1")
    a("""
    s_sub_i32 $A, $END, $P1
    s_mov_b32 $P1, $P2
    s_cmp_lt_u32 $P1, $END
    s_cselect_b32 $A, 32, $A
    s_cmp_gt_i32 $A, 16
    s_cbranch_scc1 K2_LOOP
    s_cmp_le_i32 $A, 0
    s_cbranch_scc1 K2_TAILF
    K2_HALF:
    """)
    step(a, True, opt)
    a(*cvts(D1, 4))
    a("s_setprio 0", "s_branch K2_FIN")
    a("K2_TAILF:")
    cv = cvts(D1, 8)
    a(*(cv[4:] + cv[:4]))
    a(mfma(ACC + 48, A2 + 4, PP + 4, ACC + 48), "s_nop 0")
    a("K2_FIN:")
    a(mfma(ACC + 48, A2, PP, ACC + 48))
    stamp(a, opt, 10, ST)
    lstamp(a, opt, "fin")
    refstamp(a, opt, "fin", "$BK", "s[22:23]", VR["X"])
    a("""
    s_mov_b32 $WBO8, $WB8
    s_mov_b32 $CONTO, $CONTC
    s_mov_b32 $RE, $END
    """)
    flush_m(a, "F")
    a("K2_JOIN:")
    stamp(a, opt, 11, ST)
    lstamp(a, opt, "join")
    a(U_PRE)
    a("""
    v_xor_b32 @T0, 32, @Hop
    v_xor_b32 @T2, 16, @HRa
    s_waitcnt lgkmcnt(4)
    """)
    for ks in range(8):
        a("ds_read_b128 @HB+%d:4, %s offset:%d" % (4 * ks, "@T0" if ks & 1 else "@Hop", (ks >> 1) * 1024))
    a("""
    ds_read_b128 @HR:4, @HRa
    ds_read_b128 @HR+4:4, @T2
    s_mul_i32 $A, $CN, #(RS)
    s_add_u32 $A, $A, #(L_M)
    v_add_u32 @T3, $A, @fM
    v_xor_b32 @T0, 32, @Wa
    s_waitcnt vmcnt(0) lgkmcnt(10)
    s_barrier
    """)
    stamp(a, opt, 12, ST)
    lstamp(a, opt, "barD")
    uf, ur = u_part()
    FIX = """
    v_lshlrev_b32 @TT+2, 16, @TT
    v_and_b32 @TT+3, 0xffff0000, @TT
    v_lshlrev_b32 @TT+4, 16, @TT+1
    v_and_b32 @TT+5, 0xffff0000, @TT+1
    v_add_f32 @TT+2, @TT+2, @CONT
    v_add_f32 @TT+3, @TT+3, @CONT+1
    v_add_f32 @TT+4, @TT+4, @CONT+2
    v_add_f32 @TT+5, @TT+5, @CONT+3
    v_cvt_pk_bf16_f32 @TT, @TT+2, @TT+3
    v_cvt_pk_bf16_f32 @TT+1, @TT+4, @TT+5
    s_mov_b32 exec_hi, 0
    ds_write2_b32 @T3, @TT, @TT+1 offset0:0 offset1:32
    s_mov_b32 exec_hi, -1
    """
    rest = uf[12:] + ur
    per = opt.get("uper", 7)
    if fused:
        def wtr(dst, ks, off):
            for jj in range(2):
                a("ds_read_b64_tr_b16 %s, @Wa offset:%d" % (v(dst + 4 * ks + 2 * jj, 2), off + (ks >> 1) * 8192 + (ks & 1) * 1024 + jj * 256))
        a("ds_read2_b32 @TT:2, @T3 offset0:0 offset1:32", "s_waitcnt lgkmcnt(2)")
        for ks in range(6):
            wtr(VR["WH1"], ks, 0)
        a(*uf[:12])
        a("s_cmp_lt_i32 $CN, 0", "s_cbranch_scc1 K2_NOFIX", "s_waitcnt lgkmcnt(12)", FIX, "K2_NOFIX:", "s_waitcnt lgkmcnt(0)")
        for ks in range(6, 8):
            wtr(VR["WH1"], ks, 0)
        for ks in range(8):
            if ks == 6:
                a("s_waitcnt lgkmcnt(12)")
            a(mfma(VR["H1"], VR["WH1"] + 4 * ks, VR["HB"] + 4 * ks, None if ks == 0 else VR["H1"]))
            wtr(VR["WH2"], ks, 32768)
            if ks < 7:
                a(*rest[per * ks:per * ks + per])
    else:
        a("ds_read2_b32 @TT:2, @T3 offset0:0 offset1:32", "s_waitcnt lgkmcnt(6)")
        for ks in range(8):
            a("ds_read_b128 @WH1+%d:4, %s offset:%d" % (4 * ks, "@T0" if ks & 1 else "@Wa", (ks >> 1) * 2048))
        a(*uf[:12])
        a("s_cmp_lt_i32 $CN, 0", "s_cbranch_scc1 K2_NOFIX", "s_waitcnt lgkmcnt(8)", FIX, "K2_NOFIX:", "s_waitcnt lgkmcnt(1)")
        for ks in range(8):
            a("ds_read_b128 @WH2+%d:4, %s offset:%d" % (4 * ks, "@T0" if ks & 1 else "@Wa", 32768 + (ks >> 1) * 2048))
        for ks in range(8):
            if ks == 7:
                a("s_waitcnt lgkmcnt(8)")
            a(mfma(VR["H1"], VR["WH1"] + 4 * ks, VR["HB"] + 4 * ks, None if ks == 0 else VR["H1"]))
            if ks < 7:
                a(*rest[per * ks:per * ks + per])
    a(*rest[per * 7:])
    a("""
    v_mov_b32 @T0, 0
    s_cbranch_vccnz K2_NAN
    K2_NANR:
    """)
    lstamp(a, opt, "preE")
    a("""
    s_waitcnt lgkmcnt(0)
    s_barrier
    """)
    lstamp(a, opt, "barE")
    for ks in range(8):
        a("ds_read_b128 @MB+%d:4, @Mr offset:%d" % (4 * ks, L_M + ks * 32))
    a("ds_read_b64 @GP:2, @T0 offset:#(L_FLAG)")
    for i in range(8):
        a("v_pk_mul_f32 @H1+%d:2, @H1+%d:2, $L2E:2" % (2 * i, 2 * i))
    assert L_U == L_POSD + 1024
    a("""
    s_cmp_lt_u32 s3, 4
    s_cbranch_scc1 K2_NOPOS
    """)
    for i in range(4):
        a("ds_read2st64_b32 @TT+%d:2, @Us offset0:%d offset1:%d" % (2 * i, 8 * i + 4, 8 * i + 8))
    a("""
    ds_read_b32 @PP, @Us
    v_bfe_u32 @T1, @Tid, 2, 6
    s_mul_i32 $B, s2, #(NB)
    v_add_u32 @T1, $B, @T1
    s_lshr_b32 $A, $OUT+2, 8
    v_cmp_gt_u32 vcc, $A, @T1
    v_mul_u32_u24 @T1, 6, @T1
    v_and_b32 @T2, 3, @Tid
    v_lshl_add_u32 @T1, @T2, 1, @T1
    v_add_u32 @T1, #(N*256), @T1
    s_mov_b32 $A, 0x77777777
    s_waitcnt lgkmcnt(0)
    v_add_f32 @TT, @TT, @TT+1
    v_add_f32 @TT+2, @TT+2, @TT+3
    v_add_f32 @TT+4, @TT+4, @TT+5
    v_add_f32 @TT+6, @TT+6, @TT+7
    v_add_f32 @TT, @TT, @TT+2
    v_add_f32 @TT+4, @TT+4, @TT+6
    v_add_f32 @TT, @TT, @TT+4
    v_add_f32 @TT, @TT, @PP
    v_cvt_pk_bf16_f32 @TT, @TT, @TT
    s_and_b32 exec_lo, vcc_lo, $A
    s_and_b32 exec_hi, vcc_hi, $A
    s_cbranch_execz K2_NOPOS2
    global_store_short @T1, @TT, s[20:21]
    K2_NOPOS2:
    s_mov_b64 exec, -1
    s_setprio 1
    K2_NOPOS:
    """)
    hu = []
    for i in range(8):
        hu += ["v_lshlrev_b32 @HU+%d, 16, @HR+%d" % (2 * i, i), "v_and_b32 @HU+%d, 0xffff0000, @HR+%d" % (2 * i + 1, i)]
    for ks in range(8):
        a("s_waitcnt lgkmcnt(%d)" % (8 - ks))
        a(mfma(VR["H1"], VR["WH2"] + 4 * ks, VR["MB"] + 4 * ks, VR["H1"]))
        a(*hu[2 * ks:2 * ks + 2])
    lstamp(a, opt, "g2")
    a("""
    s_setprio 0
    s_waitcnt lgkmcnt(0)
    v_readfirstlane_b32 $A, @GP
    v_readfirstlane_b32 $E, @GP+1
    v_add_u32 @T0, 4096, @Out
    s_andn2_b32 $E, $E, $SAFE
    s_or_b32 $A, $A, $E
    s_cbranch_scc1 K2_AGAIN
    s_mov_b32 $A, #(f32(-LN2))
    s_mov_b32 $B, #(f32(-LN2))
    .p2align 3
    """)
    assert SR["A"] % 2 == 0 and SR["B"] == SR["A"] + 1
    for i in range(16):
        a("v_exp_f32 @EE+%d, @H1+%d" % (i, i))
    for i in range(16):
        a("v_add_f32 @EE+%d, 1.0, @EE+%d" % (i, i))
    for i in range(16):
        a("v_rcp_f32 @EE+%d, @EE+%d" % (i, i))
    for i in range(8):
        a("v_pk_mul_f32 @EE+%d:2, @EE+%d:2, @H1+%d:2" % (2 * i, 2 * i, 2 * i))
    for i in range(8):
        a("v_pk_fma_f32 @EE+%d:2, @EE+%d:2, $A:2, @HU+%d:2" % (2 * i, 2 * i, 2 * i))
    a(*cvts(EE, 8))
    lstamp(a, opt, "silu")
    ost = opt.get("out_store", "").replace("+", " ")
    a("""
    ds_write_b128 @stW, @PP:4
    ds_write_b128 @stW, @PP+4:4 offset:16
    ds_read_b128 @EE:4, @stR
    ds_read_b128 @EE+4:4, @stR offset:1280
    s_waitcnt lgkmcnt(1)
    buffer_store_dwordx4 @EE:4, @Out, $OUT:4, 0 offen %s
    s_waitcnt lgkmcnt(0)
    buffer_store_dwordx4 @EE+4:4, @T0, $OUT:4, 0 offen %s
    """ % (ost, ost))
    stamp(a, opt, 13, ST)
    lstamp(a, opt, "store")
    if opt.get("stamps"):
        a("v_writelane_b32 @ST, $SAFE, 40", "v_writelane_b32 @ST, $O, 41", "v_writelane_b32 @ST, $TOTAL, 42",
          "v_writelane_b32 @ST, s19, 43", "v_writelane_b32 @ST, $ATOM, 46")
    stamp_store(a, opt, ST, VR["T0"], VR["Tid"], "s[22:23]", s(SR["BK"]), 0)
    if opt.get("ls"):
        a("s_waitcnt vmcnt(0)")
        lstamp(a, opt, "end")
        a("s_waitcnt lgkmcnt(0)")
        for k in range(7):
            a("v_writelane_b32 @ST, s%d, %d" % (6 + 2 * k, k))
        a("""
        s_lshl_b32 s100, $BK, 11
        s_add_u32 s100, s100, #(WS_DBG)
        v_lshl_add_u32 @T0, @Tid, 2, s100
        global_store_dword @T0, @ST, s[22:23]
        """)
    a("K2_END:", "s_endpgm")
    a("K2_FLUSH:")
    flush_m(a, "M")
    a("s_waitcnt lgkmcnt(0)")
    a(U_PRE, "s_waitcnt lgkmcnt(0)")
    a(*(uf + ur))
    a("""
    v_mov_b32 @T0, 0
    v_mov_b32 @T1, 1
    s_cbranch_vccz K2_FL2
    ds_write_b32 @T0, @T1 offset:#(L_FLAG+4)
    K2_FL2:
    """)
    for i in range(64):
        a("v_mov_b32 %s, 0" % v(ACC + i))
    a("""
    s_mov_b32 $FLUSH, 0
    s_setpc_b64 $RET:2
    K2_NAN:
    v_mov_b32 @T1, 1
    ds_write_b32 @T0, @T1 offset:#(L_FLAG+4)
    s_branch K2_NANR
    """)
    for stub in STUBS:
        a(stub)
    del STUBS[:]
    a("K2_EMPTY:")
    for slot in range(ND1, 4):
        dma(a, slot)
    a("""
    s_waitcnt lgkmcnt(0)
    s_branch K2_JOIN
    K2_L20:
    v_cmp_lt_i32 $M+18:2, 16, @T0
    v_cmp_lt_i32 $M+20:2, 16, @T2
    v_mov_b32 @RADDR+8, 0
    v_mov_b32 @RADDR+9, 0
    v_mov_b32 @RADDR+10, 0
    v_mov_b32 @RADDR+11, 0
    v_mov_b32 @RANK+8, 0x8000
    v_mov_b32 @RANK+9, 0x8000
    v_mov_b32 @RANK+10, 0x8000
    v_mov_b32 @RANK+11, 0x8000
    s_mov_b64 exec, $M+18:2
    global_load_dwordx4 @REC0+16:4, @Ra, s[22:23] offset:128 sc1
    s_mov_b64 exec, $M+20:2
    global_load_dwordx4 @REC0+20:4, @Ra+1, s[22:23] offset:128 sc1
    s_mov_b64 exec, -1
    s_branch K2_L20R
    K2_L2A:
    s_cbranch_vccz K2_L2A1
    ds_write_b32 @Z, @T3 offset:#(L_FLAG)
    K2_L2A1:
    s_cmp_eq_u64 $M+16:2, 0
    s_cbranch_scc1 K2_L2AR
    s_mov_b64 exec, $M+20:2
    s_waitcnt vmcnt(0)
    v_lshrrev_b32 @RADDR+10, 17, @REC0+20
    ds_add_rtn_u32 @RANK+10, @RADDR+10, @T3
    s_mov_b64 exec, $M+18:2
    v_lshrrev_b32 @RADDR+8, 17, @REC0+16
    ds_add_rtn_u32 @RANK+8, @RADDR+8, @T3
    s_mov_b64 exec, -1
    v_cmp_lt_i32 $M+18:2, 17, @T0
    v_cmp_lt_i32 $M+20:2, 17, @T2
    s_nop 1
    s_mov_b64 exec, $M+18:2
    v_lshrrev_b32 @RADDR+9, 17, @REC0+18
    ds_add_rtn_u32 @RANK+9, @RADDR+9, @T3
    s_mov_b64 exec, $M+20:2
    v_lshrrev_b32 @RADDR+11, 17, @REC0+22
    ds_add_rtn_u32 @RANK+11, @RADDR+11, @T3
    s_mov_b64 exec, -1
    s_waitcnt lgkmcnt(0)
    s_branch K2_L2AR
    K2_L2B:
    s_waitcnt lgkmcnt(0)
    s_cmp_eq_u64 vcc, 0
    s_cbranch_scc1 K2_L2B1
    s_mov_b32 $ATOM, 1
    s_cmp_eq_u32 $FIRST, 0
    s_cbranch_scc1 K2_L2B1
    v_lshlrev_b32 @T0, 4, @Tid
    ds_write_b128 @T0, @Z:4 offset:#(L_M)
    v_cmp_gt_u32 vcc, #((56*RS-8192)//16), @Tid
    s_nop 1
    s_and_b64 exec, vcc, vcc
    ds_write_b128 @T0, @Z:4 offset:#(L_M+8192)
    s_mov_b64 exec, -1
    K2_L2B1:
    s_cmp_eq_u64 $M+16:2, 0
    s_cbranch_scc1 K2_L2BR
    """)
    for q in range(8, 12):
        a("ds_read_b32 @RADDR+%d, @RADDR+%d offset:#(L_EXC)" % (q, q))
    a("s_waitcnt lgkmcnt(0)")
    for q in range(8, 12):
        a("v_add_lshl_u32 @RADDR+%d, @RADDR+%d, @RANK+%d, 3" % (q, q, q))
        a("ds_write_b64 @RADDR+%d, @REC0+%d:2 offset:#(L_REC)" % (q, 2 * q))
    a("""
    s_branch K2_L2BR
    K2_AGAIN:
    s_add_u32 $O, $O, $QUOTA
    s_mov_b32 $FIRST, 0
    s_cmp_eq_u32 $E, 0
    s_cbranch_scc1 K2_AGAIN2
    s_mov_b32 $SAFE, 1
    s_mov_b32 $O, 0
    s_mov_b32 $FIRST, 1
    K2_AGAIN2:
    s_nop 15
    s_waitcnt vmcnt(0) lgkmcnt(0)
    s_barrier
    """)
    if fused:
        a("v_and_b32 @L, 63, @Tid", T_ISSUE)
    a("""
    s_branch K2_ROUND
    K2_OVERFLOW:
    s_mov_b32 $QUOTA, 7
    s_branch K2_AGAIN2
    K2_REBASE:
    s_cmp_eq_u32 $REP, 0
    s_cselect_b32 $A, $P1, $WEND
    v_cmp_ge_u32 vcc, $A, @Incl
    s_nop 1
    s_bcnt1_i32_b64 $B, vcc
    s_add_u32 $D8, $B, 7
    v_readlane_b32 $WEND, @Incl, $D8
    s_lshl_b32 $D8, $B, 3
    s_cmp_eq_u32 $D8, $WB8
    s_cbranch_scc1 K2_RB2
    s_mov_b32 $WBO8, $WB8
    s_mov_b32 $WB8, $D8
    s_mov_b32 $FLUSH, 1
    s_mov_b32 $REB, 1
    s_mov_b32 $RE, $A
    s_mov_b32 $CONTO, $CONTC
    s_sub_u32 $D8, $B, 1
    v_readlane_b32 $CONTC, @Incl, $D8
    s_nop 1
    s_cmp_lt_u32 $CONTC, $A
    s_cselect_b32 $CONTC, 2, 0
    s_sub_u32 $B, $WBO8, $WB8
    v_add_u32 @Sb, $B, @Sb
    s_mov_b32 exec_lo, 0
    s_lshl_b32 $D8, $B, 1
    v_add_u32 @Xb, $D8, @Xb
    s_mul_i32 $D8, $B, -34
    v_add_u32 @B3a, $D8, @B3a
    s_mov_b32 exec_lo, -1
    K2_RB2:
    s_min_u32 $B, $E, $WEND
    s_sub_u32 $B, $B, $A
    s_sub_u32 $A, $A, $P1
    s_bfm_b64 $MASK:2, $B, $A
    s_cmp_gt_u32 $E, $WEND
    s_cselect_b32 $REP, 1, 0
    s_cselect_b32 $P2, $P1, $P2
    s_setpc_b64 $RET:2
    K2_B3LOAD:
    """)
    for t in range(4):
        for jj in range(2):
            a("ds_read_b64_tr_b16 @B3+%d:2, @B3a offset:%d" % (4 * t + 2 * jj, jj * 4 * RS + t * 64))
    a("s_mov_b32 $REB, 0", "s_setpc_b64 $RET:2")
    a("K2_LAST:")
    for par, D in ((0, D0), (1, D1)):
        a("K2_CLAMP%d:" % par, "s_nop 11")
        for i in range(16):
            a("v_min_f32 %s, #(f32(126.0)), %s" % (v(D + i), v(D + i)))
        a("s_setpc_b64 $RET:2")


WS_F2, WS_NONCE = WS_WF, WS_WF + 0x80000
T_ISSUE = """
    v_lshrrev_b32 @Tad, 2, @L
    s_lshl_b32 $A, s3, 5
    v_add_u32 @Tad, $A, @Tad
    v_mul_u32_u24 @Tad, #(TSTRIDE), @Tad
    s_lshr_b32 $A, s2, 2
    s_lshl_b32 $A, $A, 4
    s_add_u32 $A, $A, #(WS_T)
    v_add_u32 @Tad, $A, @Tad
    v_add_u32 @Tad+1, #(16*TSTRIDE), @Tad
    global_load_dwordx4 @Tg:4, @Tad, s[22:23] sc1
    global_load_dwordx4 @Tg+4:4, @Tad+1, s[22:23] sc1
"""


def pstamp(a, opt, name):
    names = opt.get("ls", "").split("+") if opt.get("ls") else []
    if name in names:
        k = 72 + 2 * names.index(name)
        a("%s s[%d:%d]" % ("s_memrealtime" if opt.get("lsreal") else "s_memtime", k, k + 1))


def gen_fused(a, opt):
    ST = VR["ST"]
    FST, FREP = opt.get("fst", 32), opt.get("frep", 1)
    ld = opt.get("k1_ld", "").replace("+", " ")
    hld = opt.get("k1_hld", "").replace("+", " ")
    a("""
    %s_kernel:
    s_cmp_ge_u32 s2, 256
    s_cbranch_scc1 K2_END
    s_load_dwordx16 s[4:19], s[0:1], 0
    s_load_dwordx2 s[22:23], s[0:1], 80
    s_load_dwordx2 s[20:21], s[0:1], 64
    """ % NAME)
    pstamp(a, opt, "p_entry")
    NCP = 1 if opt.get("codepf", 1) else 0
    if NCP:
        a("""
        s_getpc_b64 s[24:25]
        F_PC:
        v_lshrrev_b32 v1, 6, v0
        v_and_b32 v2, 3, v0
        v_lshl_add_u32 v1, v1, 2, v2
        s_bfe_u32 s26, s2, 0x20003
        v_lshl_add_u32 v1, v1, 2, s26
        v_lshlrev_b32 v1, 7, v1
        v_min_u32 v1, K2_LAST-F_PC, v1
        v_mov_b32 v3, s25
        v_add_co_u32 v2, vcc, s24, v1
        s_mov_b64 exec, 15
        s_nop 0
        v_addc_co_u32 v3, vcc, 0, v3, vcc
        global_load_dword @Pf, v[2:3], off
        s_mov_b64 exec, -1
        """)
    a("""
    v_mov_b32 @Tid, v0
    v_lshrrev_b32 v1, 6, v0
    s_mov_b32 $BK, s2
    v_readfirstlane_b32 s3, v1
    """)
    refstamp(a, opt, "k1", "$BK", "s[22:23]", VR["X"])
    a("""
    s_and_b32 $A, s2, 7
    s_lshl_b32 $A, $A, 5
    s_lshr_b32 s2, s2, 3
    s_add_u32 s2, s2, $A
    s_mul_i32 $E, s2, #(NB)
    v_and_b32 @L, 63, v0
    v_mov_b32 @Z, 0
    v_mov_b32 @Z+1, 0
    v_lshlrev_b32 v3, 2, v0
    ds_write_b32 v3, @Z offset:#(L_REC)
    v_cmp_gt_u32 vcc, 400, v0
    s_min_u32 $A, $BK, #(NCH-1)
    s_mul_i32 $A, $A, #(CH*4)
    v_min_u32 v4, 399, v0
    v_lshl_add_u32 v4, v4, 4, $A
    v_lshrrev_b32 v5, 1, v4
    s_lshr_b32 $A, $BK, 3
    s_lshl_b32 $A, $A, 3
    s_add_u32 $A, $A, s3
    s_lshl_b32 $A, $A, 8
    v_and_b32 v21, 1, v0
    v_lshl_add_u32 v21, v21, 7, $A
    s_cmp_lt_u32 $BK, #(NCH)
    s_cselect_b64 $MASK:2, vcc, 0
    v_lshrrev_b32 v44, 4, @L
    v_and_b32 v45, 3, @L
    v_lshrrev_b32 v46, 2, @L
    v_xor_b32 @WA, v44, v45
    v_lshlrev_b32 @WA, 4, @WA
    v_lshl_add_u32 @WA, v46, 8, @WA
    s_lshr_b32 $B, s3, 1
    s_lshl_b32 $B, $B, 4
    s_add_u32 $B, $B, $E
    s_lshl_b32 $B, $B, 1
    s_and_b32 $D8, s3, 1
    s_add_u32 $B, $B, $D8
    s_lshl_b32 $B, $B, 7
    v_add_u32 v6, $B, @WA
    s_lshl_b32 $D8, s3, 11
    s_add_u32 m0, $D8, #(L_H)
    s_mov_b32 $H+2, #(N*256)
    s_mov_b32 $H+3, 0x20000
    v_mov_b32 v7, #(WS_NONCE)
    s_waitcnt lgkmcnt(0)
    """)
    pstamp(a, opt, "p_karg")
    hdma = """
    buffer_load_dwordx4 v6, $H:4, 0 offen %s lds
    s_add_u32 m0, $D8, #(L_H+1024-64)
    global_load_dwordx2 v[18:19], v7, s[22:23]
    buffer_load_dwordx4 v6, $H:4, 0 offen offset:64 %s lds
    """ % (hld, hld)
    wsetup = """
    v_lshlrev_b32 v3, 3, v0
    ds_write_b64 v3, @Z:2 offset:#(L_IMG)
    s_mov_b32 $T, s14
    s_mov_b32 $T+1, s15
    s_mov_b32 $T+2, #(258*256)
    s_mov_b32 $T+3, 0x20000
    v_lshlrev_b32 v47, 2, v44
    v_and_b32 v48, 15, @L
    v_xor_b32 v47, v47, v48
    v_lshlrev_b32 v47, 4, v47
    v_lshl_add_u32 v47, v44, 8, v47
    s_lshl_b32 $P1, s3, 12
    s_add_u32 $P2, $P1, 32768
    s_add_u32 m0, $P1, #(L_G)
    v_lshlrev_b32 v3, 4, @L
    """
    w2dma = ["buffer_load_dwordx4 v47, $T:4, $P2 offen offset:%d lds" % (i * 1024) for i in range(4)]
    w1dma = ["s_add_u32 m0, $P1, #(L_G+32768)", "v_and_b32 v50, 255, v0", "v_and_b32 v51, 127, v0"]
    w1dma += ["buffer_load_dwordx4 v47, $T:4, $P1 offen offset:%d lds" % (i * 1024) for i in range(4)]
    w1dma += ["v_lshlrev_b32 v50, 1, v50", "v_add_u32 v50, 65536, v50", "v_lshlrev_b32 v51, 1, v51",
              "global_load_ushort v52, v50, s[14:15]", "global_load_ushort v53, v51, s[16:17]"]

    gaddr = """
    v_bfe_u32 v54, @L, 2, 2
    v_lshrrev_b32 @Hh, 5, @L
    v_bfe_u32 v55, @L, 4, 1
    s_and_b32 $B, s3, 3
    v_xor_b32 v56, $B, v54
    v_lshlrev_b32 v56, 6, v56
    v_lshl_add_u32 v56, v54, 8, v56
    v_lshl_add_u32 v56, @Hh, 11, v56
    v_and_b32 v57, 1, @L
    v_lshl_add_u32 v56, v57, 5, v56
    v_lshl_add_u32 v56, v55, 4, v56
    v_bfe_u32 v57, @L, 1, 1
    v_lshl_add_u32 v56, v57, 3, v56
    v_add_u32 v56, #(L_G), v56
    v_xor_b32 v58, v54, @Hh
    v_lshlrev_b32 v58, 4, v58
    v_lshl_add_u32 @Hop, v48, 6, v58
    v_lshl_add_u32 @Hop, v55, 12, @Hop
    s_lshr_b32 $REP, s3, 2
    s_lshl_b32 $A, $REP, 13
    s_add_u32 $A, $A, #(L_H)
    v_add_u32 @Hop, $A, @Hop
    v_xor_b32 v59, 32, @Hop
    v_and_b32 v60, 31, @L
    s_mul_i32 $WBO8, s3, #(SW)
    s_add_u32 $A, $WBO8, #(L_S)
    v_bfe_u32 v57, @L, 1, 2
    v_lshlrev_b32 v61, 1, @Hh
    v_xor_b32 v61, v61, v57
    v_lshlrev_b32 v61, 4, v61
    v_lshl_add_u32 v61, v60, 6, v61
    v_add_u32 v61, $A, v61
    v_xor_b32 v62, 16, v61
    v_bfe_u32 v57, @L, 3, 2
    v_xor_b32 v63, v45, v57
    v_lshlrev_b32 v63, 4, v63
    v_lshl_add_u32 v63, v46, 6, v63
    v_add_u32 v63, $A, v63
    v_lshlrev_b32 @Out, 8, v46
    v_lshl_add_u32 @Out, v45, 4, @Out
    s_lshl_b32 $A, $REP, 5
    s_add_u32 $A, $A, $E
    s_lshl_b32 $A, $A, 2
    s_add_u32 $A, $A, $B
    s_lshl_b32 $A, $A, 6
    v_add_u32 @Out, $A, @Out
    v_add_u32 @T0, 4096, @Out
    s_mov_b32 $Q, s22
    s_mov_b32 $Q+1, s23
    s_add_u32 $Q+2, $E, #(NB)
    s_min_u32 $Q+2, $Q+2, #(N)
    s_lshl_b32 $Q+2, $Q+2, 8
    s_mov_b32 $Q+3, 0x20000
    s_mov_b32 $L2E, #(f32(-LOG2E))
    s_mov_b32 $L2E+1, #(f32(-LOG2E))
"""

    def scan1():
        a("""
        s_waitcnt lgkmcnt(0)
        v_add_u32 v40, v36, v37
        v_add3_u32 v40, v40, v38, v39
        v_mov_b32 v49, v40
        """)
        scan64(a, 49)
        a("""
        v_sub_u32 v40, v49, v40
        v_add_u32 v41, v40, v36
        v_add_u32 v42, v41, v37
        v_add_u32 v43, v42, v38
        """)
    W2E = opt.get("w2e", 2)
    a("""
    s_mov_b64 exec, $MASK:2
    global_load_dwordx4 v[8:11], v4, s[12:13] %s
    s_mov_b64 exec, 3
    global_load_dword v22, v21, s[14:15]
    s_mov_b64 exec, -1
    global_load_dwordx2 v[18:19], v7, s[22:23]
    s_mov_b32 $H, s4
    s_mov_b32 $H+1, s5
    s_barrier
    buffer_load_dwordx4 v6, $H:4, 0 offen %s lds
    s_add_u32 m0, $D8, #(L_H+1024-64)
    s_nop 0
    buffer_load_dwordx4 v6, $H:4, 0 offen offset:64 %s lds
    """ % (ld, hld, hld))
    a(wsetup)
    a(*w2dma[:W2E])
    a(gaddr)
    a("""
    s_cmp_lg_u32 s3, 7
    s_cbranch_scc1 F_X2
    v_add_u32 v20, $E, @L
    v_cmp_gt_u32 vcc, #(N), v20
    v_mul_u32_u24 v21, 6, v20
    s_and_b32 $M+22, vcc_lo, -1
    s_and_b32 $M+23, vcc_hi, 0x1ffff
    s_mov_b64 exec, $M+22:2
    global_load_ushort v8, v21, s[6:7]
    global_load_ushort v9, v21, s[6:7] offset:2
    global_load_ushort v10, v21, s[6:7] offset:4
    s_mov_b64 exec, -1
    s_branch F_X3
    F_X2:
    s_mov_b32 $A, -49
    v_mov_b32 v2, 1
    s_mov_b64 exec, $MASK:2
    s_waitcnt vmcnt(%d)
    """ % (4 + W2E))
    pstamp(a, opt, "p_dst")
    for k in range(4):
        a("v_mul_u32_u24 %s, 21400, %s" % (v(28 + k), v(8 + k)))
        a("v_lshrrev_b32 %s, 20, %s" % (v(28 + k), v(28 + k)))
        a("v_mad_i32_i24 %s, %s, $A, %s" % (v(8 + k), v(28 + k), v(8 + k)))
        a("v_lshlrev_b32 %s, 2, %s" % (v(28 + k), v(28 + k)))
        a("ds_add_rtn_u32 %s, %s, v2 offset:#(L_REC)" % (v(32 + k), v(28 + k)))
    se = """
    s_mov_b64 exec, $MASK:2
    global_load_dwordx4 v[12:15], v4, s[10:11] %s
    global_load_dwordx2 v[16:17], v5, s[8:9] %s
    s_mov_b64 exec, -1
    """ % (ld, ld)
    a("s_mov_b64 exec, -1", "F_X3:")
    SEP = opt.get("sep", 1)
    if SEP == 0:
        a(*w2dma[W2E:])
        a(se)
    a("s_waitcnt lgkmcnt(0)", "s_barrier")
    pstamp(a, opt, "p_b2")
    a("ds_read_b128 v[36:39], v3 offset:#(L_REC)")
    if SEP == 1:
        a(*w2dma[W2E:])
        a(se)
    scan1()
    a("""
    s_cmp_eq_u32 s3, 7
    s_cbranch_scc1 F_X4
    ds_write_b128 v3, v[40:43] offset:#(L_REC+1024)
    s_mov_b64 exec, $MASK:2
    """)
    for k in range(4):
        a("ds_read_b32 %s, %s offset:#(L_REC+1024)" % (v(28 + k), v(28 + k)))
    a("s_mov_b64 exec, -1")
    a("""
    F_X4:
    """)
    if SEP == 2:
        a(*w2dma[W2E:])
        a(se)
    a("""
    s_mul_i32 $A, $BK, #(CH*8)
    s_add_u32 $A, $A, #(WS_REC)
    v_lshlrev_b32 v2, 4, v0
    v_add_u32 v36, $A, v2
    v_add_u32 v37, 6400, v36
    s_mov_b32 $WB8, 0x01000100
    s_mov_b32 $WEND, 0x03020302
    s_waitcnt vmcnt(8)
    v_readfirstlane_b32 $TAG, v18
    v_readfirstlane_b32 $TAG+1, v19
    s_add_u32 $TAG, $TAG, 1
    s_addc_u32 $TAG+1, $TAG+1, 0
    s_cmp_lg_u32 s3, 7
    s_cbranch_scc1 F_X5
    v_lshl_or_b32 v40, v41, 11, v40
    v_lshl_or_b32 v40, v42, 22, v40
    v_lshrrev_b32 v41, 10, v42
    v_lshl_or_b32 v41, v43, 1, v41
    v_lshl_or_b32 v41, v49, 12, v41
    s_mul_i32 $A, $BK, #(TSTRIDE)
    s_add_u32 $A, $A, #(WS_T)
    v_add_u32 v39, $A, v3
    v_mov_b32 v42, $TAG
    v_mov_b32 v43, $TAG+1
    global_store_dwordx4 v39, v[40:43], s[22:23] sc1
    F_X5:
    s_waitcnt vmcnt(2) lgkmcnt(0)
    s_barrier
    """)
    pstamp(a, opt, "p_b2b")
    HBq, WAq, WAp, DP = 64, 128, 0, 112

    def wrd(dst, ks, off):
        a("ds_read_b64_tr_b16 %s, v56 offset:%d" % (v(dst + 4 * ks, 2), off + ks * 4096))
        a("ds_read_b64_tr_b16 %s, v56 offset:%d" % (v(dst + 4 * ks + 2, 2), off + ks * 4096 + 1024))

    def rd(ks):
        wrd(WAq, ks, 0)
        a("ds_read_b128 %s, %s offset:%d" % (v(HBq + 4 * ks, 4), "v59" if ks & 1 else "@Hop", (ks >> 1) * 1024))
    for ks in range(4):
        rd(ks)
    for ks in range(8):
        if ks + 4 < 8:
            rd(ks + 4)
        a("s_waitcnt lgkmcnt(%d)" % (3 * min(4, 7 - ks)))
        a(mfma(EE, WAq + 4 * ks, HBq + 4 * ks, None if ks == 0 else EE))
    a("""
    s_cmp_eq_u32 s3, 7
    s_cbranch_scc1 F_X6
    s_mov_b64 exec, $MASK:2
    s_waitcnt vmcnt(0)
    """)
    for k in range(4):
        a("v_lshl_or_b32 %s, %s, 19, %s" % (v(20 + 2 * k), v(8 + k), v(12 + k)))
        a("v_perm_b32 %s, %s, %s, %s" % (v(21 + 2 * k), v(16 + k // 2), v(16 + k // 2), "$WEND" if k & 1 else "$WB8"))
        a("v_add_lshl_u32 %s, %s, %s, 3" % (v(28 + k), v(28 + k), v(32 + k)))
        a("ds_write_b64 %s, %s offset:#(L_REC+2048)" % (v(28 + k), v(20 + 2 * k, 2)))
    a("""
    s_branch F_X7
    F_X6:
    v_lshlrev_b32 v8, 16, v8
    v_lshlrev_b32 v9, 16, v9
    v_lshlrev_b32 v10, 16, v10
    v_mov_b32 v11, 0
    v_lshlrev_b32 v20, 4, v20
    v_add_u32 v20, #(WS_POS), v20
    s_nop 3
    s_mov_b64 exec, $M+22:2
    ds_write_b128 v3, v[8:11] offset:#(L_POSD)
    F_X7:
    s_mov_b64 exec, -1
    """)
    for i in range(8):
        a("v_pk_mul_f32 @EE+%d:2, @EE+%d:2, $L2E:2" % (2 * i, 2 * i))
    for i in range(8):
        a("v_cvt_pk_bf16_f32 @EE+%d, @EE+%d, @EE+%d" % (i, 2 * i, 2 * i + 1))
    a("""
    ds_write_b128 v61, @EE:4
    ds_write_b128 v62, @EE+4:4
    ds_read_b128 @EE+8:4, v63
    ds_read_b128 @EE+12:4, v63 offset:1024
    s_waitcnt lgkmcnt(1)
    buffer_store_dwordx4 @EE+8:4, @Out, $Q:4, 0 offen sc1
    s_waitcnt lgkmcnt(0)
    buffer_store_dwordx4 @EE+12:4, @T0, $Q:4, 0 offen sc1
    """)
    pstamp(a, opt, "p_q")
    refstamp(a, opt, "gemmend", "$BK", "s[22:23]", VR["X"])
    a("""
    s_cmp_eq_u32 s3, 7
    s_barrier
    s_cbranch_scc1 F_X8
    s_mov_b64 exec, $MASK:2
    ds_read_b128 @EE:4, v2 offset:#(L_REC+2048)
    ds_read_b128 @EE+4:4, v2 offset:#(L_REC+2048+6400)
    s_waitcnt lgkmcnt(1)
    global_store_dwordx4 v36, @EE:4, s[22:23] sc1
    s_waitcnt lgkmcnt(0)
    global_store_dwordx4 v37, @EE+4:4, s[22:23] sc1
    s_branch F_X9
    F_X8:
    s_mov_b64 exec, $M+22:2
    global_store_dwordx4 v20, v[8:11], s[22:23] sc1
    F_X9:
    s_mov_b64 exec, -1
    """)
    pstamp(a, opt, "p_rec")
    TPOS = 1
    a("""
    s_lshl_b32 $GW, s3, 13
    s_add_u32 $GW, $GW, #(L_G)
    v_lshrrev_b32 v32, 1, v46
    v_and_b32 v57, 1, v46
    v_lshl_add_u32 v32, v57, 5, v32
    s_cmp_ge_u32 s3, 4
    s_cselect_b64 vcc, -1, 0
    s_cselect_b32 $D8, 8, 16
    v_cndmask_b32_e64 v32, v46, v32, vcc
    s_and_b32 $A, s3, 5
    s_cmp_eq_u32 $A, 5
    s_cselect_b32 $A, 16, 0
    s_lshl_b32 $P2, s3, 5
    s_sub_u32 $A, $P2, $A
    v_add_lshl_u32 v32, v32, $A, 8
    v_lshl_add_u32 @WA, v45, 4, v32
    s_lshl_b32 $D8, $D8, 8
    v_add_u32 @WA+1, $D8, @WA
    s_mov_b64 $WH:2, s[18:19]
    v_lshlrev_b32 v32, 3, v45
    v_lshl_add_u32 v32, v55, 5, v32
    v_lshl_add_u32 @A2a, @Hh, 2, v54
    v_mul_u32_u24 @A2a, 72, @A2a
    s_add_u32 $A, $WBO8, #(L_S)
    v_add3_u32 @A2a, @A2a, v32, $A
    v_lshl_add_u32 @Cq, @Hh, 8, v32
    v_bfe_u32 v57, @L, 3, 1
    v_lshl_add_u32 @Cq, v57, 6, @Cq
    v_add_u32 @Cq, $GW, @Cq
    s_mov_b32 exec_lo, 0x0f0f0f0f
    s_mov_b32 exec_hi, 0x0f0f0f0f
    v_mov_b32 @Cq, 0x40000
    s_mov_b64 exec, -1
    v_lshl_add_u32 @fU, v54, 1, @Hh
    v_lshl_add_u32 @fU, @fU, 2, v45
    s_lshl_b32 $A, s3, 10
    v_lshl_add_u32 @fU, @fU, 2, $A
    v_lshl_add_u32 @Wa, @Hh, 3, v54
    v_lshlrev_b32 @Wa, 6, @Wa
    v_and_b32 v57, 0x38, v56
    s_lshl_b32 $A, $B, 11
    s_add_u32 $A, $A, #(L_G)
    v_add3_u32 @Wa, @Wa, v57, $A
    v_mul_u32_u24 @stW, 80, v60
    v_lshl_add_u32 @stW, @Hh, 5, @stW
    v_add_u32 @stW, $GW, @stW
    v_mul_u32_u24 @stR, 80, v46
    v_lshl_add_u32 @stR, v45, 4, @stR
    v_add_u32 @stR, $GW, @stR
    v_and_b32 @Us, 255, @Tid
    v_lshlrev_b32 @Us, 2, @Us
    v_add_u32 @Us, #(L_POSD), @Us
    s_add_u32 $POS, s22, #(WS_POS)
    s_addc_u32 $POS+1, s23, 0
    s_or_b32 $POS+1, $POS+1, 0x100000
    s_mov_b32 $POS+2, #(N)
    s_mov_b32 $POS+3, 0x20000
    s_mov_b32 $K, #(f32(2.0**-KEXP))
    s_mov_b32 $K+1, #(f32(2.0**-KEXP))
    s_mov_b32 $O, 0
    s_mov_b32 $QUOTA, 24
    s_mov_b32 $SAFE, 0
    s_mov_b32 $FIRST, 1
    """)
    a(*w1dma)
    a(T_ISSUE)
    a("""
    s_mul_i32 $A, $BK, %d
    s_add_u32 $A, $A, #(WS_F2)
    v_lshl_add_u32 v39, @L, 15, $A
    v_mov_b32 v40, $TAG
    v_mov_b32 v41, $TAG+1
    s_cmp_lg_u32 s3, 7
    s_waitcnt vmcnt(%d)
    s_barrier
    s_cbranch_scc1 F_NOF
    s_mov_b64 exec, %d
    global_store_dwordx2 v39, v[40:41], s[22:23] sc1
    s_mov_b64 exec, -1
    F_NOF:
    """ % (FST, 2 if TPOS == 1 else 0, 255 if FREP else 1))
    pstamp(a, opt, "p_flag")
    for ks in range(7):
        wrd(WAp, ks, 32768)
    img = """v_lshlrev_b32 v52, 16, v52
    v_mul_f32 v52, $L2E, v52
    v_cvt_pk_bf16_f32 v36, v52, v52
    v_and_b32 v37, 0xffff0000, v36
    v_sub_f32 v52, v52, v37
    v_cvt_pk_bf16_f32 v37, v52, v52
    v_lshlrev_b32 v53, 16, v53
    v_mul_f32 v53, #(f32(-LN2*2.0**-KEXP)), v53
    v_bfe_u32 v38, @Tid, 7, 1
    v_mul_u32_u24 v38, #(2*RS), v38
    v_add_u32 v38, v38, v51
    v_lshlrev_b32 @WXa, 4, v60
    v_bfe_u32 v50, @Tid, 5, 2
    v_lshl_add_u32 v50, v50, 2, @WXa
    v_and_b32 v34, 7, @L
    v_mul_u32_u24 v34, 18, v34
    v_mov_b32 v35, 0x3f80
    s_lshl_b32 $A, $REP, 5
    v_add_u32 @Mr, $A, v60
    v_mul_u32_u24 @Mr, #(RS), @Mr
    v_lshl_add_u32 v33, @Hh, 5, @Mr
    s_lshl_b32 $A, $B, 6
    v_add_u32 v33, $A, v33
    v_lshl_add_u32 @Mr, @Hh, 4, @Mr""".split("\n")
    for ks in range(8):
        a("s_waitcnt lgkmcnt(%d)" % (12 if ks == 0 else 14 - 2 * ks))
        if ks == 0:
            wrd(WAp, 7, 32768)
        a(mfma(DP, WAp + 4 * ks, HBq + 4 * ks, None if ks == 0 else DP))
        a(*img[3 * ks:3 * ks + 3])
    a("""
    ds_write_b16 v38, v36 offset:#(L_WZ+4*RS)
    ds_write_b16 v38, v37 offset:#(L_WZ+5*RS)
    ds_write_b32 v50, v53 offset:#(L_WX)
    ds_write_b16 v34, v35 offset:#(L_LUTC)
    s_mov_b32 $OUT, s20
    s_mov_b32 $OUT+1, s21
    s_mov_b32 $OUT+2, $Q+2
    s_mov_b32 $OUT+3, 0x20000
    s_mov_b32 $Q+2, #(WS_DBG)
    """)
    for i in range(8):
        a("v_pk_mul_f32 %s, %s, $L2E:2" % (v(DP + 2 * i, 2), v(DP + 2 * i, 2)))
    for i in range(8):
        a("v_cvt_pk_bf16_f32 %s, %s, %s" % (v(DP + i), v(DP + 2 * i), v(DP + 2 * i + 1)))
    a("""
    ds_write_b128 v33, %s offset:#(L_P)
    ds_write_b128 v33, %s offset:#(L_P+16)
    """ % (v(DP, 4), v(DP + 4, 4)))
    if opt.get("ls"):
        a("s_waitcnt lgkmcnt(0)")
        for k, nm in enumerate(opt["ls"].split("+")):
            if nm.startswith("p_"):
                a("s_mov_b32 s%d, s%d" % (6 + 2 * k, 72 + 2 * k))
    a("""
    K2_ROUND:
    s_setprio 3
    v_mov_b32 @Z, 0
    v_mov_b32 @Z+1, 0
    v_mov_b32 @Z+2, 0
    v_mov_b32 @Z+3, 0
    v_and_b32 @T4, 31, @L
    v_lshrrev_b32 @Hh, 5, @L
    v_lshrrev_b32 @T2, 2, @L
    v_and_b32 @T1, 3, @L
    """)
    a(mfma(ACC, VR["Z"], VR["Z"], None))
    a("""
    s_mul_i32 $WBO8, s3, #(SW)
    v_lshlrev_b32 @T0, 3, @L
    ds_write_b64 @T0, @Z:2
    v_lshl_add_u32 @T0, @L, 4, $WBO8
    v_lshl_add_u32 @T3, @L, 2, $WBO8
    ds_write_b128 @T0, @Z:4 offset:#(L_S)
    ds_write_b128 @T0, @Z:4 offset:#(L_S+1024)
    ds_write_b32 @T3, @Z offset:#(L_S+2048)
    """)
    a(mfma(ACC + 16, VR["Z"], VR["Z"], None))
    a("""
    v_lshlrev_b32 @T0, 4, @Tid
    s_cmp_eq_u32 $FIRST, 0
    s_cbranch_scc1 K2_NOZU
    ds_write_b128 @T0, @Z:4 offset:#(L_U)
    K2_NOZU:
    v_mul_u32_u24 @Sb, 72, @T4
    s_add_u32 $A, $WBO8, #(L_S)
    v_add_u32 @Sb, $A, @Sb
    v_and_b32 @T0, 3, @T2
    v_mul_u32_u24 @B3a, #(RS), @T0
    v_lshl_add_u32 @B3a, @T1, 3, @B3a
    v_bfe_u32 @T3, @L, 4, 1
    v_lshl_add_u32 @B3a, @T3, 5, @B3a
    v_mul_u32_u24 @X, #(L_P-L_WZ), @Hh
    v_add_u32 @B3a, @X, @B3a
    v_add_u32 @B3a, #(L_WZ), @B3a
    """)
    a(mfma(ACC + 32, VR["Z"], VR["Z"], None))
    a("""
    v_mul_u32_u24 @Xb, #(L_POSD-L_LUTC), @Hh
    v_sub_u32 @Xb, #(L_POSD), @Xb
    v_lshlrev_b32 @Idx, 3, @T2
    v_add_u32 @Idx, #(L_REC), @Idx
    v_lshlrev_b32 @Rec, 3, @T4
    v_add_u32 @Rec, #(L_REC), @Rec
    v_mul_u32_u24 @fM, #(RS), @Hh
    v_lshl_add_u32 @fM, @T4, 2, @fM
    v_lshlrev_b32 @WXa, 4, @T4
    v_xor_b32 @Hop, @T0, @Hh
    v_lshlrev_b32 @Hop, 4, @Hop
    v_and_b32 @X, 15, @L
    v_lshl_add_u32 @Hop, @X, 6, @Hop
    v_lshl_add_u32 @Hop, @T3, 12, @Hop
    s_lshr_b32 $A, s3, 2
    s_lshl_b32 $A, $A, 13
    s_add_u32 $A, $A, #(L_H)
    v_add_u32 @Hop, $A, @Hop
    """)
    a(mfma(ACC + 48, VR["Z"], VR["Z"], None))
    a("""
    v_mul_u32_u24 @HRa, 48, @Hh
    v_xor_b32 @HRa, @HRa, @Hop
    s_and_b32 $A, s3, 3
    s_lshl_b32 $A, $A, 10
    v_add_u32 @HRa, $A, @HRa
    v_lshlrev_b32 @L4, 2, @L
    s_lshl_b32 $A, s3, 5
    v_add_u32 @Ch, $A, @T2
    v_add_u32 @F2a, $A, @T4
    v_mul_u32_u24 @F2a, %d, @F2a
    s_and_b32 $D8, $BK, %d
    s_lshl_b32 $D8, $D8, 15
    s_add_u32 $D8, $D8, #(WS_F2)
    v_add_u32 @F2a, $D8, @F2a
    s_lshr_b32 $D8, $BK, 3
    s_add_u32 $A, $A, $D8
    s_and_b32 $D8, $A, 7
    s_lshl_b32 $D8, $D8, 5
    s_lshr_b32 $A, $A, 3
    s_add_u32 $A, $A, $D8
    s_mul_i32 $D8, $A, #(NB*16)
    s_add_u32 $D8, $D8, #(WS_POS)
    s_mul_i32 $A, $A, #(NB*256)
    s_sub_u32 $A, $A, 1024
    v_lshl_add_u32 @Pfa, @L, 7, $A
    s_mov_b64 exec, 0xff
    v_lshl_add_u32 @Pfa, @L, 7, $D8
    s_mov_b64 exec, -1
    v_mul_u32_u24 @Ch, #(CH), @Ch
    v_lshlrev_b32 @T1, 1, @T1
    v_add_u32 @T1, $O, @T1
    v_add_u32 @Ch, @Ch, @T1
    v_add_u32 @Ch, #(WS_REC//8), @Ch
    v_add_u32 @T3, #(16*CH), @Ch
    """ % (FST, 7 if FREP else 0))
    a(mfma(D1, VR["Z"], VR["Z"], None))
    for i in range(8):
        a("v_mov_b32 @RANK+%d, 0x8000" % i)
        a("v_mov_b32 @RADDR+%d, 0" % i)
        a("v_mov_b32 @A2+%d, 0" % i)
    a("""
    s_add_u32 $B, $O, $QUOTA
    s_xor_b32 $ATOM, $FIRST, 1
    s_and_b32 $A, s2, 3
    s_mul_i32 $A, $A, 11
    s_mov_b32 $D8, 0
    s_mov_b32 $WBO8, 0
    """)
    lstamp(a, opt, "preT")
    if opt.get("dly"):
        a("s_sleep %d" % opt["dly"])
    a("""
    s_mov_b32 exec_hi, 0
    global_load_dwordx2 @Fg:2, @F2a, s[22:23] sc1
    s_mov_b32 exec_hi, -1
    s_waitcnt vmcnt(1)
    K2_TP:
    v_cmp_ne_u64 vcc, $TAG:2, @Tg+2:2
    v_cmp_ne_u64 $MASK:2, $TAG:2, @Tg+6:2
    s_or_b64 $M:2, vcc, $MASK:2
    s_cbranch_scc1 K2_TRETRY
    K2_TOK:
    v_lshrrev_b64 @Tg:2, $A, @Tg:2
    v_lshrrev_b64 @Tg+4:2, $A, @Tg+4:2
    v_and_b32 @Ra, 0x7ff, @Tg
    v_and_b32 @Ra+1, 0x7ff, @Tg+4
    v_bfe_u32 @Ta, @Tg, 11, 11
    v_bfe_u32 @Tb, @Tg+4, 11, 11
    v_sub_u32 @Ta, @Ta, @Ra
    v_sub_u32 @Tb, @Tb, @Ra+1
    v_min_u32 @T0, $B, @Ta
    v_min_u32 @T2, $B, @Tb
    v_sub_u32 @T0, @T0, @T1
    v_sub_u32 @T2, @T2, @T1
    v_add_lshl_u32 @Ra, @Ra, @Ch, 3
    v_add_lshl_u32 @Ra+1, @Ra+1, @T3, 3
    """)
    lstamp(a, opt, "T")
    slots = [(L, i) for L in range(3) for i in range(2)]
    rem = ("@T0", "@T2")
    for q, (L, i) in enumerate(slots[:4]):
        a("v_cmp_lt_i32 $M+%d:2, %d, %s" % (4 * q, 8 * L, rem[i]))
    a("""
    s_branch K2_FP
    K2_FRETRY:
    s_add_u32 $D8, $D8, 1
    s_cmp_gt_u32 $D8, 0x20000
    s_cbranch_scc1 K2_FOK
    %s
    s_mov_b32 exec_lo, vcc_lo
    s_mov_b32 exec_hi, 0
    global_load_dwordx2 @Fg:2, @F2a, s[22:23] sc1
    s_mov_b64 exec, -1
    K2_FP:
    s_waitcnt vmcnt(0)
    v_cmp_ne_u64 vcc, $TAG:2, @Fg:2
    s_cmp_lg_u32 vcc_lo, 0
    s_cbranch_scc1 K2_FRETRY
    K2_FOK:
    """ % ("s_sleep %d" % opt["slp"] if opt.get("slp") else ""))
    lstamp(a, opt, "flag")
    for q, (L, i) in enumerate(slots[:4]):
        a("s_mov_b64 exec, $M+%d:2" % (4 * q))
        a("global_load_dwordx4 @REC0+%d:4, @Ra+%d, s[22:23] offset:%d %s" % (4 * q, i, 64 * L, opt.get("r1f", "sc1")))
    a("""
    s_mov_b64 exec, -1
    v_max_i32 @S, @T0, @T2
    v_cmp_lt_i32 $M+16:2, 16, @S
    v_max_u32 @Ch, @Ta, @Tb
    v_cmp_lt_u32 vcc, $B, @Ch
    v_mov_b32 @T3, 1
    s_cmp_lg_u64 $M+16:2, 0
    s_cbranch_scc1 K2_L20
    K2_L20R:
    """)
    lstamp(a, opt, "r1iss")
    a("""
    s_waitcnt lgkmcnt(0)
    s_barrier
    """)
    NPF = opt.get("qpf", 32)
    PFPOS = opt.get("pfpos", 0)
    pf = """
    %s
    global_load_dword @Pf, @Pfa, s[22:23]
    s_mov_b64 exec, -1
    """ % ("s_bfm_b64 exec, %d, 0" % NPF if NPF < 64 else "")
    if NPF and PFPOS == 0:
        a(pf)
    NL = 1 if NPF and PFPOS == 0 else 0
    lstamp(a, opt, "barA")
    for q, (L, i) in enumerate(slots[:4]):
        a("v_cmp_lt_i32 $M+%d:2, %d, %s" % (4 * q + 2, 8 * L + 1, rem[i]))
    for q in range(8):
        if q % 2 == 0:
            a("s_waitcnt vmcnt(%d)" % (NL + 3 - q // 2))
        if q == 0:
            lstamp(a, opt, "R1b")
        a("s_mov_b64 exec, $M+%d:2" % (2 * q))
        a("v_lshrrev_b32 @RADDR+%d, 17, @REC0+%d" % (q, 2 * q))
        a("ds_add_rtn_u32 @RANK+%d, @RADDR+%d, @T3" % (q, q))
    a("""
    s_mov_b64 exec, -1
    s_or_b64 $MASK:2, vcc, $M+16:2
    s_cbranch_scc1 K2_L2A
    K2_L2AR:
    """)
    lstamp(a, opt, "hist")
    a("""
    s_waitcnt lgkmcnt(0)
    s_barrier
    """)
    lstamp(a, opt, "barB")
    a("""
    ds_read_b32 @T1, @L4
    """)
    if NPF and PFPOS == 1:
        a(pf)
    a("""
    s_add_u32 $A, $BK, s3
    s_cmp_eq_u32 $A, 0
    s_cbranch_scc1 K2_NONCE
    K2_NONCER:
    s_waitcnt lgkmcnt(0)
    v_mov_b32 @Incl, @T1
    """)
    lstamp(a, opt, "cnt")
    scan64(a, VR["Incl"])
    lstamp(a, opt, "scan")
    a("""
    v_sub_u32 @Ch, @Incl, @T1
    v_readlane_b32 $TOTAL, @Incl, 63
    ds_write_b32 @L4, @Ch offset:#(L_EXC)
    """)
    for q in range(8):
        a("ds_read_b32 @RADDR+%d, @RADDR+%d offset:#(L_EXC)" % (q, q))
    a("""
    s_cmp_gt_u32 $TOTAL, #(CAP)
    s_cbranch_scc1 K2_OVERFLOW
    s_add_u32 $A, $TOTAL, 15
    s_bfe_u32 $B, $A, 0x30004
    s_lshr_b32 $A, $A, 7
    s_mul_i32 $P1, s3, $A
    s_min_u32 $D8, s3, $B
    s_add_u32 $P1, $P1, $D8
    s_cmp_lt_u32 s3, $B
    s_addc_u32 $END, $P1, $A
    s_lshl_b32 $B, $P1, 7
    s_lshl_b32 $A, $A, 4
    """)
    for q in range(8):
        a("s_waitcnt lgkmcnt(7)")
        a("v_add_lshl_u32 @RADDR+%d, @RADDR+%d, @RANK+%d, 3" % (q, q, q))
        a("ds_write_b64 @RADDR+%d, @REC0+%d:2 offset:#(L_REC)" % (q, 2 * q))
    lstamp(a, opt, "scat")
    a("""
    v_add_lshl_u32 @T0, @L, $TOTAL, 3
    ds_write_b64 @T0, @Z:2 offset:#(L_REC)
    v_subrev_u32 @T1, 1, @T1
    v_cmp_le_u32 vcc, $A, @T1
    v_add_u32 @Idx, $B, @Idx
    v_add_u32 @Rec, $B, @Rec
    s_cmp_lt_u32 $P1, $END
    s_cselect_b32 $SEL, #(SELQ-3-SELW), 0
    s_cselect_b64 $Q:2, s[22:23], $WH:2
    s_cselect_b32 $Q+2, #(NQ*256-65536), 0
    s_add_u32 $Q+2, $Q+2, 65536
    s_add_u32 $SEL, $SEL, #(SELW)
    s_and_b32 vcc_hi, vcc_hi, 0x1ffff
    s_or_b64 $MASK:2, vcc, $M+16:2
    s_cbranch_scc1 K2_L2B
    K2_L2BR:
    """)
    lstamp(a, opt, "preC")
    a("""
    s_waitcnt lgkmcnt(0)
    s_barrier
    """)
    lstamp(a, opt, "barC")
    refstamp(a, opt, "barC", "$BK", "s[22:23]", VR["X"])
    STUBS.append("""K2_TRETRY:
    s_add_u32 $D8, $D8, 1
    s_cmp_gt_u32 $D8, 0x20000
    s_cbranch_scc1 K2_TGIVE
    s_sleep %d
    s_mov_b64 exec, vcc
    global_load_dwordx4 @Tg:4, @Tad, s[22:23] sc1
    s_mov_b64 exec, $MASK:2
    global_load_dwordx4 @Tg+4:4, @Tad+1, s[22:23] sc1
    s_mov_b64 exec, -1
    s_waitcnt vmcnt(0)
    s_branch K2_TP
    K2_NONCE:
    v_mov_b32 @X, #(WS_NONCE)
    v_mov_b32 @Tg, $TAG
    v_mov_b32 @Tg+1, $TAG+1
    s_mov_b64 exec, 1
    global_store_dwordx2 @X, @Tg:2, s[22:23]
    s_mov_b64 exec, -1
    s_branch K2_NONCER
    K2_TGIVE:
    v_mov_b32 @Tg, 0
    v_mov_b32 @Tg+1, 0
    v_mov_b32 @Tg+4, 0
    v_mov_b32 @Tg+5, 0
    s_branch K2_TOK
    """ % 2)
    k2_tail(a, opt, True)


def kd(name, vgpr, sgpr):
    return """.p2align 6
.amdhsa_kernel %s
  .amdhsa_next_free_vgpr %d
  .amdhsa_next_free_sgpr %d
  .amdhsa_accum_offset %d
  .amdhsa_group_segment_fixed_size 0
  .amdhsa_kernarg_size 88
  .amdhsa_user_sgpr_count 2
  .amdhsa_user_sgpr_kernarg_segment_ptr 1
  .amdhsa_system_sgpr_workgroup_id_x 1
  .amdhsa_float_denorm_mode_32 3
.end_amdhsa_kernel
""" % (name, vgpr, sgpr, (vgpr + 3) // 4 * 4)


def generate(opt):
    ref = open("cdna_kernels/%s.s.ref" % NAME).read().split("\n")
    head = []
    for ln in ref:
        if ln.startswith("; Override launch") or "@launch" in ln or ln.startswith("; grid=ceil"):
            continue
        if not ln.startswith(";"):
            break
        head.append(ln)
    out = "\n".join(head) + "\n"
    l1 = "; @launch kernel=prep_kernel grid=(%d,1,1) block=(512,1,1) lds=%d\n" % (K1_GRID, K1_LDS)
    l2 = "; @launch kernel=main_kernel grid=(256,1,1) block=(512,1,1) lds=%d\n" % K2_LDS
    l0 = "; @launch kernel=null_kernel grid=(256,1,1) block=(64,1,1) lds=0\n"
    if opt.get("fused", 1):
        kn = NAME + "_kernel"
        if opt.get("seq"):
            out += "; @launch kernel=%s grid=(256,1,1) block=(512,1,1) lds=%d\n" % (kn, K2_LDS)
            out += "; @launch kernel=diag_kernel grid=(1,1,1) block=(64,1,1) lds=0\n"
        else:
            out += "; @launch grid=(256,1,1) block=(512,1,1) lds=%d\n" % K2_LDS
        out += '.amdgcn_target "amdgcn-amd-amdhsa--gfx950"\n.text\n'
        ks = [(kn, gen_fused)] + ([("diag_kernel", gen_diag)] if opt.get("seq") else [])
        for name, g in ks:
            a = Asm()
            g(a, opt)
            out += ".globl %s\n.p2align 8\n.type %s,@function\n" % (name, name) + a.text()
        out += '.section .rodata,"a"\n' + kd(kn, 256, 102)
        if opt.get("seq"):
            out += kd("diag_kernel", 8, 16)
        return out
    for c in str(opt.get("seq", "12")):
        out += {"0": l0, "1": l1, "2": l2, "3": "; @launch kernel=diag_kernel grid=(1,1,1) block=(64,1,1) lds=0\n"}[c]
    out += '.amdgcn_target "amdgcn-amd-amdhsa--gfx950"\n.text\n'
    kernels = [("prep_kernel", gen_k1), ("main_kernel", gen_k2)]
    if "0" in str(opt.get("seq", "12")):
        kernels.append(("null_kernel", lambda a, o: a("null_kernel:", "s_endpgm")))
    if "3" in str(opt.get("seq", "12")):
        kernels.append(("diag_kernel", gen_diag))
    for name, g in kernels:
        a = Asm()
        g(a, opt)
        out += ".globl %s\n.p2align 8\n.type %s,@function\n" % (name, name) + a.text()
    out += '.section .rodata,"a"\n'
    out += kd("prep_kernel", 104 if opt.get("stamps") else 96, 102 if opt.get("stamps") or opt.get("ref") else 40)
    out += kd("main_kernel", 256, 102)
    if "0" in str(opt.get("seq", "12")):
        out += kd("null_kernel", 8, 8)
    if "3" in str(opt.get("seq", "12")):
        out += kd("diag_kernel", 8, 16)
    return out


if __name__ == "__main__":
    opt = {}
    path = "cdna_kernels/%s.s" % NAME
    for arg in sys.argv[1:]:
        if "=" in arg:
            k, val = arg.split("=", 1)
            if k != "seq":
                try:
                    val = int(val)
                except ValueError:
                    pass
            opt[k] = val
        else:
            path = arg
    open(path, "w").write(generate(opt))
    print("wrote", path, "K2_LDS", K2_LDS, "L_G", L_G, "L_H", L_H, "L_REC", L_REC, "L_S", L_S)
```
